```python
import torch

def _softmax(x, axis=-1):
    return torch.softmax(x, dim=axis)
def _gelu(x):
    return torch.nn.functional.gelu(x, approximate="tanh")
def _silu(x):
    return torch.nn.functional.silu(x)
def _sigmoid(x):
    return torch.sigmoid(x)
def _layernorm(x, axis=-1, eps=1e-5):
    m = x.mean(dim=axis, keepdim=True)
    v = x.var(dim=axis, keepdim=True, unbiased=False)
    return (x - m) / torch.sqrt(v + eps)
def _scatter_add(tgt, idx, src, axis=0):
    return tgt.clone().index_add_(axis, idx, src)
def _segment_sum(src, seg, n):
    out = torch.zeros((n,) + src.shape[1:], dtype=src.dtype)
    return out.index_add_(0, seg, src)
def _pad(x, pw):
    flat = tuple(v for pair in reversed(pw) for v in pair)
    return torch.nn.functional.pad(x, flat)

kernel_name = 'gated_mix__linear_attn_block__glu_gated_glu__prompt'

def setup_inputs():

    _w = (lambda a: (lambda t: t.to(torch.bfloat16) if t.is_floating_point() else t)(torch.as_tensor(a)))
    def _A_setup():
        B, S, D = 1, 2048, 640
        return {
            "x": _w((lambda *s: torch.randn(*s, dtype=torch.bfloat16) * 0.05)(B, S, D)),
            "wqkv": _w((lambda *s: torch.randn(*s, dtype=torch.bfloat16) * 0.8)(D, 3 * D)),
            "wo": _w((lambda *s: torch.randn(*s, dtype=torch.bfloat16) * 0.2)(D, D)),
        }
    _A_in = _A_setup()

    def _B_setup():
        B, S, D, F = 1, 2048, 640, 1728
        return {
            "x": _w((lambda *s: torch.randn(*s, dtype=torch.bfloat16) * 0.05)(B, S, D)),
            "w_gate": _w((lambda *s: torch.randn(*s, dtype=torch.bfloat16) * 0.4)(D, F)),
            "w_up": _w((lambda *s: torch.randn(*s, dtype=torch.bfloat16) * 0.05)(D, F)),
            "w_down": _w((lambda *s: torch.randn(*s, dtype=torch.bfloat16) * 0.05)(F, D)),
        }
    _B_in = _B_setup()

    return {
        "A_x": _A_in["x"],
        "A_wqkv": _A_in["wqkv"],
        "A_wo": _A_in["wo"],
        "B_x": _B_in["x"],
        "B_w_gate": _B_in["w_gate"],
        "B_w_up": _B_in["w_up"],
        "B_w_down": _B_in["w_down"],
        "gate_w": _w((lambda *s: torch.randn(*s, dtype=torch.bfloat16) * 0.05)(640) * 16.0),
    }

def reference(A_x, A_wqkv, A_wo, B_x, B_w_gate, B_w_up, B_w_down, gate_w):
    def _A_ref(x, wqkv, wo):
        B, S, D = x.shape
        H = 32; Dh = D // H
        qkv = (lambda x, *d: x.permute(*d))((x @ wqkv).reshape(B, S, 3, H, Dh), 2, 0, 3, 1, 4)
        q, k, v = qkv[0], qkv[1], qkv[2]
        phi = lambda t: torch.where(t > 0, t + 1, torch.exp(t)) + 1e-6
        pq, pk = phi(q), phi(k)
        kv = torch.einsum("bhsd,bhse->bhde", pk, v)
        z = torch.einsum("bhsd->bhd", pk)
        num = torch.einsum("bhqd,bhde->bhqe", pq, kv)
        den = torch.einsum("bhqd,bhd->bhq", pq, z)[..., None] + 1e-6
        o = num / den
        return (lambda x, *d: x.permute(*d))(o, 0, 2, 1, 3).reshape(B, S, D) @ wo

    def _B_ref(x, w_gate, w_up, w_down):
        g = torch.einsum("bsd,df->bsf", x, w_gate)
        u = torch.einsum("bsd,df->bsf", x, w_up)
        h = _sigmoid(g) * u
        return torch.einsum("bsf,fd->bsd", h, w_down)

    x = A_x
    g = _sigmoid((x * gate_w).sum(-1, keepdims=True))
    a = _A_ref(x, A_wqkv, A_wo)
    b = _B_ref(x, B_w_gate, B_w_up, B_w_down)
    return g * a + (1 - g) * b
```

```python
class Asm:
    def __init__(self):
        self.lines = []
        self.kernels = []
        self._lbl = 0
    def __call__(self, s=""):
        for l in s.split("\n"):
            self.lines.append("    " + l.strip() if l.strip() and not l.strip().endswith(":") else l.strip())
    def c(self, s):
        self.lines.append("    ; " + s)
    def label(self, name):
        self.lines.append(name + ":")
    def newlabel(self, base="L"):
        self._lbl += 1
        return "%s_%d" % (base, self._lbl)
    def begin_kernel(self, name):
        self.lines.append(".text")
        self.lines.append(".globl %s" % name)
        self.lines.append(".p2align 8")
        self.lines.append(".type %s,@function" % name)
        self.lines.append(name + ":")
    def end_kernel(self, name, vgpr, sgpr, accum=None, wg_y=False, nptr=11):
        if accum is None:
            accum = min(256, (vgpr + 3) // 4 * 4)
        self.kernels.append((name, vgpr, sgpr, accum, wg_y, nptr))
    def text(self, header=""):
        out = [header.rstrip("\n")] if header else []
        out.append('.amdgcn_target "amdgcn-amd-amdhsa--gfx950"')
        out += self.lines
        out.append('.section .rodata,"a"')
        for (name, vgpr, sgpr, accum, wg_y, nptr) in self.kernels:
            out.append(".p2align 6")
            out.append(".amdhsa_kernel %s" % name)
            out.append("  .amdhsa_next_free_vgpr %d" % vgpr)
            out.append("  .amdhsa_next_free_sgpr %d" % sgpr)
            out.append("  .amdhsa_accum_offset %d" % accum)
            out.append("  .amdhsa_group_segment_fixed_size 0")
            out.append("  .amdhsa_kernarg_size %d" % (nptr * 8))
            out.append("  .amdhsa_user_sgpr_count 2")
            out.append("  .amdhsa_user_sgpr_kernarg_segment_ptr 1")
            out.append("  .amdhsa_system_sgpr_workgroup_id_x 1")
            if wg_y:
                out.append("  .amdhsa_system_sgpr_workgroup_id_y 1")
            out.append(".end_amdhsa_kernel")
        return "\n".join(out) + "\n"
```

```python
import sys
from asmlib import Asm

S, D, F = 2048, 640, 1728
AF_OFF  = 0x0000000
BF_OFF  = 0x0A00000
WOF_OFF = 0x0D00000
KV_OFF  = 0x0E00000
Z_OFF   = KV_OFF + 4 * 26 * 1024
ZERO_BYTES = 108 * 1024
G_OFF   = 0x0E40000
JUNK_OFF = 0x0F00000
WS_SIZE = 0x10000000
LOG2E = 0x3fb8aa3b
NLOG2E = 0xbfb8aa3b
EPS6 = 0x358637bd

def head(c): return c // 20

class LdsQ:
    def __init__(self, a):
        self.a = a; self.q = []
    def issue(self, tag, text):
        self.a(text); self.q.append(tag)
    def need(self, tags):
        idx = [i for i, t in enumerate(self.q) if t in tags]
        if not idx: return
        last = max(idx)
        n = len(self.q) - 1 - last
        assert n <= 15
        self.a("s_waitcnt lgkmcnt(%d)" % n)
        self.q = self.q[last + 1:]
    def drain(self):
        self.a("s_waitcnt lgkmcnt(0)"); self.q = []

B_SLOT, A_SLOT = 24576, 16384
A_BASE = 4 * B_SLOT
K1_LDS = A_BASE + 3 * A_SLOT

TRI = [(dt, et) for dt in range(5) for et in range(5) if abs(dt - et) <= 1 and
       any(head(16 * dt + x) == head(16 * et + y) for x in range(16) for y in range(16))]
assert len(TRI) == 13

def kv_tile_index(par, dt, et):
    return par * 13 + TRI.index((dt, et))

def srd(a, d, lo, hi, size):
    a("s_mov_b32 s%d, s%d" % (d, lo))
    a("s_mov_b32 s%d, s%d" % (d + 1, hi))
    a("s_mov_b32 s%d, 0x%x" % (d + 2, size))
    a("s_mov_b32 s%d, 0x00020000" % (d + 3))

def code_prefetch(a, label_start, label_end, nbytes, vtmp, vdst, stmp, swave):
    a("s_getpc_b64 s[%d:%d]" % (stmp, stmp + 1))
    here = a.newlabel("PC")
    a.label(here)
    a("s_sub_u32 s%d, s%d, %s-%s" % (stmp, stmp, here, label_start))
    a("s_subb_u32 s%d, s%d, 0" % (stmp + 1, stmp + 1))
    a("v_and_b32 v%d, 63, v0" % vtmp)
    a("v_lshlrev_b32 v%d, 7, v%d" % (vtmp, vtmp))
    a("s_lshl_b32 s%d, s%d, 13" % (stmp + 2, swave))
    a("v_add_u32 v%d, s%d, v%d" % (vtmp, stmp + 2, vtmp))
    n = (nbytes + 32767) // 32768
    for i in range(n):
        a("v_min_u32 v%d, %s-%s-4, v%d" % (vdst, label_end, label_start, vtmp))
        a("global_load_dword v%d, v%d, s[%d:%d]" % (vdst, vdst, stmp, stmp + 1))
        if i + 1 < n:
            a("v_add_u32 v%d, 32768, v%d" % (vtmp, vtmp))

TS_OFF = 0x0F80000
STAMP = False
def stamp(a, idx, v):
    if not STAMP: return
    a("s_memrealtime s[94:95]")
    a("s_waitcnt lgkmcnt(0)")
    a("v_writelane_b32 v%d, s94, %d" % (v, idx))
def stampc(a, idx, v):
    if not STAMP: return
    a("s_memtime s[94:95]")
    a("s_waitcnt lgkmcnt(0)")
    a("v_writelane_b32 v%d, s94, %d" % (v, idx))
def stamp_flush(a, v, vt, swg, swave, nw, wsrd=36):
    if not STAMP: return
    a("s_waitcnt vmcnt(0)")
    stamp(a, 7, v)
    a("s_mul_i32 s94, s%d, %d" % (swg, nw))
    a("s_add_u32 s94, s94, s%d" % swave)
    a("s_lshl_b32 s94, s94, 5")
    a("s_add_u32 s94, s94, 0x%x" % TS_OFF)
    a("s_mov_b32 exec_lo, 0xff")
    a("s_mov_b32 exec_hi, 0")
    a("v_and_b32 v%d, 63, v0" % vt)
    a("v_lshlrev_b32 v%d, 2, v%d" % (vt, vt))
    a("buffer_store_dword v%d, v%d, s[%d:%d], s94 offen" % (v, vt, wsrd, wsrd + 3))
    a("s_waitcnt vmcnt(0)")

def gen_k1(a, name, code_bytes):
    a.begin_kernel(name)
    a("s_cmp_ge_u32 s2, 256")
    a("s_cbranch_scc1 K1_END")
    a("s_load_dwordx16 s[4:19], s[0:1], 0")
    a("s_load_dwordx4 s[20:23], s[0:1], 64")
    a("s_load_dwordx2 s[24:25], s[0:1], 80")
    a("v_lshrrev_b32 v2, 6, v0")
    a("v_and_b32 v1, 63, v0")
    a("v_readfirstlane_b32 s26, v2")
    stamp(a, 0, 15)
    a("s_and_b32 s40, s2, 7")
    a("s_lshr_b32 s41, s2, 3")
    a("s_and_b32 s42, s40, 1")
    a("s_lshl_b32 s42, s42, 3")
    a("s_and_b32 s43, s41, 7")
    a("s_add_u32 s42, s42, s43")
    a("s_lshr_b32 s43, s40, 1")
    a("s_lshl_b32 s43, s43, 2")
    a("s_lshr_b32 s44, s41, 3")
    a("s_add_u32 s43, s43, s44")
    a("s_waitcnt lgkmcnt(0)")
    srd(a, 28, 4, 5, S * D * 2)
    srd(a, 36, 24, 25, WS_SIZE)
    srd(a, 32, 6, 7, D * 3 * D * 2)
    srd(a, 48, 18, 19, D * 2)
    srd(a, 52, 22, 23, 256)
    srd(a, 56, 16, 17, F * D * 2)
    srd(a, 60, 8, 9, D * D * 2)
    a("s_cmp_eq_u32 s43, 15")
    a("s_cbranch_scc1 K1_PREP")
    a("s_cmp_lt_u32 s26, 4")
    a("s_cbranch_scc1 K1_COMPUTE")

    a.c("loader waves")
    if STAMP: a("v_mov_b32 v20, v15")
    a("s_sub_u32 s27, s26, 4")
    code_prefetch(a, name, "K1_END", code_bytes, 3, 4, 90, 27)
    a("s_lshr_b32 s44, s27, 1")
    a("s_cmp_lt_u32 s43, 9")
    a("s_cbranch_scc0 K1_LD_QKV")
    a("s_cmp_eq_u32 s44, 0")
    a("s_cselect_b32 s32, s12, s14")
    a("s_cselect_b32 s33, s13, s15")
    a("s_mov_b32 s34, 0x%x" % (D * F * 2))
    a("s_movk_i32 s45, 3456")
    a("s_mul_i32 s46, s43, 384")
    a("s_branch K1_LD_GO")
    a.label("K1_LD_QKV")
    a("s_movk_i32 s45, 3840")
    a("s_cmp_lt_u32 s43, 13")
    a("s_cbranch_scc0 K1_LD_Q")
    a("s_sub_u32 s46, s43, 9")
    a("s_mul_i32 s46, s46, 320")
    a("s_mul_i32 s47, s44, 1280")
    a("s_add_u32 s46, s46, s47")
    a("s_add_u32 s46, s46, 1280")
    a("s_branch K1_LD_AL")
    a.label("K1_LD_Q")
    a("s_sub_u32 s46, s43, 13")
    a("s_lshl_b32 s46, s46, 1")
    a("s_add_u32 s46, s46, s44")
    a("s_mul_i32 s46, s46, 320")
    a.label("K1_LD_AL")
    a("s_and_b32 s46, s46, 0xffffff80")
    a.label("K1_LD_GO")
    a("s_and_b32 s47, s27, 1")
    a("s_mul_i32 s47, s47, 384")
    a("s_movk_i32 s49, 2731") if False else None
    a("s_mov_b32 s64, 2731")
    for c in range(768): assert (c * 2731) >> 16 == c // 24
    for i in range(6):
        a("v_add_u32 v2, s47, v1")
        if i: a("v_add_u32 v2, %d, v2" % (64 * i))
        a("v_mul_u32_u24 v3, s64, v2")
        a("v_lshrrev_b32 v3, 16, v3")
        a("v_mul_u32_u24 v5, 24, v3")
        a("v_sub_u32 v5, v2, v5")
        a("v_lshrrev_b32 v6, 1, v3")
        a("v_and_b32 v6, 1, v6")
        a("v_lshrrev_b32 v7, 2, v3")
        a("v_and_b32 v7, 2, v7")
        a("v_or_b32 v6, v6, v7")
        a("v_lshrrev_b32 v7, 1, v5")
        a("v_xor_b32 v7, v7, v6")
        a("v_lshlrev_b32 v7, 5, v7")
        a("v_and_b32 v5, 1, v5")
        a("v_lshl_add_u32 v7, v5, 4, v7")
        a("v_mul_lo_u32 v3, v3, s45")
        a("v_add_u32 v%d, v3, v7" % (10 + i))
    a("s_lshl_b32 s47, s27, 5")
    for i in range(4):
        a("v_lshrrev_b32 v2, 3, v1")
        a("v_add_u32 v2, s47, v2")
        if i: a("v_add_u32 v2, %d, v2" % (8 * i))
        a("v_lshrrev_b32 v3, 1, v2")
        a("v_and_b32 v3, 7, v3")
        a("v_and_b32 v5, 7, v1")
        a("v_xor_b32 v3, v3, v5")
        a("v_lshlrev_b32 v3, 4, v3")
        a("v_mul_u32_u24 v2, 1280, v2")
        a("v_add_u32 v%d, v2, v3" % (16 + i))
    a("s_mul_i32 s65, s42, %d" % (128 * 1280))
    a("s_lshl_b32 s66, s45, 5")
    a("s_mul_i32 s67, s27, 6144")
    a("s_lshl_b32 s68, s27, 12")
    a("s_add_u32 s68, s68, %d" % A_BASE)
    issued = []
    def issueB(t):
        a("s_mul_i32 s69, s66, %d" % t)
        a("s_add_u32 s69, s69, s46")
        for i in range(6):
            a("s_add_u32 m0, s67, %d" % ((t % 4) * B_SLOT + i * 1024))
            a("s_nop 0")
            a("buffer_load_dwordx4 v%d, s[32:35], s69 offen lds" % (10 + i))
            issued.append(("B", t))
    def issueA(T):
        a("s_add_u32 s70, s65, %d" % (T * 128))
        for i in range(4):
            a("s_add_u32 m0, s68, %d" % ((T % 3) * A_SLOT + i * 1024))
            a("s_nop 0")
            a("buffer_load_dwordx4 v%d, s[28:31], s70 offen lds" % (16 + i))
            issued.append(("A", T))
    stamp(a, 2, 20)
    issueA(0); issueB(0); issueB(1); issueA(1); issueB(2); issueB(3); issueA(2)
    stamp(a, 3, 20)
    for t in range(21):
        if t <= 19:
            last = max(i for i, x in enumerate(issued) if x == ("B", t) or x == ("A", t // 2))
            n = len(issued) - 1 - last
            a("s_waitcnt vmcnt(%d)" % n)
        a("s_barrier")
        if t >= 1 and t + 3 <= 19: issueB(t + 3)
        if t == 0: stamp(a, 1, 20)
        if t >= 2 and t % 2 == 0 and t // 2 + 2 <= 9: issueA(t // 2 + 2)
    stamp_flush(a, 20, 21, 2, 26, 8)
    a("s_endpgm")

    a.label("K1_COMPUTE")
    a("s_lshr_b32 s44, s26, 1")
    a("s_and_b32 s45, s26, 1")
    a("s_cmp_lt_u32 s43, 9")
    a("s_cbranch_scc0 K1_C_QKV")
    a("s_mul_i32 s46, s45, 6")
    a("s_mov_b32 s47, 0")
    a("s_branch K1_C_GO")
    a.label("K1_C_QKV")
    a("s_cmp_lt_u32 s43, 13")
    a("s_cbranch_scc0 K1_C_Q")
    a("s_sub_u32 s46, s43, 9")
    a("s_and_b32 s46, s46, 1")
    a("s_lshl_b32 s46, s46, 1")
    a("s_mul_i32 s47, s45, 5")
    a("s_add_u32 s46, s46, s47")
    a("s_mov_b32 s47, 0")
    a("s_branch K1_C_GO")
    a.label("K1_C_Q")
    a("s_lshl_b32 s46, s45, 1")
    a("s_mul_i32 s47, s45, 12288")
    a.label("K1_C_GO")
    VA, VB = 2, 4
    a("v_and_b32 v8, 15, v1")
    a("v_lshrrev_b32 v9, 4, v1")
    a("s_lshl_b32 s64, s44, 13")
    a("s_add_u32 s64, s64, %d" % A_BASE)
    a("v_lshrrev_b32 v10, 1, v8")
    a("v_xor_b32 v11, v9, v10")
    a("v_lshlrev_b32 v11, 4, v11")
    a("v_lshl_add_u32 v11, v8, 7, v11")
    a("v_add_u32 v2, s64, v11")
    a("v_xor_b32 v3, 64, v2")
    a("v_lshrrev_b32 v10, 2, v8")
    a("v_lshl_add_u32 v11, v9, 3, v10")
    a("v_mul_u32_u24 v11, 384, v11")
    a("v_and_b32 v12, 3, v1")
    a("v_lshl_add_u32 v11, v12, 3, v11")
    a("v_add_u32 v11, s47, v11")
    a("v_lshrrev_b32 v12, 1, v10")
    a("v_and_b32 v13, 1, v9")
    a("v_lshl_or_b32 v12, v13, 1, v12")
    for jp in range(4):
        a("s_add_u32 s64, s46, %d" % jp)
        a("s_and_b32 s65, s64, 3")
        a("s_lshr_b32 s64, s64, 2")
        a("s_lshl_b32 s64, s64, 7")
        a("v_xor_b32 v13, s65, v12")
        a("v_lshl_add_u32 v13, v13, 5, v11")
        a("v_add_u32 v%d, s64, v13" % (VB + jp))
    for r in range(64, 256):
        a("v_mov_b32 v%d, 0" % r)
    a("s_mov_b32 s70, 0")
    a("s_mov_b32 s71, 10")
    a("s_mov_b32 s75, 49152")
    a("s_cmp_lt_u32 s43, 9")
    a("s_cbranch_scc1 K1_GU")
    a("s_cmp_lt_u32 s43, 13")
    a("s_cbranch_scc1 K1_KV")
    a("s_branch K1_Q")

    ABUF = [16, 32]
    BR = 48
    ACC = 64

    def mainloop(role):
        q = LdsQ(a)
        if role == "gu":
            frags = [(p, j) for j in range(6) for p in range(2)]
        elif role == "kv":
            frags = [(p, j) for j in range(5) for p in range(2)]
        else:
            frags = [(0, j) for j in range(10)]
        nB = len(frags)
        def accreg(fi, rt): return ACC + (fi * 4 + rt) * 4
        def readB(J, par):
            p, j = frags[J]
            slot = (par * nB + J) % 4
            out = []
            for h in range(2):
                off = (j >> 2) * 128 + h * 1536 + p * 12288 + par * B_SLOT
                r = BR + slot * 4 + h * 2
                out.append((("B", par, J), "ds_read_b64_tr_b16 v[%d:%d], v%d offset:%d" % (r, r + 1, VB + (j & 3), off)))
            return out
        def readA(par):
            out = []
            for rt in range(4):
                r = ABUF[par] + rt * 4
                out.append((("A", par, rt), "ds_read_b128 v[%d:%d], v%d offset:%d" % (r, r + 3, VA + par, rt * 2048)))
            return out
        def mfma(par, J, rt):
            slot = (par * nB + J) % 4
            b = BR + slot * 4; x = ABUF[par] + rt * 4; c = accreg(J, rt)
            if role == "kv":
                return "v_mfma_f32_16x16x32_bf16 v[%d:%d], v[%d:%d], v[%d:%d], v[%d:%d]" % (c, c + 3, x, x + 3, b, b + 3, c, c + 3)
            return "v_mfma_f32_16x16x32_bf16 v[%d:%d], v[%d:%d], v[%d:%d], v[%d:%d]" % (c, c + 3, b, b + 3, x, x + 3, c, c + 3)
        GW = [ACC + 176, ACC + 180]
        LOG = ACC + 160
        if role == "q":
            a("v_lshlrev_b32 v14, 4, v9")
            a("s_mov_b32 s72, 0")
            a("buffer_load_dwordx4 v[%d:%d], v14, s[48:51], s72 offen" % (GW[0], GW[0] + 3))
        stamp(a, 2, 15)
        a("s_barrier")
        stamp(a, 1, 15)
        stampc(a, 5, 15)
        for tag, t in readA(0) + readB(0, 0) + readB(1, 0) + readB(2, 0):
            q.issue(tag, t)
        state0 = list(q.q)
        lbl = "K1_LOOP_" + role
        a.label(lbl)
        for par in range(2):
            for J in range(nB):
                reads = []
                pre = []
                if J + 3 <= nB - 1:
                    reads = readB(J + 3, par)
                if J == nB - 2:
                    if role == "q":
                        a("s_waitcnt vmcnt(0)")
                        for rt in range(4):
                            x = ABUF[par] + rt * 4; c = LOG + rt * 4
                            a("v_mfma_f32_16x16x32_bf16 v[%d:%d], v[%d:%d], v[%d:%d], v[%d:%d]" % (c, c + 3, GW[par], GW[par] + 3, x, x + 3, c, c + 3))
                        a("buffer_load_dwordx4 v[%d:%d], v14, s[48:51], s72 offen offset:%d" % (GW[1 - par], GW[1 - par] + 3, 64 * (par + 1)))
                    q.drain()
                    a("s_barrier")
                    if par == 1:
                        for jp in range(4):
                            a("v_add_u32 v%d, s75, v%d" % (VB + jp, VB + jp))
                        a("s_sub_u32 s75, 0, s75")
                        a("s_add_u32 s70, s70, 16384")
                        a("s_cmp_eq_u32 s70, 49152")
                        a("s_cselect_b32 s73, s70, 0")
                        a("s_sub_u32 s70, s70, s73")
                        a("s_sub_u32 s73, 16384, s73")
                        a("v_add_u32 v2, s73, v2")
                        a("v_add_u32 v3, s73, v3")
                    reads = readA(1 - par) + readB(0, 1 - par) + readB(1, 1 - par)
                if J == nB - 1:
                    reads = readB(2, 1 - par)
                q.need([("B", par, J)] + ([("A", par, 0)] if J == 0 else []))
                for rt in range(4):
                    if J == 0 and rt > 0: q.need([("A", par, rt)])
                    a(mfma(par, J, rt))
                    k = (len(reads) + (3 - rt)) // (4 - rt) if reads else 0
                    for _ in range(k):
                        tag, t = reads.pop(0); q.issue(tag, t)
                assert not reads
        if role == "q":
            a("s_add_u32 s72, s72, 128")
        a("s_sub_u32 s71, s71, 1")
        a("s_cmp_lg_u32 s71, 0")
        a("s_cbranch_scc1 %s" % lbl)
        assert q.q == state0, (q.q, state0)
        a("s_waitcnt lgkmcnt(0) vmcnt(0)")
        a("s_nop 7")
        stamp(a, 3, 15)
        stampc(a, 6, 15)
        return accreg

    a.label("K1_GU")
    accreg = mainloop("gu")
    a("s_mov_b32 s64, 0x%x" % NLOG2E); a("s_mov_b32 s65, 0x%x" % NLOG2E)
    a("s_mov_b32 s66, 1.0"); a("s_mov_b32 s67, 1.0")
    a("s_lshl_b32 s68, s42, 3")
    a("s_lshl_b32 s69, s44, 2")
    a("s_add_u32 s68, s68, s69")
    a("s_mul_i32 s68, s68, 74")
    a("s_mul_i32 s69, s43, 6")
    a("s_add_u32 s68, s68, s69")
    a("s_mul_i32 s69, s45, 3")
    a("s_add_u32 s68, s68, s69")
    a("s_lshl_b32 s68, s68, 10")
    if AF_OFF: a("s_add_u32 s68, s68, 0x%x" % AF_OFF)
    a("v_lshlrev_b32 v8, 4, v1")
    blk = 0
    for rt in range(4):
        for jp in range(3):
            T = 16 + (blk % 2) * 16
            O = T + 8
            for half in range(2):
                j = 2 * jp + half
                gq = accreg(j * 2 + 0, rt); uq = accreg(j * 2 + 1, rt)
                for e in range(0, 4, 2):
                    t = T + half * 4 + e
                    a("v_pk_mul_f32 v[%d:%d], v[%d:%d], s[64:65]" % (t, t + 1, gq + e, gq + e + 1))
            for x in range(8): a("v_exp_f32 v%d, v%d" % (T + x, T + x))
            for x in range(0, 8, 2): a("v_pk_add_f32 v[%d:%d], v[%d:%d], s[66:67]" % (T + x, T + x + 1, T + x, T + x + 1))
            for x in range(8): a("v_rcp_f32 v%d, v%d" % (T + x, T + x))
            for half in range(2):
                j = 2 * jp + half
                uq = accreg(j * 2 + 1, rt)
                for e in range(0, 4, 2):
                    t = T + half * 4 + e
                    a("v_pk_mul_f32 v[%d:%d], v[%d:%d], v[%d:%d]" % (t, t + 1, t, t + 1, uq + e, uq + e + 1))
            for x in range(4):
                a("v_cvt_pk_bf16_f32 v%d, v%d, v%d" % (O + x, T + 2 * x, T + 2 * x + 1))
            a("s_add_u32 s69, s68, %d" % ((rt * 74 + jp) * 1024))
            a("buffer_store_dwordx4 v[%d:%d], v8, s[36:39], s69 offen" % (O, O + 3))
            blk += 1
    stamp_flush(a, 15, 14, 2, 26, 8)
    a("s_endpgm")

    a.label("K1_Q")
    accreg = mainloop("q")
    a("s_mov_b32 s64, 0x%x" % LOG2E); a("s_mov_b32 s65, 0x%x" % LOG2E)
    a("s_mov_b32 s66, 0x%x" % EPS6); a("s_mov_b32 s67, 0x%x" % EPS6)
    a("s_lshl_b32 s68, s42, 3")
    a("s_lshl_b32 s69, s44, 2")
    a("s_add_u32 s68, s68, s69")
    a("s_lshl_b32 s74, s68, 6")
    a("s_mul_i32 s68, s68, 74")
    a("s_sub_u32 s69, s43, 13")
    a("s_mul_i32 s69, s69, 10")
    a("s_add_u32 s68, s68, s69")
    a("s_mul_i32 s69, s45, 5")
    a("s_add_u32 s68, s68, s69")
    a("s_add_u32 s68, s68, 54")
    a("s_lshl_b32 s68, s68, 10")
    if AF_OFF: a("s_add_u32 s68, s68, 0x%x" % AF_OFF)
    a("v_lshlrev_b32 v8, 4, v1")
    def phi_pairs(srcs, T):
        n = len(srcs)
        U = T + 2 * n
        for x, s in enumerate(srcs):
            a("v_pk_mul_f32 v[%d:%d], v[%d:%d], s[64:65]" % (T + 2 * x, T + 2 * x + 1, s, s + 1))
        for x in range(2 * n):
            a("v_exp_f32 v%d, v%d clamp" % (T + x, T + x))
        for x, s in enumerate(srcs):
            a("v_max_f32 v%d, 0, v%d" % (U + 2 * x, s))
            a("v_max_f32 v%d, 0, v%d" % (U + 2 * x + 1, s + 1))
        for x in range(n):
            a("v_pk_add_f32 v[%d:%d], v[%d:%d], v[%d:%d]" % (T + 2 * x, T + 2 * x + 1, T + 2 * x, T + 2 * x + 1, U + 2 * x, U + 2 * x + 1))
        for x in range(n):
            a("v_pk_add_f32 v[%d:%d], v[%d:%d], s[66:67]" % (T + 2 * x, T + 2 * x + 1, T + 2 * x, T + 2 * x + 1))
    blk = 0
    for rt in range(4):
        for jp in range(5):
            T = 16 + (blk % 2) * 20
            O = T + 16
            srcs = [accreg(2 * jp + half, rt) + e for half in range(2) for e in (0, 2)]
            phi_pairs(srcs, T)
            for x in range(4):
                a("v_cvt_pk_bf16_f32 v%d, v%d, v%d" % (O + x, T + 2 * x, T + 2 * x + 1))
            a("s_add_u32 s69, s68, %d" % ((rt * 74 + jp) * 1024))
            a("buffer_store_dwordx4 v[%d:%d], v8, s[36:39], s69 offen" % (O, O + 3))
            blk += 1
    a("s_cmp_eq_u32 s43, 13")
    a("s_cbranch_scc0 K1_Q_END")
    a("s_cmp_eq_u32 s45, 0")
    a("s_cbranch_scc0 K1_Q_END")
    a("v_cmp_gt_u32 vcc, 16, v1")
    a("s_and_saveexec_b64 s[76:77], vcc")
    a("v_lshlrev_b32 v9, 2, v1")
    a("s_mov_b32 s64, 0x%x" % NLOG2E)
    a("s_add_u32 s74, s74, 0x%x" % G_OFF)
    for rt in range(4):
        c = ACC + 160 + rt * 4
        a("v_mul_f32 v%d, s64, v%d" % (16 + rt, c))
    for rt in range(4): a("v_exp_f32 v%d, v%d" % (16 + rt, 16 + rt))
    a("s_nop 0")
    for rt in range(4): a("v_add_f32 v%d, 1.0, v%d" % (16 + rt, 16 + rt))
    for rt in range(4): a("v_rcp_f32 v%d, v%d" % (16 + rt, 16 + rt))
    a("s_nop 0")
    for rt in range(4):
        a("buffer_store_dword v%d, v9, s[36:39], s74 offen offset:%d" % (16 + rt, rt * 64))
    a.label("K1_Q_END")
    a("s_mov_b64 exec, -1")
    stamp_flush(a, 15, 14, 2, 26, 8)
    a("s_endpgm")

    a.label("K1_KV")
    accreg = mainloop("kv")
    a("s_mov_b32 s64, 0x%x" % LOG2E); a("s_mov_b32 s65, 0x%x" % LOG2E)
    a("s_mov_b32 s66, 0x%x" % EPS6); a("s_mov_b32 s67, 0x%x" % EPS6)
    def fragreg(p, rp, j): return accreg(j * 2 + p, 2 * rp)
    blk = 0
    for rp in range(2):
        for j in range(5):
            T = 16 + (blk % 2) * 16
            srcs = [accreg(j * 2, 2 * rp + half) + e for half in range(2) for e in (0, 2)]
            phi_pairs(srcs, T)
            o = fragreg(0, rp, j)
            for x in range(4):
                a("v_cvt_pk_bf16_f32 v%d, v%d, v%d" % (o + x, T + 2 * x, T + 2 * x + 1))
            s0 = accreg(j * 2 + 1, 2 * rp); s1 = accreg(j * 2 + 1, 2 * rp + 1)
            a("v_cvt_pk_bf16_f32 v%d, v%d, v%d" % (s0, s0, s0 + 1))
            a("v_cvt_pk_bf16_f32 v%d, v%d, v%d" % (s0 + 1, s0 + 2, s0 + 3))
            a("v_cvt_pk_bf16_f32 v%d, v%d, v%d" % (s0 + 2, s1, s1 + 1))
            a("v_cvt_pk_bf16_f32 v%d, v%d, v%d" % (s0 + 3, s1 + 2, s1 + 3))
            blk += 1
    res = [accreg(fi, rt) for fi in range(10) for rt in (1, 3)]
    ONES = 16
    for x in range(4): a("v_mov_b32 v%d, 0x3f803f80" % (ONES + x))
    a("s_nop 1")
    for ti, (dt, et) in enumerate(TRI):
        c = res[ti]
        for rp in range(2):
            A_ = fragreg(1, rp, et); B_ = fragreg(0, rp, dt)
            a("v_mfma_f32_16x16x32_bf16 v[%d:%d], v[%d:%d], v[%d:%d], %s" % (c, c + 3, A_, A_ + 3, B_, B_ + 3, "0" if rp == 0 else "v[%d:%d]" % (c, c + 3)))
    for dt in range(5):
        c = res[13 + dt]
        for rp in range(2):
            B_ = fragreg(0, rp, dt)
            a("v_mfma_f32_16x16x32_bf16 v[%d:%d], v[%d:%d], v[%d:%d], %s" % (c, c + 3, ONES, ONES + 3, B_, B_ + 3, "0" if rp == 0 else "v[%d:%d]" % (c, c + 3)))
    a("s_barrier")
    a("s_mul_i32 s68, s45, %d" % (18 * 1024))
    a("v_lshlrev_b32 v8, 4, v1")
    a("v_add_u32 v8, s68, v8")
    a("s_nop 4")
    a("s_cmp_eq_u32 s44, 0")
    a("s_cbranch_scc1 K1_KV_RED")
    for ti in range(18):
        c = res[ti]
        a("ds_write_b128 v8, v[%d:%d] offset:%d" % (c, c + 3, ti * 1024))
    a("s_waitcnt lgkmcnt(0)")
    a("s_barrier")
    stamp_flush(a, 15, 14, 2, 26, 8)
    a("s_endpgm")
    a.label("K1_KV_RED")
    a("s_barrier")
    for ti in range(12):
        a("ds_read_b128 v[%d:%d], v8 offset:%d" % (16 + ti * 4, 16 + ti * 4 + 3, ti * 1024))
    free6 = [ACC + 160 + 4 * x for x in range(6)]
    for ti in range(12, 18):
        r = free6[ti - 12]
        a("ds_read_b128 v[%d:%d], v8 offset:%d" % (r, r + 3, ti * 1024))
    a("v_mov_b32 v9, 0")
    a.label("K1_KV_POLL")
    a("buffer_load_dword v10, v9, s[52:55], 0 offen sc0 sc1")
    a("s_waitcnt vmcnt(0)")
    a("v_readfirstlane_b32 s69, v10")
    a("s_cmp_ge_u32 s69, 128")
    a("s_cbranch_scc0 K1_KV_POLL")
    a("s_waitcnt lgkmcnt(0)")
    stamp(a, 4, 15)
    for ti in range(18):
        c = res[ti]
        r = 16 + ti * 4 if ti < 12 else free6[ti - 12]
        for e in (0, 2):
            a("v_pk_add_f32 v[%d:%d], v[%d:%d], v[%d:%d]" % (c + e, c + e + 1, c + e, c + e + 1, r + e, r + e + 1))
    a("s_sub_u32 s68, s43, 9")
    a("s_mul_i32 s69, s68, 26")
    a("s_mul_i32 s70, s45, 13")
    a("s_add_u32 s69, s69, s70")
    a("s_lshl_b32 s69, s69, 10")
    a("s_add_u32 s69, s69, 0x%x" % KV_OFF)
    a("v_lshlrev_b32 v8, 2, v1")
    for ti, (dt, et) in enumerate(TRI):
        c = res[ti]
        for r in range(4):
            m = 0
            for l in range(64):
                d = 16 * dt + (l & 15); e = 16 * et + 4 * (l >> 4) + r
                if head(d) == head(e): m |= 1 << l
            if m == 0: continue
            a("s_mov_b32 exec_lo, 0x%x" % (m & 0xffffffff))
            a("s_mov_b32 exec_hi, 0x%x" % (m >> 32))
            a("buffer_atomic_add_f32 v%d, v8, s[36:39], s69 offen offset:%d" % (c + r, (ti % 4) * 1024 + r * 256))
        if ti % 4 == 3:
            a("s_add_u32 s69, s69, 4096")
    a("s_mov_b32 exec_lo, 0xffff")
    a("s_mov_b32 exec_hi, 0")
    a("s_lshl_b32 s68, s68, 1")
    a("s_add_u32 s68, s68, s45")
    a("s_mul_i32 s68, s68, 320")
    a("s_add_u32 s68, s68, 0x%x" % Z_OFF)
    for dt in range(5):
        a("buffer_atomic_add_f32 v%d, v8, s[36:39], s68 offen offset:%d" % (res[13 + dt], dt * 64))
    a("s_mov_b64 exec, -1")
    stamp_flush(a, 15, 14, 2, 26, 8)
    a("s_endpgm")

    a.label("K1_PREP")
    if STAMP: a("v_mov_b32 v40, v15")
    a("s_lshl_b32 s44, s42, 3")
    a("s_add_u32 s44, s44, s26")
    a("v_mov_b32 v4, 0"); a("v_mov_b32 v5, 0"); a("v_mov_b32 v6, 0"); a("v_mov_b32 v7, 0")
    a("v_lshlrev_b32 v8, 4, v1")
    a("s_cmp_lt_u32 s44, %d" % (ZERO_BYTES // 1024))
    a("s_cbranch_scc0 K1_PREP_NZ")
    a("s_lshl_b32 s45, s44, 10")
    a("s_add_u32 s45, s45, 0x%x" % KV_OFF)
    a("buffer_store_dwordx4 v[4:7], v8, s[36:39], s45 offen sc0 sc1")
    a("s_waitcnt vmcnt(0)")
    a.label("K1_PREP_NZ")
    a("v_mov_b32 v9, 0")
    a("v_mov_b32 v10, 1")
    a("s_mov_b64 exec, 1")
    a("buffer_atomic_add v10, v9, s[52:55], 0 offen sc1")
    a("s_mov_b64 exec, -1")
    a("v_lshrrev_b32 v2, 3, v1")
    a("v_mul_u32_u24 v2, 1280, v2")
    a("v_and_b32 v3, 7, v1")
    a("v_lshl_add_u32 v10, v3, 4, v2")
    for i in range(1, 4): a("v_add_u32 v%d, %d, v10" % (10 + i, i * 8 * 1280))
    a("v_lshrrev_b32 v2, 4, v1")
    a("v_and_b32 v3, 15, v1")
    a("v_lshrrev_b32 v3, 2, v3")
    a("v_lshl_add_u32 v2, v2, 2, v3")
    a("v_lshlrev_b32 v2, 7, v2")
    a("v_and_b32 v3, 3, v1")
    a("v_lshl_add_u32 v14, v3, 3, v2")
    a("s_mul_i32 s46, s26, 12288")
    a("v_add_u32 v14, s46, v14")
    def prep_batch(tasks, lbl):
        skip = []
        for n, (sr, total, nks, rnd, dst) in enumerate(tasks):
            a("s_add_u32 s%d, s44, %d" % (64 + n, 128 * rnd))
            a("s_cmp_lt_u32 s%d, %d" % (64 + n, total))
            a("s_cselect_b32 s%d, s%d, 0" % (64 + n, 64 + n))
            a("s_cselect_b32 s%d, 1, 0" % (80 + n))
            a("s_mul_hi_u32 s%d, s%d, %d" % (68 + n, 64 + n, (1 << 32) // 10 + 1))
            a("s_mul_i32 s72, s%d, 10" % (68 + n))
            a("s_sub_u32 s%d, s%d, s72" % (64 + n, 64 + n))
            a("s_mul_i32 s72, s%d, %d" % (68 + n, 32 * 1280))
            a("s_lshl_b32 s73, s%d, 7" % (64 + n))
            a("s_add_u32 s72, s72, s73")
            for i in range(4):
                a("s_add_u32 m0, s46, %d" % (n * 4096 + i * 1024))
                a("s_nop 0")
                a("buffer_load_dwordx4 v%d, s[%d:%d], s72 offen lds" % (10 + i, sr, sr + 3))
        for n, (sr, total, nks, rnd, dst) in enumerate(tasks):
            a("s_waitcnt vmcnt(%d)" % (4 * (len(tasks) - 1 - n) + 4 * n))
            for j in range(4):
                for h in range(2):
                    r = 16 + j * 4 + h * 2
                    a("ds_read_b64_tr_b16 v[%d:%d], v14 offset:%d" % (r, r + 1, n * 4096 + h * 2048 + j * 32))
            a("s_lshl_b32 s72, s%d, 2" % (64 + n))
            a("s_mul_i32 s72, s72, %d" % nks)
            a("s_add_u32 s72, s72, s%d" % (68 + n))
            a("s_lshl_b32 s72, s72, 10")
            a("s_add_u32 s72, s72, 0x%x" % dst)
            a("s_cmp_eq_u32 s%d, 1" % (80 + n))
            a("s_cselect_b32 s72, s72, 0x%x" % JUNK_OFF)
            a("s_waitcnt lgkmcnt(0)")
            for j in range(4):
                a("buffer_store_dwordx4 v[%d:%d], v8, s[36:39], s72 offen" % (16 + j * 4, 16 + j * 4 + 3))
                if j < 3: a("s_add_u32 s72, s72, %d" % (nks * 1024))
            a("s_nop 1")
        a("s_waitcnt vmcnt(0)")
    prep_batch([(56, 540, 54, 0, BF_OFF), (56, 540, 54, 1, BF_OFF), (56, 540, 54, 2, BF_OFF)], "b0")
    prep_batch([(56, 540, 54, 3, BF_OFF), (56, 540, 54, 4, BF_OFF), (60, 200, 20, 0, WOF_OFF)], "b1")
    prep_batch([(60, 200, 20, 1, WOF_OFF)], "b2")
    stamp_flush(a, 40, 41, 2, 26, 8)
    a.label("K1_END")
    a("s_endpgm")
    a.end_kernel(name, 256, 96)

K2_ATT = 20480
K2_EX  = 4 * K2_ATT
K2_LDS = K2_EX + 61440

def gen_k2(a, name, code_bytes):
    a.begin_kernel(name)
    a("s_cmp_ge_u32 s2, 256")
    a("s_cbranch_scc1 K2_END")
    a("s_load_dwordx2 s[20:21], s[0:1], 64")
    a("s_load_dwordx2 s[24:25], s[0:1], 80")
    a("v_lshrrev_b32 v2, 6, v0")
    a("v_and_b32 v1, 63, v0")
    a("v_readfirstlane_b32 s26, v2")
    stamp(a, 0, 15)
    a("s_and_b32 s40, s2, 7")
    a("s_lshr_b32 s41, s2, 3")
    a("s_and_b32 s42, s40, 3")
    a("s_lshl_b32 s42, s42, 3")
    a("s_and_b32 s43, s41, 7")
    a("s_add_u32 s42, s42, s43")
    a("s_lshr_b32 s43, s40, 2")
    a("s_lshl_b32 s43, s43, 2")
    a("s_lshr_b32 s44, s41, 3")
    a("s_add_u32 s43, s43, s44")
    a("v_lshlrev_b32 v2, 4, v1")
    a("v_lshlrev_b32 v3, 2, v1")
    a("v_and_b32 v4, 15, v1")
    a("v_lshrrev_b32 v5, 4, v1")
    a("s_lshl_b32 s45, s42, 2")
    a("s_mul_i32 s46, s43, 5")
    a("s_waitcnt lgkmcnt(0)")
    srd(a, 36, 24, 25, WS_SIZE)
    srd(a, 28, 20, 21, S * D * 2)
    a("s_lshl_b32 s47, s45, 6")
    a("s_add_u32 s47, s47, 0x%x" % G_OFF)
    a("v_lshlrev_b32 v6, 2, v4")
    a("s_cmp_ge_u32 s26, 4")
    a("s_cbranch_scc1 K2_ATT")

    code_prefetch(a, name, "K2_END", code_bytes, 7, 8, 90, 26)
    ACC = 16; BUF = 96; GV = 240
    for rt in range(4):
        a("buffer_load_dword v%d, v6, s[36:39], s47 offen offset:%d" % (GV + rt, rt * 64))
    a("s_mul_i32 s48, s26, 14")
    a("s_cmp_ge_u32 s26, 2")
    a("s_cselect_b32 s49, 1, 0")
    a("s_sub_u32 s48, s48, s49")
    a("s_cmp_eq_u32 s26, 3")
    a("s_cselect_b32 s49, 1, 0")
    a("s_sub_u32 s48, s48, s49")
    for rt in range(4):
        a("s_add_u32 s50, s45, %d" % rt)
        a("s_mul_i32 s50, s50, 74")
        a("s_add_u32 s50, s50, s48")
        a("s_lshl_b32 s%d, s50, 10" % (52 + rt))
        if AF_OFF: a("s_add_u32 s%d, s%d, 0x%x" % (52 + rt, 52 + rt, AF_OFF))
    for nt in range(5):
        a("s_add_u32 s50, s46, %d" % nt)
        a("s_mul_i32 s50, s50, 54")
        a("s_add_u32 s50, s50, s48")
        a("s_lshl_b32 s50, s50, 10")
        a("s_add_u32 s%d, s50, 0x%x" % (56 + nt, BF_OFF))
    def loads(slot):
        b = BUF + (slot % 4) * 36
        out = []
        for nt in range(5):
            out.append("buffer_load_dwordx4 v[%d:%d], v2, s[36:39], s%d offen offset:%d" % (b + 16 + nt * 4, b + 16 + nt * 4 + 3, 56 + nt, (slot % 4) * 1024))
        for rt in range(4):
            out.append("buffer_load_dwordx4 v[%d:%d], v2, s[36:39], s%d offen offset:%d" % (b + rt * 4, b + rt * 4 + 3, 52 + rt, (slot % 4) * 1024))
        return out
    def adv():
        for x in range(9): a("s_add_u32 s%d, s%d, 4096" % (52 + x, 52 + x))
    a("s_cmp_ge_u32 s26, 2")
    a("s_cbranch_scc1 K2_M_SK0")
    for t in loads(0): a(t)
    a.label("K2_M_SK0")
    for sl in (1, 2, 3):
        for t in loads(sl): a(t)
    adv()
    for r in range(ACC, ACC + 80): a("v_mov_b32 v%d, 0" % r)
    stamp(a, 2, 15)
    for sl in range(14):
        inflight_after = min(3, 13 - sl)
        a("s_waitcnt vmcnt(%d)" % (9 * inflight_after))
        if sl == 0:
            stamp(a, 1, 15)
            a("s_cmp_ge_u32 s26, 2")
            a("s_cbranch_scc1 K2_M_SK1")
        b = BUF + (sl % 4) * 36
        nxt = loads(sl + 4) if sl + 4 <= 13 else []
        for nt in range(5):
            for rt in range(4):
                c = ACC + (rt * 5 + nt) * 4
                a("v_mfma_f32_16x16x32_bf16 v[%d:%d], v[%d:%d], v[%d:%d], v[%d:%d]" % (c, c + 3, b + 16 + nt * 4, b + 19 + nt * 4, b + rt * 4, b + rt * 4 + 3, c, c + 3))
            if nxt and sl != 0: a(nxt.pop(0))
        if sl == 0:
            a.label("K2_M_SK1")
        for t in nxt: a(t)
        if (sl + 4) % 4 == 3 and sl + 4 <= 13: adv()
    stamp(a, 3, 15)
    a("s_barrier")
    a("s_mul_i32 s50, s26, %d" % K2_ATT)
    a("v_add_u32 v7, s50, v2")
    T = BUF
    for ti in range(20):
        a("ds_read_b128 v[%d:%d], v7 offset:%d" % (T + ti * 4, T + ti * 4 + 3, ti * 1024))
    for rt in range(4):
        a("v_sub_f32 v%d, 1.0, v%d" % (244 + 2 * rt, GV + rt))
        a("v_sub_f32 v%d, 1.0, v%d" % (245 + 2 * rt, GV + rt))
    for ti in range(20):
        rt = ti // 5
        if ti % 4 == 0: a("s_waitcnt lgkmcnt(%d)" % max(0, min(15, 20 - ti - 4)))
        c = ACC + ti * 4
        for e in (0, 2):
            a("v_pk_fma_f32 v[%d:%d], v[%d:%d], v[%d:%d], v[%d:%d]" % (c + e, c + e + 1, c + e, c + e + 1, 244 + 2 * rt, 245 + 2 * rt, T + ti * 4 + e, T + ti * 4 + e + 1))
    a("v_add_u32 v7, %d, v2" % K2_EX)
    for w in range(4):
        a("s_cmp_eq_u32 s26, %d" % w)
        a("s_cbranch_scc0 K2_X%d" % w)
        for rt in range(4):
            if rt == w: continue
            idx = w if w < rt else w - 1
            for nt in range(5):
                c = ACC + (rt * 5 + nt) * 4
                a("ds_write_b128 v7, v[%d:%d] offset:%d" % (c, c + 3, (rt * 3 + idx) * 5120 + nt * 1024))
        for x in range(20):
            a("v_mov_b32 v%d, v%d" % (T + 60 + x, ACC + w * 20 + x))
        a("s_branch K2_XD")
        a.label("K2_X%d" % w)
    a.label("K2_XD")
    a("s_waitcnt lgkmcnt(0)")
    a("s_barrier")
    a("s_mul_i32 s50, s26, 15360")
    a("v_add_u32 v7, s50, v7")
    for x in range(15):
        a("ds_read_b128 v[%d:%d], v7 offset:%d" % (T + x * 4, T + x * 4 + 3, x * 1024))
    a("s_add_u32 s50, s45, s26")
    a("s_mul_i32 s50, s50, %d" % (16 * 1280))
    a("s_mul_i32 s51, s46, 32")
    a("s_add_u32 s50, s50, s51")
    a("v_mul_u32_u24 v8, 1280, v4")
    a("v_lshl_add_u32 v8, v5, 3, v8")
    O = T + 60
    for idx in range(3):
        a("s_waitcnt lgkmcnt(%d)" % (10 - 5 * idx))
        for x in range(0, 20, 2):
            a("v_pk_add_f32 v[%d:%d], v[%d:%d], v[%d:%d]" % (O + x, O + x + 1, O + x, O + x + 1, T + idx * 20 + x, T + idx * 20 + x + 1))
    for nt in range(5):
        a("v_cvt_pk_bf16_f32 v%d, v%d, v%d" % (ACC + 2 * nt, O + 4 * nt, O + 4 * nt + 1))
        a("v_cvt_pk_bf16_f32 v%d, v%d, v%d" % (ACC + 2 * nt + 1, O + 4 * nt + 2, O + 4 * nt + 3))
        a("buffer_store_dwordx2 v[%d:%d], v8, s[28:31], s50 offen offset:%d" % (ACC + 2 * nt, ACC + 2 * nt + 1, nt * 32))
    stamp_flush(a, 15, 14, 2, 26, 8)
    a("s_endpgm")

    a.label("K2_ATT")
    a("s_sub_u32 s27, s26, 4")
    RAW = 16; KVA = 120; WO = [192, 212]; DT = 232
    MF = 16
    a("s_mul_i32 s48, s27, 640")
    a("s_add_u32 s48, s48, 0x%x" % Z_OFF)
    a("v_lshlrev_b32 v7, 4, v5")
    for sx in range(5):
        for ab in range(2):
            r = KVA + (sx * 2 + ab) * 4
            a("buffer_load_dwordx4 v[%d:%d], v7, s[36:39], s48 offen offset:%d" % (r, r + 3, sx * 128 + ab * 64))
    a("s_mul_i32 s49, s27, %d" % (26 * 1024))
    a("s_add_u32 s49, s49, 0x%x" % KV_OFF)
    for ti in range(26):
        for r in range(4):
            a("buffer_load_dword v%d, v3, s[36:39], s49 offen offset:%d" % (RAW + ti * 4 + r, (ti % 4) * 1024 + r * 256))
        if ti % 4 == 3: a("s_add_u32 s49, s49, 4096")
    a("s_mul_i32 s50, s46, 20")
    a("s_mul_i32 s51, s27, 5")
    a("s_add_u32 s50, s50, s51")
    a("s_lshl_b32 s50, s50, 10")
    a("s_add_u32 s50, s50, 0x%x" % WOF_OFF)
    def wo_loads(nt):
        out = []
        out.append("s_add_u32 s51, s50, %d" % (nt * 20480))
        for p in range(4):
            r = WO[nt % 2] + p * 4
            out.append("buffer_load_dwordx4 v[%d:%d], v2, s[36:39], s51 offen offset:%d" % (r, r + 3, p * 1024))
        out.append("s_add_u32 s51, s51, 4096")
        r = WO[nt % 2] + 16
        out.append("buffer_load_dwordx4 v[%d:%d], v2, s[36:39], s51 offen" % (r, r + 3))
        return out
    for t in wo_loads(0) + wo_loads(1): a(t)
    a("s_mul_i32 s52, s27, %d" % K2_ATT)
    a("s_mul_i32 s53, s45, 74")
    a("s_mul_i32 s54, s27, 5")
    a("s_add_u32 s53, s53, s54")
    a("s_add_u32 s53, s53, 54")
    a("s_lshl_b32 s53, s53, 10")
    if AF_OFF: a("s_add_u32 s53, s53, 0x%x" % AF_OFF)
    for rt in range(4):
        for sx in range(5):
            a("s_add_u32 s54, s53, %d" % ((rt * 74 + sx) * 1024))
            a("s_add_u32 m0, s52, %d" % ((rt * 5 + sx) * 1024))
            a("s_nop 0")
            a("buffer_load_dwordx4 v2, s[36:39], s54 offen lds")
    stamp(a, 2, 15)
    a("s_mul_i32 s55, s27, 7168")
    a("s_add_u32 s55, s55, %d" % K2_EX)
    a("v_add_u32 v8, s55, v2")
    a("s_waitcnt vmcnt(63)")
    way = 104 + 10 + 20
    a("s_waitcnt vmcnt(%d)" % min(63, way))
    for sx in range(5):
        r0 = KVA + sx * 8
        o = 160 + sx * 4
        a("v_cvt_pk_bf16_f32 v%d, v%d, v%d" % (o, r0, r0 + 1))
        a("v_cvt_pk_bf16_f32 v%d, v%d, v%d" % (o + 1, r0 + 2, r0 + 3))
        a("v_cvt_pk_bf16_f32 v%d, v%d, v%d" % (o + 2, r0 + 4, r0 + 5))
        a("v_cvt_pk_bf16_f32 v%d, v%d, v%d" % (o + 3, r0 + 6, r0 + 7))
        for ab in range(2):
            m = 0
            for l in range(64):
                if (32 * sx + 16 * ab + 4 * (l >> 4)) // 20 == (l & 15): m |= 1 << l
            a("s_mov_b32 s56, 0x%x" % (m & 0xffffffff))
            a("s_mov_b32 s57, 0x%x" % (m >> 32))
            a("v_cndmask_b32 v%d, 0, v%d, s[56:57]" % (o + 2 * ab, o + 2 * ab))
            a("v_cndmask_b32 v%d, 0, v%d, s[56:57]" % (o + 2 * ab + 1, o + 2 * ab + 1))
        a("ds_write_b128 v8, v[%d:%d] offset:%d" % (o, o + 3, sx * 1024))
    a("s_waitcnt vmcnt(30)")
    def ktile(DTl, ET):
        par = DTl // 5
        if ET // 5 != par: return None
        key = (DTl % 5, ET % 5)
        if key not in TRI: return None
        return RAW + (par * 13 + TRI.index(key)) * 4
    frags = []
    for DTl in range(10):
        for p in range(5):
            if ktile(DTl, 2 * p) is not None or ktile(DTl, 2 * p + 1) is not None:
                frags.append((DTl, p))
    assert len(frags) == 18
    a("s_waitcnt lgkmcnt(0)")
    for fi, (DTl, p) in enumerate(frags):
        o = KVA + fi * 4
        for half in range(2):
            t = ktile(DTl, 2 * p + half)
            if t is None:
                a("v_mov_b32 v%d, 0" % (o + 2 * half)); a("v_mov_b32 v%d, 0" % (o + 2 * half + 1))
            else:
                a("v_cvt_pk_bf16_f32 v%d, v%d, v%d" % (o + 2 * half, t, t + 1))
                a("v_cvt_pk_bf16_f32 v%d, v%d, v%d" % (o + 2 * half + 1, t + 2, t + 3))
    stamp(a, 1, 15)
    for rt in range(4):
        a("buffer_load_dword v%d, v6, s[36:39], s47 offen offset:%d" % (116 + rt, rt * 64))
    vmq = ["WO0"] * 5 + ["WO1"] * 5 + ["PQ"] * 20 + ["G"] * 4
    def vm_need(tag):
        nonlocal vmq
        idx = [i for i, t in enumerate(vmq) if t == tag]
        if not idx: return
        last = max(idx)
        a("s_waitcnt vmcnt(%d)" % (len(vmq) - 1 - last))
        vmq = vmq[last + 1:]
    dset = 0
    pend = []
    def conv(item):
        d, nt, sx = item
        o = MF + (sx * 5 + nt) * 4
        a("v_cvt_pk_bf16_f32 v%d, v%d, v%d" % (o, d, d + 1))
        a("v_cvt_pk_bf16_f32 v%d, v%d, v%d" % (o + 1, d + 2, d + 3))
        a("v_cvt_pk_bf16_f32 v%d, v%d, v%d" % (o + 2, d + 4, d + 5))
        a("v_cvt_pk_bf16_f32 v%d, v%d, v%d" % (o + 3, d + 6, d + 7))
    for nt in range(5):
        vm_need("WO%d" % nt)
        for sx in range(5):
            d = DT + (dset % 3) * 8
            dset += 1
            for half in range(2):
                DTl = 2 * sx + half
                first = True
                for fi, (D_, p) in enumerate(frags):
                    if D_ != DTl: continue
                    A_ = KVA + fi * 4; B_ = WO[nt % 2] + p * 4; c = d + half * 4
                    a("v_mfma_f32_16x16x32_bf16 v[%d:%d], v[%d:%d], v[%d:%d], %s" % (c, c + 3, A_, A_ + 3, B_, B_ + 3, "0" if first else "v[%d:%d]" % (c, c + 3)))
                    first = False
            pend.append((d, nt, sx))
            if len(pend) == 3:
                a("s_nop 1")
                conv(pend.pop(0))
        if nt + 2 <= 4:
            for t in wo_loads(nt + 2): a(t)
            vmq += ["WO%d" % (nt + 2)] * 5
    a("s_nop 7")
    while pend:
        conv(pend.pop(0))
    stamp(a, 3, 15)
    ZF = 200; PQA = 120; DEN = 240
    a("v_add_u32 v9, s52, v2")
    for sx in range(5):
        a("ds_read_b128 v[%d:%d], v8 offset:%d" % (ZF + sx * 4, ZF + sx * 4 + 3, sx * 1024))
    vm_need("PQ")
    for rt in range(4):
        for sx in range(5):
            r = PQA + (rt * 5 + sx) * 4
            a("ds_read_b128 v[%d:%d], v9 offset:%d" % (r, r + 3, (rt * 5 + sx) * 1024))
    for rt in range(4):
        a("s_waitcnt lgkmcnt(%d)" % (15 - 5 * rt))
        for sx in range(5):
            r = PQA + (rt * 5 + sx) * 4; c = DEN + rt * 4
            a("v_mfma_f32_16x16x32_bf16 v[%d:%d], v[%d:%d], v[%d:%d], %s" % (c, c + 3, ZF + sx * 4, ZF + sx * 4 + 3, r, r + 3, "0" if sx == 0 else "v[%d:%d]" % (c, c + 3)))
    vm_need("G")
    a("s_mov_b32 s56, 0x%x" % EPS6)
    a("v_lshlrev_b32 v10, 5, v4")
    a("v_add_u32 v10, s55, v10")
    a("v_add_u32 v10, 5120, v10")
    a("v_lshl_add_u32 v11, v5, 4, v10")
    a("s_nop 4")
    for rt in range(4):
        for r in range(4): a("v_add_f32 v%d, s56, v%d" % (DEN + rt * 4 + r, DEN + rt * 4 + r))
    for rt in range(4):
        for r in range(4): a("v_rcp_f32 v%d, v%d" % (DEN + rt * 4 + r, DEN + rt * 4 + r))
    a("s_nop 0")
    for rt in range(4):
        for r in range(4): a("v_mul_f32 v%d, v%d, v%d" % (DEN + rt * 4 + r, 116 + rt, DEN + rt * 4 + r))
    a("s_mov_b32 exec_lo, -1")
    a("s_mov_b32 exec_hi, 0")
    for rt in range(4):
        a("ds_write_b128 v11, v[%d:%d] offset:%d" % (DEN + rt * 4, DEN + rt * 4 + 3, rt * 512))
    a("s_mov_b64 exec, -1")
    for gb in (1, 2, 3):
        a("v_cmp_le_u32 vcc, %d, v5" % gb)
        a("s_nop 1")
        a("v_cndmask_b32 v%d, 0, 4, vcc" % (10 + gb))
        a("v_add_u32 v%d, v10, v%d" % (10 + gb, 10 + gb))
    a("s_waitcnt lgkmcnt(0)")
    ACC = 120; PQB = [200, 220]; SC = 240
    def sc_reads(rt):
        out = []
        for sx in range(5):
            for ab in range(2):
                hs = [(32 * sx + 16 * ab + 4 * g) // 20 for g in range(4)]
                h0 = hs[0]
                gb = next((g for g in range(4) if hs[g] > h0), None)
                areg = 10 if gb is None else 10 + gb
                out.append("ds_read_b32 v%d, v%d offset:%d" % (SC + sx * 2 + ab, areg, rt * 512 + h0 * 4))
        return out
    def pq_reads(rt):
        b = PQB[rt % 2]
        return ["ds_read_b128 v[%d:%d], v9 offset:%d" % (b + sx * 4, b + sx * 4 + 3, (rt * 5 + sx) * 1024) for sx in range(5)]
    def scale_ops(rt):
        b = PQB[rt % 2]
        out = []
        for sx in range(5):
            for x in range(4):
                r = b + sx * 4 + x; sc = SC + sx * 2 + (x // 2)
                t = 250 + (x % 2) * 2
                out.append("v_lshlrev_b32 v%d, 16, v%d" % (t, r))
                out.append("v_and_b32 v%d, 0xffff0000, v%d" % (t + 1, r))
                out.append("v_mul_f32 v%d, v%d, v%d" % (t, sc, t))
                out.append("v_mul_f32 v%d, v%d, v%d" % (t + 1, sc, t + 1))
                out.append("v_cvt_pk_bf16_f32 v%d, v%d, v%d" % (r, t, t + 1))
        return out
    def main_mfmas(rt):
        b = PQB[rt % 2]
        out = []
        for sx in range(5):
            for nt in range(5):
                c = ACC + (rt * 5 + nt) * 4; m = MF + (sx * 5 + nt) * 4
                out.append("v_mfma_f32_16x16x32_bf16 v[%d:%d], v[%d:%d], v[%d:%d], %s" % (c, c + 3, m, m + 3, b + sx * 4, b + sx * 4 + 3, "0" if sx == 0 else "v[%d:%d]" % (c, c + 3)))
        return out
    for t in pq_reads(0) + sc_reads(0): a(t)
    a("s_waitcnt lgkmcnt(0)")
    for t in scale_ops(0): a(t)
    for rt in range(4):
        mf = main_mfmas(rt)
        if rt < 3:
            for t in pq_reads(rt + 1) + sc_reads(rt + 1): a(t)
            a("s_nop 1")
            for t in mf[:5]: a(t)
            a("s_waitcnt lgkmcnt(0)")
            so = scale_ops(rt + 1)
            rest = mf[5:]
            per = len(so) // len(rest)
            for k_, m_ in enumerate(rest):
                a(m_)
                for t in so[k_ * per:(k_ + 1) * per]: a(t)
            for t in so[len(rest) * per:]: a(t)
        else:
            a("s_nop 1")
            for t in mf: a(t)
    a("s_nop 7")
    for ti in range(20):
        c = ACC + ti * 4
        a("ds_write_b128 v9, v[%d:%d] offset:%d" % (c, c + 3, ti * 1024))
    a("s_waitcnt lgkmcnt(0)")
    stamp(a, 4, 15)
    a("s_barrier")
    stamp_flush(a, 15, 14, 2, 26, 8)
    a.label("K2_END")
    a("s_endpgm")
    a.end_kernel(name, 256, 96)

HDR = """; Kernarg layout for this problem (88 bytes, ptrs only, base s[0:1]):
;   offset   0: d_in[0] A_x  shape=(1, 2048, 640) dtype=bfloat16 strides=(2621440, 1280, 2) contiguous=True
;   offset   8: d_in[1] A_wqkv  shape=(640, 1920) dtype=bfloat16 strides=(3840, 2) contiguous=True
;   offset  16: d_in[2] A_wo  shape=(640, 640) dtype=bfloat16 strides=(1280, 2) contiguous=True
;   offset  24: d_in[3] B_x  shape=(1, 2048, 640) dtype=bfloat16 strides=(2621440, 1280, 2) contiguous=True
;   offset  32: d_in[4] B_w_gate  shape=(640, 1728) dtype=bfloat16 strides=(3456, 2) contiguous=True
;   offset  40: d_in[5] B_w_up  shape=(640, 1728) dtype=bfloat16 strides=(3456, 2) contiguous=True
;   offset  48: d_in[6] B_w_down  shape=(1728, 640) dtype=bfloat16 strides=(1280, 2) contiguous=True
;   offset  56: d_in[7] gate_w  shape=(640,) dtype=bfloat16 strides=(2,) contiguous=True
;   k1: x @ [wqkv | w_gate | w_up] with fused epilogues (phi(q), h = sigmoid(g)*u, kv/z partial sums via atomics, gate)
;   k2: [h | phi(q)/den] @ [w_down ; blockdiag(kv) @ wo] with the gated mix
"""
if __name__ == "__main__":
    if len(sys.argv) > 1 and sys.argv[1] == "stamp": STAMP = True
    a = Asm()
    gen_k1(a, "k1_kernel", 32768)
    gen_k2(a, "k2_kernel", 32768)
    hdr = HDR + "; @launch kernel=k1_kernel grid=(256,1,1) block=(512,1,1) lds=%d\n" % K1_LDS
    hdr += "; @launch kernel=k2_kernel grid=(256,1,1) block=(512,1,1) lds=%d" % K2_LDS
    out = sys.argv[2] if len(sys.argv) > 2 else "k12.s"
    open(out, "w").write(a.text(hdr))
```

```python
import sys
from asmlib import Asm

S, D, F = 2048, 640, 1728
AF_OFF  = 0x0000000
BF_OFF  = 0x0A00000
WOF_OFF = 0x0D00000
KV_OFF  = 0x0E00000
Z_OFF   = KV_OFF + 4 * 26 * 1024
ZERO_BYTES = 108 * 1024
G_OFF   = 0x0E40000
JUNK_OFF = 0x0F00000
WS_SIZE = 0x10000000
LOG2E = 0x3fb8aa3b
NLOG2E = 0xbfb8aa3b
EPS6 = 0x358637bd

def head(c): return c // 20

class LdsQ:
    def __init__(self, a):
        self.a = a; self.q = []
    def issue(self, tag, text):
        self.a(text); self.q.append(tag)
    def need(self, tags):
        idx = [i for i, t in enumerate(self.q) if t in tags]
        if not idx: return
        last = max(idx)
        n = len(self.q) - 1 - last
        assert n <= 15
        self.a("s_waitcnt lgkmcnt(%d)" % n)
        self.q = self.q[last + 1:]
    def drain(self):
        self.a("s_waitcnt lgkmcnt(0)"); self.q = []

B_SLOT, A_SLOT = 24576, 16384
A_BASE = 4 * B_SLOT
GW_BASE = A_BASE + 3 * A_SLOT
K1_LDS = GW_BASE + 2048

TRI = [(dt, et) for dt in range(5) for et in range(5) if abs(dt - et) <= 1 and
       any(head(16 * dt + x) == head(16 * et + y) for x in range(16) for y in range(16))]
assert len(TRI) == 13

def kv_tile_index(par, dt, et):
    return par * 13 + TRI.index((dt, et))

def srd(a, d, lo, hi, size):
    a("s_mov_b32 s%d, s%d" % (d, lo))
    a("s_mov_b32 s%d, s%d" % (d + 1, hi))
    a("s_mov_b32 s%d, 0x%x" % (d + 2, size))
    a("s_mov_b32 s%d, 0x00020000" % (d + 3))

def code_prefetch(a, label_start, label_end, nbytes, vtmp, vdst, stmp, swave):
    a("s_getpc_b64 s[%d:%d]" % (stmp, stmp + 1))
    here = a.newlabel("PC")
    a.label(here)
    a("s_sub_u32 s%d, s%d, %s-%s" % (stmp, stmp, here, label_start))
    a("s_subb_u32 s%d, s%d, 0" % (stmp + 1, stmp + 1))
    a("v_and_b32 v%d, 63, v0" % vtmp)
    a("v_lshlrev_b32 v%d, 7, v%d" % (vtmp, vtmp))
    a("s_lshl_b32 s%d, s%d, 13" % (stmp + 2, swave))
    a("v_add_u32 v%d, s%d, v%d" % (vtmp, stmp + 2, vtmp))
    n = (nbytes + 32767) // 32768
    for i in range(n):
        a("v_min_u32 v%d, %s-%s-4, v%d" % (vdst + 1, label_end, label_start, vtmp))
        a("global_load_dword v%d, v%d, s[%d:%d]" % (vdst, vdst + 1, stmp, stmp + 1))
        if i + 1 < n:
            a("v_add_u32 v%d, 32768, v%d" % (vtmp, vtmp))

TS_OFF = 0x0F80000
STAMP = False
def stamp(a, idx, v):
    if not STAMP: return
    a("s_memrealtime s[94:95]")
    a("s_waitcnt lgkmcnt(0)")
    a("v_writelane_b32 v%d, s94, %d" % (v, idx))
def stampc(a, idx, v):
    if not STAMP: return
    a("s_memtime s[94:95]")
    a("s_waitcnt lgkmcnt(0)")
    a("v_writelane_b32 v%d, s94, %d" % (v, idx))
TS_CUR = [0]
def stamp_flush(a, v, vt, swg, swave, nw, wsrd=36):
    if not STAMP: return
    a("s_waitcnt vmcnt(0)")
    stamp(a, 7, v)
    a("s_mul_i32 s94, s%d, %d" % (swg, nw))
    a("s_add_u32 s94, s94, s%d" % swave)
    a("s_lshl_b32 s94, s94, 7")
    a("s_add_u32 s94, s94, 0x%x" % (TS_OFF + TS_CUR[0]))
    a("s_mov_b32 exec_lo, -1")
    a("s_mov_b32 exec_hi, 0")
    a("v_and_b32 v%d, 63, v0" % vt)
    a("v_lshlrev_b32 v%d, 2, v%d" % (vt, vt))
    a("buffer_store_dword v%d, v%d, s[%d:%d], s94 offen" % (v, vt, wsrd, wsrd + 3))
    a("s_waitcnt vmcnt(0)")

PF_FLAGS = ""
L2PF = True
PF_DIST = 3
K2_NOATT = False
K2_NOMLP = False
ATT_PRIO = 3
ST_FLAGS = "sc0 sc1"
RAMP = True
L2PF2 = False
def gen_k1(a, name, code_bytes):
    a.begin_kernel(name)
    a("s_cmp_ge_u32 s2, 256")
    a("s_cbranch_scc1 K1_END")
    a("s_load_dwordx16 s[4:19], s[0:1], 0")
    a("s_load_dwordx4 s[20:23], s[0:1], 64")
    a("s_load_dwordx2 s[24:25], s[0:1], 80")
    a("v_lshrrev_b32 v2, 6, v0")
    a("v_and_b32 v1, 63, v0")
    a("v_readfirstlane_b32 s26, v2")
    a("s_and_b32 s40, s2, 7")
    a("s_lshr_b32 s41, s2, 3")
    a("s_and_b32 s42, s40, 1")
    a("s_lshl_b32 s42, s42, 3")
    a("s_and_b32 s43, s41, 7")
    a("s_add_u32 s42, s42, s43")
    a("s_lshr_b32 s43, s40, 1")
    a("s_lshl_b32 s43, s43, 2")
    a("s_lshr_b32 s44, s41, 3")
    a("s_add_u32 s43, s43, s44")
    def srds(sv):
        a("s_waitcnt lgkmcnt(0)")
        stamp(a, 0, sv)
        srd(a, 28, 4, 5, S * D * 2)
        srd(a, 36, 24, 25, WS_SIZE)
        srd(a, 48, 18, 19, D * 2)
        srd(a, 52, 22, 23, 256)
    a("s_cmp_eq_u32 s43, 15")
    a("s_cbranch_scc1 K1_PREP")
    a("s_cmp_lt_u32 s26, 4")
    a("s_cbranch_scc1 K1_COMPUTE")

    a.c("loader waves")
    a("s_sub_u32 s27, s26, 4")
    a("s_lshr_b32 s44, s27, 1")
    a("s_lshl_b32 s47, s27, 5")
    a("v_lshrrev_b32 v2, 3, v1")
    a("v_add_u32 v2, s47, v2")
    a("v_mul_u32_u24 v2, 1280, v2")
    a("v_lshrrev_b32 v3, 4, v1")
    a("v_and_b32 v5, 7, v1")
    a("v_xor_b32 v3, v3, v5")
    a("v_lshlrev_b32 v3, 4, v3")
    a("v_add_u32 v16, v2, v3")
    a("v_xor_b32 v3, 64, v3")
    a("v_add_u32 v17, v2, v3")
    a("v_add_u32 v17, 10240, v17")
    a("v_add_u32 v18, 20480, v16")
    a("v_add_u32 v19, 20480, v17")
    a("s_movk_i32 s45, 3456")
    a("s_mul_i32 s46, s43, 384")
    a("s_cmp_lt_u32 s43, 9")
    a("s_cbranch_scc1 K1_LD_GO")
    a("s_movk_i32 s45, 3840")
    a("s_sub_u32 s46, s43, 9")
    a("s_mul_i32 s46, s46, 320")
    a("s_mul_i32 s47, s44, 1280")
    a("s_add_u32 s46, s46, s47")
    a("s_add_u32 s46, s46, 1280")
    a("s_sub_u32 s47, s43, 13")
    a("s_lshl_b32 s47, s47, 1")
    a("s_add_u32 s47, s47, s44")
    a("s_mul_i32 s47, s47, 320")
    a("s_cmp_lt_u32 s43, 13")
    a("s_cselect_b32 s46, s46, s47")
    a("s_and_b32 s46, s46, 0xffffff80")
    a.label("K1_LD_GO")
    a("s_and_b32 s47, s27, 1")
    a("s_mul_i32 s47, s47, 384")
    a("s_mov_b32 s64, 2731")
    a("s_lshl_b32 s63, s45, 3")
    for c in range(768): assert (c * 2731) >> 16 == c // 24
    for i in range(3):
        a("v_add_u32 v2, s47, v1")
        if i: a("v_add_u32 v2, %d, v2" % (64 * i))
        a("v_mul_u32_u24 v3, s64, v2")
        a("v_lshrrev_b32 v3, 16, v3")
        a("v_mul_u32_u24 v5, 24, v3")
        a("v_sub_u32 v5, v2, v5")
        a("v_bfe_u32 v6, v3, 1, 1")
        a("v_lshrrev_b32 v7, 2, v3")
        a("v_and_or_b32 v6, v7, 2, v6")
        a("v_lshrrev_b32 v7, 1, v5")
        a("v_xor_b32 v7, v7, v6")
        a("v_lshlrev_b32 v7, 5, v7")
        a("v_and_b32 v5, 1, v5")
        a("v_lshl_add_u32 v7, v5, 4, v7")
        a("v_mul_lo_u32 v3, v3, s45")
        a("v_add_u32 v%d, v3, v7" % (10 + i))
        a("v_xor_b32 v7, 64, v7")
        a("v_add3_u32 v%d, v3, v7, s63" % (13 + i))
    a("s_mul_i32 s65, s42, %d" % (128 * 1280))
    a("s_lshl_b32 s66, s45, 5")
    a("s_mul_i32 s67, s27, 6144")
    a("s_lshl_b32 s68, s27, 12")
    a("s_add_u32 s68, s68, %d" % A_BASE)
    srds(20)
    srd(a, 32, 6, 7, D * 3 * D * 2)
    a("s_cmp_lt_u32 s43, 9")
    a("s_cbranch_scc0 K1_LD_GO2")
    a("s_cmp_eq_u32 s44, 0")
    a("s_cselect_b32 s32, s12, s14")
    a("s_cselect_b32 s33, s13, s15")
    a("s_mov_b32 s34, 0x%x" % (D * F * 2))
    a.label("K1_LD_GO2")
    issued = []
    def issueB(t):
        a("s_mul_i32 s69, s66, %d" % t)
        a("s_add_u32 s69, s69, s46")
        for i in range(6):
            a("s_add_u32 m0, s67, %d" % ((t % 4) * B_SLOT + i * 1024))
            a("s_nop 0")
            a("buffer_load_dwordx4 v%d, s[32:35], s69 offen lds" % (10 + i))
            issued.append(("B", t))
    def issueA(T):
        a("s_add_u32 s70, s65, %d" % (T * 128))
        for i in range(4):
            a("s_add_u32 m0, s68, %d" % ((T % 3) * A_SLOT + i * 1024))
            a("s_nop 0")
            a("buffer_load_dwordx4 v%d, s[28:31], s70 offen lds" % (16 + i))
            issued.append(("A", T))
    stamp(a, 2, 20)
    a("v_lshlrev_b32 v2, 4, v1")
    a("s_mov_b32 m0, %d" % GW_BASE)
    a("v_add_u32 v3, 1024, v2")
    a("buffer_load_dwordx4 v2, s[48:51], 0 offen lds")
    a("s_mov_b32 m0, %d" % (GW_BASE + 1024))
    a("s_nop 0")
    a("buffer_load_dwordx4 v3, s[48:51], 0 offen lds")
    issueA(0); issueB(0); issueB(1)
    nextB, nextA = 2, 1
    if not RAMP:
        issueA(1); issueB(2); issueB(3); issueA(2)
        nextB, nextA = 4, 3
    code_prefetch(a, name, "K1_END", code_bytes, 3, 4, 90, 27)
    issued.append(("P", 0))
    stamp(a, 3, 20)
    for t in range(21):
        if t <= 19:
            last = max(i for i, x in enumerate(issued) if x == ("B", t) or x == ("A", t // 2))
            n = len(issued) - 1 - last
            a("s_waitcnt vmcnt(%d)" % n)
        a("s_barrier")
        if t == 0: stamp(a, 1, 20)
        while nextA <= 9 and nextA - 3 <= t // 2 - 1 and nextA <= t // 2 + 2 and (nextA * 2 <= nextB + 1 or nextB > 19):
            issueA(nextA); nextA += 1
        while nextB <= 19 and nextB - 4 <= t - 1:
            issueB(nextB); nextB += 1
            while nextA <= 9 and nextA - 3 <= t // 2 - 1 and nextA * 2 <= nextB:
                issueA(nextA); nextA += 1
    assert nextA == 10 and nextB == 20
    stamp_flush(a, 20, 21, 2, 26, 8)
    a("s_endpgm")

    a.label("K1_COMPUTE")
    a("s_lshr_b32 s44, s26, 1")
    a("s_and_b32 s45, s26, 1")
    a("s_cmp_lt_u32 s43, 9")
    a("s_cbranch_scc0 K1_C_QKV")
    a("s_mul_i32 s46, s45, 6")
    a("s_mov_b32 s47, 0")
    a("s_branch K1_C_GO")
    a.label("K1_C_QKV")
    a("s_cmp_lt_u32 s43, 13")
    a("s_cbranch_scc0 K1_C_Q")
    a("s_sub_u32 s46, s43, 9")
    a("s_and_b32 s46, s46, 1")
    a("s_lshl_b32 s46, s46, 1")
    a("s_mul_i32 s47, s45, 5")
    a("s_add_u32 s46, s46, s47")
    a("s_mov_b32 s47, 0")
    a("s_branch K1_C_GO")
    a.label("K1_C_Q")
    a("s_lshl_b32 s46, s45, 1")
    a("s_mul_i32 s47, s45, 12288")
    a.label("K1_C_GO")
    VA, VB = 2, 4
    a("v_and_b32 v8, 15, v1")
    a("v_lshrrev_b32 v9, 4, v1")
    a("s_lshl_b32 s64, s44, 13")
    a("s_add_u32 s64, s64, %d" % A_BASE)
    a("v_lshrrev_b32 v10, 1, v8")
    a("v_xor_b32 v11, v9, v10")
    a("v_lshlrev_b32 v11, 4, v11")
    a("v_lshl_add_u32 v11, v8, 7, v11")
    a("v_add_u32 v2, s64, v11")
    a("v_xor_b32 v3, 64, v2")
    a("v_lshrrev_b32 v10, 2, v8")
    a("v_lshl_add_u32 v11, v9, 3, v10")
    a("v_mul_u32_u24 v11, 384, v11")
    a("v_and_b32 v12, 3, v1")
    a("v_lshl_add_u32 v11, v12, 3, v11")
    a("v_add_u32 v11, s47, v11")
    a("v_lshrrev_b32 v12, 1, v10")
    a("v_and_b32 v13, 1, v9")
    a("v_lshl_or_b32 v12, v13, 1, v12")
    for jp in range(4):
        a("s_add_u32 s64, s46, %d" % jp)
        a("s_and_b32 s65, s64, 3")
        a("s_lshr_b32 s64, s64, 2")
        a("s_lshl_b32 s64, s64, 7")
        a("v_xor_b32 v13, s65, v12")
        a("v_lshl_add_u32 v13, v13, 5, v11")
        a("v_add_u32 v%d, s64, v13" % (VB + jp))
    def pf_setup():
        a("s_and_b32 s76, s26, 1")
        a("s_movk_i32 s77, 3456")
        a("s_mul_i32 s78, s43, 384")
        srd(a, 32, 6, 7, D * 3 * D * 2)
        a("s_cmp_lt_u32 s43, 9")
        a("s_cbranch_scc0 K1_PF_QKV")
        a("s_cmp_eq_u32 s76, 0")
        a("s_cselect_b32 s32, s12, s14")
        a("s_cselect_b32 s33, s13, s15")
        a("s_mov_b32 s34, 0x%x" % (D * F * 2))
        a("s_branch K1_PF_GO")
        a.label("K1_PF_QKV")
        a("s_movk_i32 s77, 3840")
        a("s_sub_u32 s78, s43, 9")
        a("s_mul_i32 s78, s78, 320")
        a("s_mul_i32 s79, s76, 1280")
        a("s_add_u32 s78, s78, s79")
        a("s_add_u32 s78, s78, 1280")
        a("s_sub_u32 s79, s43, 13")
        a("s_lshl_b32 s79, s79, 1")
        a("s_add_u32 s79, s79, s76")
        a("s_mul_i32 s79, s79, 320")
        a("s_cmp_lt_u32 s43, 13")
        a("s_cselect_b32 s78, s78, s79")
        a("s_and_b32 s78, s78, 0xffffff80")
        a.label("K1_PF_GO")
        a("v_min_u32 v10, 23, v1")
        a("v_mul_u32_u24 v11, 0x5556, v10")
        a("v_lshrrev_b32 v11, 16, v11")
        a("v_mul_u32_u24 v12, 3, v11")
        a("v_sub_u32 v12, v10, v12")
        a("s_and_b32 s80, s41, 7")
        a("s_lshl_b32 s80, s80, 3")
        a("v_add_u32 v11, s80, v11")
        a("v_mul_lo_u32 v11, v11, s77")
        a("v_lshl_add_u32 v12, v12, 7, v11")
        a("s_lshl_b32 s79, s77, 6")
        a("s_cmp_lt_u32 s26, 2")
        a("s_cbranch_scc1 K1_PF_W")
        a("s_lshr_b32 s80, s41, 3")
        a("s_lshl_b32 s80, s80, 5")
        a("s_lshl_b32 s81, s76, 4")
        a("s_add_u32 s80, s80, s81")
        a("v_min_u32 v10, 15, v1")
        a("v_add_u32 v10, s80, v10")
        a("v_mul_u32_u24 v12, 1280, v10")
        a("s_mul_i32 s78, s42, %d" % (128 * 1280))
        a("s_movk_i32 s79, 128")
        a("s_mov_b32 s32, s4")
        a("s_mov_b32 s33, s5")
        a("s_mov_b32 s34, 0x%x" % (S * D * 2))
        a.label("K1_PF_W")
        a("s_lshl_b32 s80, s79, 1")
        a("s_add_u32 s78, s78, s80")
        for _ in range(PF_DIST - 2): pf_issue()
    def pf_issue():
        a("buffer_load_dword v13, v12, s[32:35], s78 offen %s" % PF_FLAGS)
        a("s_add_u32 s78, s78, s79")
    srds(15)
    if L2PF: pf_setup()
    for r in range(64, 256):
        a("v_mov_b32 v%d, 0" % r)
    a("s_mov_b32 s70, 0")
    a("s_mov_b32 s71, 10")
    a("s_mov_b32 s75, 49152")
    a("s_cmp_lt_u32 s43, 9")
    a("s_cbranch_scc1 K1_GU")
    a("s_cmp_lt_u32 s43, 13")
    a("s_cbranch_scc1 K1_KV")
    a("s_branch K1_Q")

    ABUF = [16, 32]
    BR = 48
    ACC = 64

    def mainloop(role):
        q = LdsQ(a)
        if role == "gu":
            frags = [(p, j) for j in range(6) for p in range(2)]
        elif role == "kv":
            frags = [(p, j) for j in range(5) for p in range(2)]
        else:
            frags = [(0, j) for j in range(10)]
        nB = len(frags)
        def accreg(fi, rt): return ACC + (fi * 4 + rt) * 4
        def readB(J, par):
            p, j = frags[J]
            slot = (par * nB + J) % 4
            out = []
            for h in range(2):
                off = (j >> 2) * 128 + h * 1536 + p * 12288 + par * B_SLOT
                r = BR + slot * 4 + h * 2
                out.append((("B", par, J), "ds_read_b64_tr_b16 v[%d:%d], v%d offset:%d" % (r, r + 1, VB + (j & 3), off)))
            return out
        def readA(par):
            out = []
            for rt in range(4):
                r = ABUF[par] + rt * 4
                out.append((("A", par, rt), "ds_read_b128 v[%d:%d], v%d offset:%d" % (r, r + 3, VA + par, rt * 2048)))
            if role == "q":
                out.append((("G", par), "ds_read_b128 v[%d:%d], v14 offset:%d" % (GW[par], GW[par] + 3, 64 * par)))
            return out
        def mfma(par, J, rt):
            slot = (par * nB + J) % 4
            b = BR + slot * 4; x = ABUF[par] + rt * 4; c = accreg(J, rt)
            if role == "kv":
                return "v_mfma_f32_16x16x32_bf16 v[%d:%d], v[%d:%d], v[%d:%d], v[%d:%d]" % (c, c + 3, x, x + 3, b, b + 3, c, c + 3)
            return "v_mfma_f32_16x16x32_bf16 v[%d:%d], v[%d:%d], v[%d:%d], v[%d:%d]" % (c, c + 3, b, b + 3, x, x + 3, c, c + 3)
        GW = [ACC + 176, ACC + 180]
        LOG = ACC + 160
        if role == "q":
            a("v_lshlrev_b32 v14, 4, v9")
            a("v_add_u32 v14, %d, v14" % GW_BASE)
        stamp(a, 2, 15)
        a("s_barrier")
        stamp(a, 1, 15)
        stampc(a, 5, 15)
        for tag, t in readA(0) + readB(0, 0) + readB(1, 0) + readB(2, 0):
            q.issue(tag, t)
        state0 = list(q.q)
        lbl = "K1_LOOP_" + role
        a.label(lbl)
        if STAMP:
            a("s_memrealtime s[94:95]")
            a("s_sub_u32 m0, 18, s71")
            a("s_waitcnt lgkmcnt(0)")
            a("v_writelane_b32 v15, s94, m0")
        if L2PF: pf_issue()
        for par in range(2):
            for J in range(nB):
                reads = []
                pre = []
                if J + 3 <= nB - 1:
                    reads = readB(J + 3, par)
                if J == nB - 2:
                    if role == "q":
                        for rt in range(4):
                            x = ABUF[par] + rt * 4; c = LOG + rt * 4
                            a("v_mfma_f32_16x16x32_bf16 v[%d:%d], v[%d:%d], v[%d:%d], v[%d:%d]" % (c, c + 3, GW[par], GW[par] + 3, x, x + 3, c, c + 3))
                    q.drain()
                    a("s_barrier")
                    if par == 1:
                        for jp in range(4):
                            a("v_add_u32 v%d, s75, v%d" % (VB + jp, VB + jp))
                        a("s_sub_u32 s75, 0, s75")
                        a("s_add_u32 s70, s70, 16384")
                        a("s_cmp_eq_u32 s70, 49152")
                        a("s_cselect_b32 s73, s70, 0")
                        a("s_sub_u32 s70, s70, s73")
                        a("s_sub_u32 s73, 16384, s73")
                        a("v_add_u32 v2, s73, v2")
                        a("v_add_u32 v3, s73, v3")
                        if role == "q": a("v_add_u32 v14, 128, v14")
                    reads = readA(1 - par) + readB(0, 1 - par) + readB(1, 1 - par)
                if J == nB - 1:
                    reads = readB(2, 1 - par)
                q.need([("B", par, J)] + ([("A", par, 0)] if J == 0 else []))
                for rt in range(4):
                    if J == 0 and rt > 0: q.need([("A", par, rt)])
                    a(mfma(par, J, rt))
                    k = (len(reads) + (3 - rt)) // (4 - rt) if reads else 0
                    for _ in range(k):
                        tag, t = reads.pop(0); q.issue(tag, t)
                assert not reads
        a("s_sub_u32 s71, s71, 1")
        a("s_cmp_lg_u32 s71, 0")
        a("s_cbranch_scc1 %s" % lbl)
        assert q.q == state0, (q.q, state0)
        a("s_waitcnt lgkmcnt(0) vmcnt(0)")
        a("s_nop 7")
        stamp(a, 3, 15)
        stampc(a, 6, 15)
        return accreg

    a.label("K1_GU")
    accreg = mainloop("gu")
    a("s_mov_b32 s64, 0x%x" % NLOG2E); a("s_mov_b32 s65, 0x%x" % NLOG2E)
    a("s_mov_b32 s66, 1.0"); a("s_mov_b32 s67, 1.0")
    a("s_lshl_b32 s68, s42, 3")
    a("s_lshl_b32 s69, s44, 2")
    a("s_add_u32 s68, s68, s69")
    a("s_mul_i32 s68, s68, 74")
    a("s_mul_i32 s69, s43, 6")
    a("s_add_u32 s68, s68, s69")
    a("s_mul_i32 s69, s45, 3")
    a("s_add_u32 s68, s68, s69")
    a("s_lshl_b32 s68, s68, 10")
    if AF_OFF: a("s_add_u32 s68, s68, 0x%x" % AF_OFF)
    a("v_lshlrev_b32 v8, 4, v1")
    blk = 0
    for rt in range(4):
        for jp in range(3):
            T = 16 + (blk % 2) * 16
            O = T + 8
            for half in range(2):
                j = 2 * jp + half
                gq = accreg(j * 2 + 0, rt); uq = accreg(j * 2 + 1, rt)
                for e in range(0, 4, 2):
                    t = T + half * 4 + e
                    a("v_pk_mul_f32 v[%d:%d], v[%d:%d], s[64:65]" % (t, t + 1, gq + e, gq + e + 1))
            for x in range(8): a("v_exp_f32 v%d, v%d" % (T + x, T + x))
            for x in range(0, 8, 2): a("v_pk_add_f32 v[%d:%d], v[%d:%d], s[66:67]" % (T + x, T + x + 1, T + x, T + x + 1))
            for x in range(8): a("v_rcp_f32 v%d, v%d" % (T + x, T + x))
            for half in range(2):
                j = 2 * jp + half
                uq = accreg(j * 2 + 1, rt)
                for e in range(0, 4, 2):
                    t = T + half * 4 + e
                    a("v_pk_mul_f32 v[%d:%d], v[%d:%d], v[%d:%d]" % (t, t + 1, t, t + 1, uq + e, uq + e + 1))
            for x in range(4):
                a("v_cvt_pk_bf16_f32 v%d, v%d, v%d" % (O + x, T + 2 * x, T + 2 * x + 1))
            a("s_add_u32 s69, s68, %d" % ((rt * 74 + jp) * 1024))
            a("buffer_store_dwordx4 v[%d:%d], v8, s[36:39], s69 offen %s" % (O, O + 3, ST_FLAGS))
            blk += 1
    stamp_flush(a, 15, 14, 2, 26, 8)
    a("s_endpgm")

    a.label("K1_Q")
    accreg = mainloop("q")
    a("s_mov_b32 s64, 0x%x" % LOG2E); a("s_mov_b32 s65, 0x%x" % LOG2E)
    a("s_mov_b32 s66, 0x%x" % EPS6); a("s_mov_b32 s67, 0x%x" % EPS6)
    a("s_lshl_b32 s68, s42, 3")
    a("s_lshl_b32 s69, s44, 2")
    a("s_add_u32 s68, s68, s69")
    a("s_lshl_b32 s74, s68, 6")
    a("s_mul_i32 s68, s68, 74")
    a("s_sub_u32 s69, s43, 13")
    a("s_mul_i32 s69, s69, 10")
    a("s_add_u32 s68, s68, s69")
    a("s_mul_i32 s69, s45, 5")
    a("s_add_u32 s68, s68, s69")
    a("s_add_u32 s68, s68, 54")
    a("s_lshl_b32 s68, s68, 10")
    if AF_OFF: a("s_add_u32 s68, s68, 0x%x" % AF_OFF)
    a("v_lshlrev_b32 v8, 4, v1")
    def phi_pairs(srcs, T):
        n = len(srcs)
        U = T + 2 * n
        for x, s in enumerate(srcs):
            a("v_pk_mul_f32 v[%d:%d], v[%d:%d], s[64:65]" % (T + 2 * x, T + 2 * x + 1, s, s + 1))
        for x in range(2 * n):
            a("v_exp_f32 v%d, v%d clamp" % (T + x, T + x))
        for x, s in enumerate(srcs):
            a("v_max_f32 v%d, 0, v%d" % (U + 2 * x, s))
            a("v_max_f32 v%d, 0, v%d" % (U + 2 * x + 1, s + 1))
        for x in range(n):
            a("v_pk_add_f32 v[%d:%d], v[%d:%d], v[%d:%d]" % (T + 2 * x, T + 2 * x + 1, T + 2 * x, T + 2 * x + 1, U + 2 * x, U + 2 * x + 1))
        for x in range(n):
            a("v_pk_add_f32 v[%d:%d], v[%d:%d], s[66:67]" % (T + 2 * x, T + 2 * x + 1, T + 2 * x, T + 2 * x + 1))
    blk = 0
    for rt in range(4):
        for jp in range(5):
            T = 16 + (blk % 2) * 20
            O = T + 16
            srcs = [accreg(2 * jp + half, rt) + e for half in range(2) for e in (0, 2)]
            phi_pairs(srcs, T)
            for x in range(4):
                a("v_cvt_pk_bf16_f32 v%d, v%d, v%d" % (O + x, T + 2 * x, T + 2 * x + 1))
            a("s_add_u32 s69, s68, %d" % ((rt * 74 + jp) * 1024))
            a("buffer_store_dwordx4 v[%d:%d], v8, s[36:39], s69 offen %s" % (O, O + 3, ST_FLAGS))
            blk += 1
    a("s_cmp_eq_u32 s43, 13")
    a("s_cbranch_scc0 K1_Q_END")
    a("s_cmp_eq_u32 s45, 0")
    a("s_cbranch_scc0 K1_Q_END")
    a("v_cmp_gt_u32 vcc, 16, v1")
    a("s_and_saveexec_b64 s[76:77], vcc")
    a("v_lshlrev_b32 v9, 2, v1")
    a("s_mov_b32 s64, 0x%x" % NLOG2E)
    a("s_add_u32 s74, s74, 0x%x" % G_OFF)
    for rt in range(4):
        c = ACC + 160 + rt * 4
        a("v_mul_f32 v%d, s64, v%d" % (16 + rt, c))
    for rt in range(4): a("v_exp_f32 v%d, v%d" % (16 + rt, 16 + rt))
    a("s_nop 0")
    for rt in range(4): a("v_add_f32 v%d, 1.0, v%d" % (16 + rt, 16 + rt))
    for rt in range(4): a("v_rcp_f32 v%d, v%d" % (16 + rt, 16 + rt))
    a("s_nop 0")
    for rt in range(4):
        a("buffer_store_dword v%d, v9, s[36:39], s74 offen offset:%d" % (16 + rt, rt * 64))
    a.label("K1_Q_END")
    a("s_mov_b64 exec, -1")
    stamp_flush(a, 15, 14, 2, 26, 8)
    a("s_endpgm")

    a.label("K1_KV")
    accreg = mainloop("kv")
    a("s_mov_b32 s64, 0x%x" % LOG2E); a("s_mov_b32 s65, 0x%x" % LOG2E)
    a("s_mov_b32 s66, 0x%x" % EPS6); a("s_mov_b32 s67, 0x%x" % EPS6)
    def fragreg(p, rp, j): return accreg(j * 2 + p, 2 * rp)
    blk = 0
    for rp in range(2):
        for j in range(5):
            T = 16 + (blk % 2) * 16
            srcs = [accreg(j * 2, 2 * rp + half) + e for half in range(2) for e in (0, 2)]
            phi_pairs(srcs, T)
            o = fragreg(0, rp, j)
            for x in range(4):
                a("v_cvt_pk_bf16_f32 v%d, v%d, v%d" % (o + x, T + 2 * x, T + 2 * x + 1))
            s0 = accreg(j * 2 + 1, 2 * rp); s1 = accreg(j * 2 + 1, 2 * rp + 1)
            a("v_cvt_pk_bf16_f32 v%d, v%d, v%d" % (s0, s0, s0 + 1))
            a("v_cvt_pk_bf16_f32 v%d, v%d, v%d" % (s0 + 1, s0 + 2, s0 + 3))
            a("v_cvt_pk_bf16_f32 v%d, v%d, v%d" % (s0 + 2, s1, s1 + 1))
            a("v_cvt_pk_bf16_f32 v%d, v%d, v%d" % (s0 + 3, s1 + 2, s1 + 3))
            blk += 1
    res = [accreg(fi, rt) for fi in range(10) for rt in (1, 3)]
    ONES = 16
    for x in range(4): a("v_mov_b32 v%d, 0x3f803f80" % (ONES + x))
    a("s_nop 1")
    for ti, (dt, et) in enumerate(TRI):
        c = res[ti]
        for rp in range(2):
            A_ = fragreg(1, rp, et); B_ = fragreg(0, rp, dt)
            a("v_mfma_f32_16x16x32_bf16 v[%d:%d], v[%d:%d], v[%d:%d], %s" % (c, c + 3, A_, A_ + 3, B_, B_ + 3, "0" if rp == 0 else "v[%d:%d]" % (c, c + 3)))
    for dt in range(5):
        c = res[13 + dt]
        for rp in range(2):
            B_ = fragreg(0, rp, dt)
            a("v_mfma_f32_16x16x32_bf16 v[%d:%d], v[%d:%d], v[%d:%d], %s" % (c, c + 3, ONES, ONES + 3, B_, B_ + 3, "0" if rp == 0 else "v[%d:%d]" % (c, c + 3)))
    a("s_barrier")
    a("s_lshl_b32 s68, s45, 1")
    a("s_add_u32 s68, s68, s44")
    a("s_mul_i32 s68, s68, %d" % (18 * 1024))
    a("v_lshlrev_b32 v8, 4, v1")
    a("v_add_u32 v8, s68, v8")
    a("v_mov_b32 v9, 0")
    a.label("K1_KV_POLL")
    a("buffer_load_dword v10, v9, s[52:55], 0 offen sc0 sc1")
    a("s_waitcnt vmcnt(0)")
    a("v_readfirstlane_b32 s69, v10")
    a("s_cmp_ge_u32 s69, 128")
    a("s_cbranch_scc0 K1_KV_POLL")
    for ti in range(18):
        c = res[ti]
        a("ds_write_b128 v8, v[%d:%d] offset:%d" % (c, c + 3, ti * 1024))
    a("s_waitcnt lgkmcnt(0)")
    a("s_barrier")
    stamp(a, 4, 15)
    a("s_mul_i32 s68, s45, %d" % (36 * 1024))
    a("v_lshlrev_b32 v8, 2, v1")
    a("v_add_u32 v9, s68, v8")
    a("v_lshl_add_u32 v10, v1, 4, s68")
    a("s_sub_u32 s68, s43, 9")
    a("s_mul_i32 s69, s68, 26")
    a("s_mul_i32 s70, s45, 13")
    a("s_add_u32 s69, s69, s70")
    a("s_lshl_b32 s69, s69, 10")
    a("s_add_u32 s69, s69, 0x%x" % KV_OFF)
    a("s_lshl_b32 s68, s68, 1")
    a("s_add_u32 s68, s68, s45")
    a("s_mul_i32 s68, s68, 320")
    a("s_add_u32 s68, s68, 0x%x" % Z_OFF)
    a("s_cmp_eq_u32 s44, 0")
    a("s_cbranch_scc0 K1_KV_R1")
    for rh in range(2):
        if rh == 1: a.label("K1_KV_R1")
        items = []
        tiles = list(range(0, 7)) if rh == 0 else list(range(7, 13))
        for ti in tiles:
            dt, et = TRI[ti]
            for q_ in range(4):
                m = 0
                for p in range(64):
                    if head(16 * dt + (p >> 2)) == head(16 * et + 4 * q_ + (p & 3)): m |= 1 << p
                if m: items.append(("kv", ti, q_, m))
        if rh == 1:
            for dt in range(5): items.append(("z", 13 + dt, 0, 0xffff))
        reg = 16
        for n, (kind, ti, q_, m) in enumerate(items):
            r = 16 + 2 * n
            if kind == "kv":
                a("ds_read2st64_b32 v[%d:%d], v9 offset0:%d offset1:%d" % (r, r + 1, ti * 4 + q_, 72 + ti * 4 + q_))
            else:
                a("ds_read2st64_b32 v[%d:%d], v10 offset0:%d offset1:%d" % (r, r + 1, ti * 4, 72 + ti * 4))
        assert 16 + 2 * len(items) <= 120
        for n, (kind, ti, q_, m) in enumerate(items):
            r = 16 + 2 * n
            rem = len(items) - 1 - n
            if n % 4 == 0: a("s_waitcnt lgkmcnt(%d)" % max(0, min(15, rem - 3)))
            a("v_add_f32 v%d, v%d, v%d" % (r, r, r + 1))
        for n, (kind, ti, q_, m) in enumerate(items):
            r = 16 + 2 * n
            a("s_mov_b32 exec_lo, 0x%x" % (m & 0xffffffff))
            a("s_mov_b32 exec_hi, 0x%x" % (m >> 32))
            if kind == "kv":
                off = ti * 1024 + q_ * 256
                a("s_add_u32 s70, s69, %d" % (off & ~4095))
                a("buffer_atomic_add_f32 v%d, v8, s[36:39], s70 offen offset:%d" % (r, off & 4095))
            else:
                a("buffer_atomic_add_f32 v%d, v8, s[36:39], s68 offen offset:%d" % (r, (ti - 13) * 64))
        a("s_mov_b64 exec, -1")
        stamp_flush(a, 15, 14, 2, 26, 8)
        a("s_endpgm")

    a.label("K1_PREP")
    srds(40)
    srd(a, 56, 16, 17, F * D * 2)
    srd(a, 60, 8, 9, D * D * 2)
    a("s_lshl_b32 s44, s42, 3")
    a("s_add_u32 s44, s44, s26")
    a("v_mov_b32 v4, 0"); a("v_mov_b32 v5, 0"); a("v_mov_b32 v6, 0"); a("v_mov_b32 v7, 0")
    a("v_lshlrev_b32 v8, 4, v1")
    a("s_cmp_lt_u32 s44, %d" % (ZERO_BYTES // 1024))
    a("s_cbranch_scc0 K1_PREP_NZ")
    a("s_lshl_b32 s45, s44, 10")
    a("s_add_u32 s45, s45, 0x%x" % KV_OFF)
    a("buffer_store_dwordx4 v[4:7], v8, s[36:39], s45 offen sc0 sc1")
    a("s_waitcnt vmcnt(0)")
    a.label("K1_PREP_NZ")
    a("v_mov_b32 v9, 0")
    a("v_mov_b32 v10, 1")
    a("s_mov_b64 exec, 1")
    a("buffer_atomic_add v10, v9, s[52:55], 0 offen sc1")
    a("s_mov_b64 exec, -1")
    a("v_lshrrev_b32 v2, 3, v1")
    a("v_mul_u32_u24 v2, 1280, v2")
    a("v_and_b32 v3, 7, v1")
    a("v_lshl_add_u32 v10, v3, 4, v2")
    for i in range(1, 4): a("v_add_u32 v%d, %d, v10" % (10 + i, i * 8 * 1280))
    a("v_lshrrev_b32 v2, 4, v1")
    a("v_and_b32 v3, 15, v1")
    a("v_lshrrev_b32 v3, 2, v3")
    a("v_lshl_add_u32 v2, v2, 2, v3")
    a("v_lshlrev_b32 v2, 7, v2")
    a("v_and_b32 v3, 3, v1")
    a("v_lshl_add_u32 v14, v3, 3, v2")
    a("s_mul_i32 s46, s26, 12288")
    a("v_add_u32 v14, s46, v14")
    def prep_batch(tasks, lbl):
        skip = []
        for n, (sr, total, nks, rnd, dst) in enumerate(tasks):
            a("s_add_u32 s%d, s44, %d" % (64 + n, 128 * rnd))
            a("s_cmp_lt_u32 s%d, %d" % (64 + n, total))
            a("s_cselect_b32 s%d, s%d, 0" % (64 + n, 64 + n))
            a("s_cselect_b32 s%d, 1, 0" % (80 + n))
            a("s_mul_hi_u32 s%d, s%d, %d" % (68 + n, 64 + n, (1 << 32) // 10 + 1))
            a("s_mul_i32 s72, s%d, 10" % (68 + n))
            a("s_sub_u32 s%d, s%d, s72" % (64 + n, 64 + n))
            a("s_mul_i32 s72, s%d, %d" % (68 + n, 32 * 1280))
            a("s_lshl_b32 s73, s%d, 7" % (64 + n))
            a("s_add_u32 s72, s72, s73")
            for i in range(4):
                a("s_add_u32 m0, s46, %d" % (n * 4096 + i * 1024))
                a("s_nop 0")
                a("buffer_load_dwordx4 v%d, s[%d:%d], s72 offen lds" % (10 + i, sr, sr + 3))
        for n, (sr, total, nks, rnd, dst) in enumerate(tasks):
            a("s_waitcnt vmcnt(%d)" % (4 * (len(tasks) - 1 - n) + 4 * n))
            for j in range(4):
                for h in range(2):
                    r = 16 + j * 4 + h * 2
                    a("ds_read_b64_tr_b16 v[%d:%d], v14 offset:%d" % (r, r + 1, n * 4096 + h * 2048 + j * 32))
            a("s_lshl_b32 s72, s%d, 2" % (64 + n))
            a("s_mul_i32 s72, s72, %d" % nks)
            a("s_add_u32 s72, s72, s%d" % (68 + n))
            a("s_lshl_b32 s72, s72, 10")
            a("s_add_u32 s72, s72, 0x%x" % dst)
            a("s_cmp_eq_u32 s%d, 1" % (80 + n))
            a("s_cselect_b32 s72, s72, 0x%x" % JUNK_OFF)
            a("s_waitcnt lgkmcnt(0)")
            for j in range(4):
                a("buffer_store_dwordx4 v[%d:%d], v8, s[36:39], s72 offen %s" % (16 + j * 4, 16 + j * 4 + 3, ST_FLAGS))
                if j < 3: a("s_add_u32 s72, s72, %d" % (nks * 1024))
            a("s_nop 1")
        a("s_waitcnt vmcnt(0)")
    prep_batch([(56, 540, 54, 0, BF_OFF), (56, 540, 54, 1, BF_OFF), (56, 540, 54, 2, BF_OFF)], "b0")
    prep_batch([(56, 540, 54, 3, BF_OFF), (56, 540, 54, 4, BF_OFF), (60, 200, 20, 0, WOF_OFF)], "b1")
    prep_batch([(60, 200, 20, 1, WOF_OFF)], "b2")
    stamp_flush(a, 40, 41, 2, 26, 8)
    a.label("K1_END")
    a("s_endpgm")
    a.end_kernel(name, 256, 96)

K2_ATT = 20480
K2_EX  = 4 * K2_ATT
K2_LDS = K2_EX + 61440

def gen_k2(a, name, code_bytes):
    TS_CUR[0] = 0x40000
    a.begin_kernel(name)
    a("s_cmp_ge_u32 s2, 256")
    a("s_cbranch_scc1 K2_END")
    a("s_load_dwordx2 s[20:21], s[0:1], 64")
    a("s_load_dwordx2 s[24:25], s[0:1], 80")
    a("v_lshrrev_b32 v2, 6, v0")
    a("v_and_b32 v1, 63, v0")
    a("v_readfirstlane_b32 s26, v2")
    stamp(a, 0, 15)
    a("s_and_b32 s40, s2, 7")
    a("s_lshr_b32 s41, s2, 3")
    a("s_and_b32 s42, s40, 3")
    a("s_lshl_b32 s42, s42, 3")
    a("s_and_b32 s43, s41, 7")
    a("s_add_u32 s42, s42, s43")
    a("s_lshr_b32 s43, s40, 2")
    a("s_lshl_b32 s43, s43, 2")
    a("s_lshr_b32 s44, s41, 3")
    a("s_add_u32 s43, s43, s44")
    a("v_lshlrev_b32 v2, 4, v1")
    a("v_lshlrev_b32 v3, 2, v1")
    a("v_and_b32 v4, 15, v1")
    a("v_lshrrev_b32 v5, 4, v1")
    a("s_lshl_b32 s45, s42, 2")
    a("s_mul_i32 s46, s43, 5")
    a("s_waitcnt lgkmcnt(0)")
    srd(a, 36, 24, 25, WS_SIZE)
    srd(a, 28, 20, 21, S * D * 2)
    a("s_lshl_b32 s47, s45, 6")
    a("s_add_u32 s47, s47, 0x%x" % G_OFF)
    a("v_lshlrev_b32 v6, 2, v4")
    a("s_cmp_ge_u32 s26, 4")
    a("s_cbranch_scc1 K2_ATT")

    code_prefetch(a, name, "K2_END", code_bytes, 7, 8, 90, 26)
    if L2PF2:
        a("v_lshlrev_b32 v7, 7, v1")
        a("s_and_b32 s50, s40, 3")
        a("s_lshl_b32 s50, s50, 5")
        a("s_add_u32 s50, s50, s41")
        a("s_mul_i32 s50, s50, %d" % (74 * 1024))
        a("s_mul_i32 s51, s26, %d" % (148 * 128))
        a("s_add_u32 s50, s50, s51")
        if AF_OFF: a("s_add_u32 s50, s50, 0x%x" % AF_OFF)
        a("s_lshr_b32 s51, s40, 2")
        a("s_mul_i32 s52, s51, %d" % (20 * 54 * 1024))
        a("s_mul_i32 s53, s41, %d" % (270 * 128))
        a("s_add_u32 s52, s52, s53")
        a("s_mul_i32 s53, s26, %d" % (68 * 128))
        a("s_add_u32 s52, s52, s53")
        a("s_add_u32 s52, s52, 0x%x" % BF_OFF)
        a("buffer_load_dword v8, v7, s[36:39], s52 offen %s" % PF_FLAGS)
        a("v_min_u32 v9, 3, v1")
        a("v_lshlrev_b32 v9, 7, v9")
        a("buffer_load_dword v8, v9, s[36:39], s52 offen offset:0 %s" % PF_FLAGS) if False else None
        a("s_add_u32 s52, s52, 8192")
        a("buffer_load_dword v8, v9, s[36:39], s52 offen %s" % PF_FLAGS)
        a("buffer_load_dword v8, v7, s[36:39], s50 offen %s" % PF_FLAGS)
        a("s_add_u32 s50, s50, 8192")
        a("buffer_load_dword v8, v7, s[36:39], s50 offen %s" % PF_FLAGS)
        a("s_add_u32 s50, s50, 8192")
        a("v_min_u32 v9, 19, v1")
        a("v_lshlrev_b32 v9, 7, v9")
        a("buffer_load_dword v8, v9, s[36:39], s50 offen %s" % PF_FLAGS)
    ACC = 16; BUF = 96; GV = 240
    for rt in range(4):
        a("buffer_load_dword v%d, v6, s[36:39], s47 offen offset:%d" % (GV + rt, rt * 64))
    a("s_mul_i32 s48, s26, 14")
    a("s_cmp_ge_u32 s26, 2")
    a("s_cselect_b32 s49, 1, 0")
    a("s_sub_u32 s48, s48, s49")
    a("s_cmp_eq_u32 s26, 3")
    a("s_cselect_b32 s49, 1, 0")
    a("s_sub_u32 s48, s48, s49")
    for rt in range(4):
        a("s_add_u32 s50, s45, %d" % rt)
        a("s_mul_i32 s50, s50, 74")
        a("s_add_u32 s50, s50, s48")
        a("s_lshl_b32 s%d, s50, 10" % (52 + rt))
        if AF_OFF: a("s_add_u32 s%d, s%d, 0x%x" % (52 + rt, 52 + rt, AF_OFF))
    for nt in range(5):
        a("s_add_u32 s50, s46, %d" % nt)
        a("s_mul_i32 s50, s50, 54")
        a("s_add_u32 s50, s50, s48")
        a("s_lshl_b32 s50, s50, 10")
        a("s_add_u32 s%d, s50, 0x%x" % (56 + nt, BF_OFF))
    def loads(slot):
        b = BUF + (slot % 4) * 36
        out = []
        for nt in range(5):
            out.append("buffer_load_dwordx4 v[%d:%d], v2, s[36:39], s%d offen offset:%d" % (b + 16 + nt * 4, b + 16 + nt * 4 + 3, 56 + nt, (slot % 4) * 1024))
        for rt in range(4):
            out.append("buffer_load_dwordx4 v[%d:%d], v2, s[36:39], s%d offen offset:%d" % (b + rt * 4, b + rt * 4 + 3, 52 + rt, (slot % 4) * 1024))
        return out
    def adv():
        for x in range(9): a("s_add_u32 s%d, s%d, 4096" % (52 + x, 52 + x))
    if K2_NOMLP:
        a("s_branch K2_M_DONE")
    a("s_cmp_ge_u32 s26, 2")
    a("s_cbranch_scc1 K2_M_SK0")
    for t in loads(0): a(t)
    a.label("K2_M_SK0")
    for t in loads(1): a(t)
    for sl in (2, 3):
        for t in loads(sl): a(t)
    adv()
    for r in range(ACC, ACC + 80): a("v_mov_b32 v%d, 0" % r)
    stamp(a, 2, 15)
    for sl in range(14):
        inflight_after = min(3, 13 - sl)
        a("s_waitcnt vmcnt(%d)" % (9 * inflight_after))
        if sl == 0:
            stamp(a, 1, 15)
            a("s_cmp_ge_u32 s26, 2")
            a("s_cbranch_scc1 K2_M_SK1")
        b = BUF + (sl % 4) * 36
        nxt = loads(sl + 4) if sl + 4 <= 13 else []
        for nt in range(5):
            for rt in range(4):
                c = ACC + (rt * 5 + nt) * 4
                a("v_mfma_f32_16x16x32_bf16 v[%d:%d], v[%d:%d], v[%d:%d], v[%d:%d]" % (c, c + 3, b + 16 + nt * 4, b + 19 + nt * 4, b + rt * 4, b + rt * 4 + 3, c, c + 3))
            if nxt and sl != 0: a(nxt.pop(0))
        if sl == 0:
            a.label("K2_M_SK1")
        for t in nxt: a(t)
        if (sl + 4) % 4 == 3 and sl + 4 <= 13: adv()
    a.label("K2_M_DONE")
    stamp(a, 3, 15)
    a("s_barrier")
    a("s_mul_i32 s50, s26, %d" % K2_ATT)
    a("v_add_u32 v7, s50, v2")
    T = BUF
    for ti in range(20):
        a("ds_read_b128 v[%d:%d], v7 offset:%d" % (T + ti * 4, T + ti * 4 + 3, ti * 1024))
    for rt in range(4):
        a("v_sub_f32 v%d, 1.0, v%d" % (244 + 2 * rt, GV + rt))
        a("v_sub_f32 v%d, 1.0, v%d" % (245 + 2 * rt, GV + rt))
    for ti in range(20):
        rt = ti // 5
        if ti % 4 == 0: a("s_waitcnt lgkmcnt(%d)" % max(0, min(15, 20 - ti - 4)))
        c = ACC + ti * 4
        for e in (0, 2):
            a("v_pk_fma_f32 v[%d:%d], v[%d:%d], v[%d:%d], v[%d:%d]" % (c + e, c + e + 1, c + e, c + e + 1, 244 + 2 * rt, 245 + 2 * rt, T + ti * 4 + e, T + ti * 4 + e + 1))
    a("v_add_u32 v7, %d, v2" % K2_EX)
    for w in range(4):
        a("s_cmp_eq_u32 s26, %d" % w)
        a("s_cbranch_scc0 K2_X%d" % w)
        for rt in range(4):
            if rt == w: continue
            idx = w if w < rt else w - 1
            for nt in range(5):
                c = ACC + (rt * 5 + nt) * 4
                a("ds_write_b128 v7, v[%d:%d] offset:%d" % (c, c + 3, (rt * 3 + idx) * 5120 + nt * 1024))
        for x in range(20):
            a("v_mov_b32 v%d, v%d" % (T + 60 + x, ACC + w * 20 + x))
        a("s_branch K2_XD")
        a.label("K2_X%d" % w)
    a.label("K2_XD")
    a("s_waitcnt lgkmcnt(0)")
    a("s_barrier")
    a("s_mul_i32 s50, s26, 15360")
    a("v_add_u32 v7, s50, v7")
    for x in range(15):
        a("ds_read_b128 v[%d:%d], v7 offset:%d" % (T + x * 4, T + x * 4 + 3, x * 1024))
    a("s_add_u32 s50, s45, s26")
    a("s_mul_i32 s50, s50, %d" % (16 * 1280))
    a("s_mul_i32 s51, s46, 32")
    a("s_add_u32 s50, s50, s51")
    a("v_mul_u32_u24 v8, 1280, v4")
    a("v_lshl_add_u32 v8, v5, 3, v8")
    O = T + 60
    for idx in range(3):
        a("s_waitcnt lgkmcnt(%d)" % (10 - 5 * idx))
        for x in range(0, 20, 2):
            a("v_pk_add_f32 v[%d:%d], v[%d:%d], v[%d:%d]" % (O + x, O + x + 1, O + x, O + x + 1, T + idx * 20 + x, T + idx * 20 + x + 1))
    for nt in range(5):
        a("v_cvt_pk_bf16_f32 v%d, v%d, v%d" % (ACC + 2 * nt, O + 4 * nt, O + 4 * nt + 1))
        a("v_cvt_pk_bf16_f32 v%d, v%d, v%d" % (ACC + 2 * nt + 1, O + 4 * nt + 2, O + 4 * nt + 3))
        a("buffer_store_dwordx2 v[%d:%d], v8, s[28:31], s50 offen offset:%d" % (ACC + 2 * nt, ACC + 2 * nt + 1, nt * 32))
    stamp_flush(a, 15, 14, 2, 26, 8)
    a("s_endpgm")

    a.label("K2_ATT")
    if K2_NOATT:
        a("s_barrier")
        stamp_flush(a, 15, 14, 2, 26, 8)
        a("s_endpgm")
    a("s_setprio %d" % ATT_PRIO)
    a("s_sub_u32 s27, s26, 4")
    RAW = 16; KVA = 120; WO = [192, 212]; DT = 232
    MF = 16
    GV = 252
    vmq = []
    def vm_issue(tag, text):
        a(text); vmq.append(tag)
    def vm_need(tag):
        idx = [i for i, t in enumerate(vmq) if t == tag]
        if not idx: return
        last = max(idx)
        a("s_waitcnt vmcnt(%d)" % min(63, len(vmq) - 1 - last))
        del vmq[:last + 1]
    a("s_mul_i32 s48, s27, 640")
    a("s_add_u32 s48, s48, 0x%x" % Z_OFF)
    a("v_lshlrev_b32 v7, 4, v5")
    for sx in range(5):
        for ab in range(2):
            r = KVA + (sx * 2 + ab) * 4
            vm_issue("Z", "buffer_load_dwordx4 v[%d:%d], v7, s[36:39], s48 offen offset:%d" % (r, r + 3, sx * 128 + ab * 64))
    for rt in range(4):
        vm_issue("G", "buffer_load_dword v%d, v6, s[36:39], s47 offen offset:%d" % (GV + rt, rt * 64))
    a("s_mul_i32 s52, s27, %d" % K2_ATT)
    a("s_mul_i32 s53, s45, 74")
    a("s_mul_i32 s54, s27, 5")
    a("s_add_u32 s53, s53, s54")
    a("s_add_u32 s53, s53, 54")
    a("s_lshl_b32 s53, s53, 10")
    if AF_OFF: a("s_add_u32 s53, s53, 0x%x" % AF_OFF)
    for rt in range(4):
        for sx in range(5):
            a("s_add_u32 s54, s53, %d" % ((rt * 74 + sx) * 1024))
            a("s_add_u32 m0, s52, %d" % ((rt * 5 + sx) * 1024))
            a("s_nop 0")
            vm_issue("PQ", "buffer_load_dwordx4 v2, s[36:39], s54 offen lds")
    a("s_mul_i32 s49, s27, %d" % (26 * 1024))
    a("s_add_u32 s49, s49, 0x%x" % KV_OFF)
    for ti in range(26):
        vm_issue("KV", "buffer_load_dwordx4 v[%d:%d], v2, s[36:39], s49 offen offset:%d" % (RAW + ti * 4, RAW + ti * 4 + 3, (ti % 4) * 1024))
        if ti % 4 == 3: a("s_add_u32 s49, s49, 4096")
    a("s_mul_i32 s50, s46, 20")
    a("s_mul_i32 s51, s27, 5")
    a("s_add_u32 s50, s50, s51")
    a("s_lshl_b32 s50, s50, 10")
    a("s_add_u32 s50, s50, 0x%x" % WOF_OFF)
    def wo_loads(nt):
        a("s_add_u32 s51, s50, %d" % (nt * 20480))
        for p in range(4):
            r = WO[nt % 2] + p * 4
            vm_issue("WO%d" % nt, "buffer_load_dwordx4 v[%d:%d], v2, s[36:39], s51 offen offset:%d" % (r, r + 3, p * 1024))
        a("s_add_u32 s51, s51, 4096")
        r = WO[nt % 2] + 16
        vm_issue("WO%d" % nt, "buffer_load_dwordx4 v[%d:%d], v2, s[36:39], s51 offen" % (r, r + 3))
    wo_loads(0); wo_loads(1)
    stamp(a, 2, 15)
    a("s_lshl_b32 s55, s27, 11")
    a("s_add_u32 s55, s55, %d" % K2_EX)
    a("v_add_u32 v9, s52, v2")
    a("v_lshlrev_b32 v10, 5, v4")
    a("v_add_u32 v10, s55, v10")
    a("v_lshl_add_u32 v8, v5, 4, v10")
    for gb in (1, 2, 3):
        a("v_cmp_le_u32 vcc, %d, v5" % gb)
        a("s_nop 1")
        a("v_cndmask_b32 v%d, 0, 4, vcc" % (10 + gb))
        a("v_add_u32 v%d, v10, v%d" % (10 + gb, 10 + gb))
    ZF = 160
    vm_need("Z")
    for sx in range(5):
        r0 = KVA + sx * 8
        o = ZF + sx * 4
        a("v_cvt_pk_bf16_f32 v%d, v%d, v%d" % (o, r0, r0 + 1))
        a("v_cvt_pk_bf16_f32 v%d, v%d, v%d" % (o + 1, r0 + 2, r0 + 3))
        a("v_cvt_pk_bf16_f32 v%d, v%d, v%d" % (o + 2, r0 + 4, r0 + 5))
        a("v_cvt_pk_bf16_f32 v%d, v%d, v%d" % (o + 3, r0 + 6, r0 + 7))
        for ab in range(2):
            m = 0
            for l in range(64):
                if (32 * sx + 16 * ab + 4 * (l >> 4)) // 20 == (l & 15): m |= 1 << l
            a("s_mov_b32 s56, 0x%x" % (m & 0xffffffff))
            a("s_mov_b32 s57, 0x%x" % (m >> 32))
            a("v_cndmask_b32 v%d, 0, v%d, s[56:57]" % (o + 2 * ab, o + 2 * ab))
            a("v_cndmask_b32 v%d, 0, v%d, s[56:57]" % (o + 2 * ab + 1, o + 2 * ab + 1))
    PB = [120, 140]; DEN = 232; SC = 180
    vm_need("PQ")
    def pq_reads(rt, b):
        return ["ds_read_b128 v[%d:%d], v9 offset:%d" % (b + sx * 4, b + sx * 4 + 3, (rt * 5 + sx) * 1024) for sx in range(5)]
    for t in pq_reads(0, PB[0]) + pq_reads(1, PB[1]): a(t)
    for rt in range(4):
        b = PB[rt % 2]
        a("s_waitcnt lgkmcnt(%d)" % (5 if rt < 3 else 0))
        for sx in range(5):
            c = DEN + rt * 4
            a("v_mfma_f32_16x16x32_bf16 v[%d:%d], v[%d:%d], v[%d:%d], %s" % (c, c + 3, ZF + sx * 4, ZF + sx * 4 + 3, b + sx * 4, b + sx * 4 + 3, "0" if sx == 0 else "v[%d:%d]" % (c, c + 3)))
        if rt + 2 < 4:
            for t in pq_reads(rt + 2, b): a(t)
    for t in pq_reads(0, PB[0]) + pq_reads(1, PB[1]): a(t)
    vm_need("G")
    a("s_mov_b32 s56, 0x%x" % EPS6)
    for rt in range(4):
        for r in range(4): a("v_add_f32 v%d, s56, v%d" % (DEN + rt * 4 + r, DEN + rt * 4 + r))
    for rt in range(4):
        for r in range(4): a("v_rcp_f32 v%d, v%d" % (DEN + rt * 4 + r, DEN + rt * 4 + r))
    a("s_nop 0")
    for rt in range(4):
        for r in range(4): a("v_mul_f32 v%d, v%d, v%d" % (DEN + rt * 4 + r, GV + rt, DEN + rt * 4 + r))
    a("s_mov_b32 exec_lo, -1")
    a("s_mov_b32 exec_hi, 0")
    for rt in range(4):
        a("ds_write_b128 v8, v[%d:%d] offset:%d" % (DEN + rt * 4, DEN + rt * 4 + 3, rt * 512))
    a("s_mov_b64 exec, -1")
    a("s_waitcnt lgkmcnt(0)")
    def sc_reads(rt, base):
        out = []
        for sx in range(5):
            for ab in range(2):
                hs = [(32 * sx + 16 * ab + 4 * g) // 20 for g in range(4)]
                h0 = hs[0]
                gb = next((g for g in range(4) if hs[g] > h0), None)
                areg = 10 if gb is None else 10 + gb
                out.append("ds_read_b32 v%d, v%d offset:%d" % (base + sx * 2 + ab, areg, rt * 512 + h0 * 4))
        return out
    SCB = [180, 232]
    TMP = [190, 242, 244, 246]
    for t in sc_reads(0, SCB[0]) + sc_reads(1, SCB[1]): a(t)
    for rt in range(4):
        b = PB[rt % 2]; sc0 = SCB[rt % 2]
        a("s_waitcnt lgkmcnt(%d)" % (10 if rt == 0 else (15 if rt < 3 else 5)))
        if rt >= 1:
            pass
        n = 0
        for sx in range(5):
            for x in range(4):
                r = b + sx * 4 + x; sc = sc0 + sx * 2 + (x // 2)
                t = TMP[n % 4]; n += 1
                a("v_lshlrev_b32 v%d, 16, v%d" % (t, r))
                a("v_and_b32 v%d, 0xffff0000, v%d" % (t + 1, r))
                a("v_mul_f32 v%d, v%d, v%d" % (t, sc, t))
                a("v_mul_f32 v%d, v%d, v%d" % (t + 1, sc, t + 1))
                a("v_cvt_pk_bf16_f32 v%d, v%d, v%d" % (r, t, t + 1))
        for sx in range(5):
            a("ds_write_b128 v9, v[%d:%d] offset:%d" % (b + sx * 4, b + sx * 4 + 3, (rt * 5 + sx) * 1024))
        if rt + 2 < 4:
            for t in pq_reads(rt + 2, b) + sc_reads(rt + 2, sc0): a(t)
    stamp(a, 5, 15)
    vm_need("KV")
    def ktile(DTl, ET):
        par = DTl // 5
        if ET // 5 != par: return None
        key = (DTl % 5, ET % 5)
        if key not in TRI: return None
        return RAW + (par * 13 + TRI.index(key)) * 4
    frags = []
    for DTl in range(10):
        for p in range(5):
            if ktile(DTl, 2 * p) is not None or ktile(DTl, 2 * p + 1) is not None:
                frags.append((DTl, p))
    assert len(frags) == 18
    a("s_waitcnt lgkmcnt(0)")
    for fi, (DTl, p) in enumerate(frags):
        o = KVA + fi * 4
        for half in range(2):
            t = ktile(DTl, 2 * p + half)
            if t is None:
                a("v_mov_b32 v%d, 0" % (o + 2 * half)); a("v_mov_b32 v%d, 0" % (o + 2 * half + 1))
            else:
                a("v_cvt_pk_bf16_f32 v%d, v%d, v%d" % (o + 2 * half, t, t + 1))
                a("v_cvt_pk_bf16_f32 v%d, v%d, v%d" % (o + 2 * half + 1, t + 2, t + 3))
    stamp(a, 1, 15)
    dset = 0
    pend = []
    def conv(item):
        d, nt, sx = item
        o = MF + (sx * 5 + nt) * 4
        a("v_cvt_pk_bf16_f32 v%d, v%d, v%d" % (o, d, d + 1))
        a("v_cvt_pk_bf16_f32 v%d, v%d, v%d" % (o + 1, d + 2, d + 3))
        a("v_cvt_pk_bf16_f32 v%d, v%d, v%d" % (o + 2, d + 4, d + 5))
        a("v_cvt_pk_bf16_f32 v%d, v%d, v%d" % (o + 3, d + 6, d + 7))
    a("s_nop 1")
    for nt in range(5):
        vm_need("WO%d" % nt)
        for sx in range(5):
            d = DT + (dset % 3) * 8
            dset += 1
            for half in range(2):
                DTl = 2 * sx + half
                first = True
                for fi, (D_, p) in enumerate(frags):
                    if D_ != DTl: continue
                    A_ = KVA + fi * 4; B_ = WO[nt % 2] + p * 4; c = d + half * 4
                    a("v_mfma_f32_16x16x32_bf16 v[%d:%d], v[%d:%d], v[%d:%d], %s" % (c, c + 3, A_, A_ + 3, B_, B_ + 3, "0" if first else "v[%d:%d]" % (c, c + 3)))
                    first = False
            pend.append((d, nt, sx))
            if len(pend) == 3:
                a("s_nop 1")
                conv(pend.pop(0))
        if nt + 2 <= 4: wo_loads(nt + 2)
    ACC = 120; PQB = [200, 220]
    for t in pq_reads(0, PQB[0]): a(t)
    a("s_nop 7")
    while pend:
        conv(pend.pop(0))
    stamp(a, 3, 15)
    for rt in range(4):
        b = PQB[rt % 2]
        if rt < 3:
            for t in pq_reads(rt + 1, PQB[(rt + 1) % 2]): a(t)
        a("s_waitcnt lgkmcnt(%d)" % (5 if rt < 3 else 0))
        for sx in range(5):
            for nt in range(5):
                c = ACC + (rt * 5 + nt) * 4; m = MF + (sx * 5 + nt) * 4
                a("v_mfma_f32_16x16x32_bf16 v[%d:%d], v[%d:%d], v[%d:%d], %s" % (c, c + 3, m, m + 3, b + sx * 4, b + sx * 4 + 3, "0" if sx == 0 else "v[%d:%d]" % (c, c + 3)))
        if rt >= 1:
            for nt in range(5):
                c = ACC + ((rt - 1) * 5 + nt) * 4
                a("ds_write_b128 v9, v[%d:%d] offset:%d" % (c, c + 3, ((rt - 1) * 5 + nt) * 1024))
    a("s_nop 7")
    for nt in range(5):
        c = ACC + (15 + nt) * 4
        a("ds_write_b128 v9, v[%d:%d] offset:%d" % (c, c + 3, (15 + nt) * 1024))
    a("s_waitcnt lgkmcnt(0)")
    stamp(a, 4, 15)
    a("s_barrier")
    stamp_flush(a, 15, 14, 2, 26, 8)
    a.label("K2_END")
    a("s_endpgm")
    a.end_kernel(name, 256, 96)

HDR = """; Kernarg layout for this problem (88 bytes, ptrs only, base s[0:1]):
;   offset   0: d_in[0] A_x  shape=(1, 2048, 640) dtype=bfloat16 strides=(2621440, 1280, 2) contiguous=True
;   offset   8: d_in[1] A_wqkv  shape=(640, 1920) dtype=bfloat16 strides=(3840, 2) contiguous=True
;   offset  16: d_in[2] A_wo  shape=(640, 640) dtype=bfloat16 strides=(1280, 2) contiguous=True
;   offset  24: d_in[3] B_x  shape=(1, 2048, 640) dtype=bfloat16 strides=(2621440, 1280, 2) contiguous=True
;   offset  32: d_in[4] B_w_gate  shape=(640, 1728) dtype=bfloat16 strides=(3456, 2) contiguous=True
;   offset  40: d_in[5] B_w_up  shape=(640, 1728) dtype=bfloat16 strides=(3456, 2) contiguous=True
;   offset  48: d_in[6] B_w_down  shape=(1728, 640) dtype=bfloat16 strides=(1280, 2) contiguous=True
;   offset  56: d_in[7] gate_w  shape=(640,) dtype=bfloat16 strides=(2,) contiguous=True
;   k1: x @ [wqkv | w_gate | w_up] with fused epilogues (phi(q), h = sigmoid(g)*u, kv/z partial sums via atomics, gate)
;   k2: [h | phi(q)/den] @ [w_down ; blockdiag(kv) @ wo] with the gated mix
"""
if __name__ == "__main__":
    if len(sys.argv) > 1 and sys.argv[1] == "stamp": STAMP = True
    for o in sys.argv[3:]:
        k_, v_ = o.split("=")
        globals()[k_] = eval(v_)
    a = Asm()
    gen_k1(a, "k1_kernel", 32768)
    gen_k2(a, "k2_kernel", 32768)
    hdr = HDR + "; @launch kernel=k1_kernel grid=(256,1,1) block=(512,1,1) lds=%d\n" % K1_LDS
    hdr += "; @launch kernel=k2_kernel grid=(256,1,1) block=(512,1,1) lds=%d" % K2_LDS
    out = sys.argv[2] if len(sys.argv) > 2 else "k12.s"
    open(out, "w").write(a.text(hdr))
```

```python
import sys
from asmlib import Asm

S, D, F = 2048, 640, 1728
AF_OFF  = 0x0000000
BF_OFF  = 0x0A00000
WOF_OFF = 0x0D00000
KV_OFF  = 0x0E00000
Z_OFF   = KV_OFF + 4 * 26 * 1024
ZERO_BYTES = 108 * 1024
G_OFF   = 0x0E40000
JUNK_OFF = 0x0F00000
WS_SIZE = 0x10000000
LOG2E = 0x3fb8aa3b
NLOG2E = 0xbfb8aa3b
EPS6 = 0x358637bd

def head(c): return c // 20

class LdsQ:
    def __init__(self, a):
        self.a = a; self.q = []
    def issue(self, tag, text):
        self.a(text); self.q.append(tag)
    def need(self, tags):
        idx = [i for i, t in enumerate(self.q) if t in tags]
        if not idx: return
        last = max(idx)
        n = len(self.q) - 1 - last
        assert n <= 15
        self.a("s_waitcnt lgkmcnt(%d)" % n)
        self.q = self.q[last + 1:]
    def drain(self):
        self.a("s_waitcnt lgkmcnt(0)"); self.q = []

B_SLOT, A_SLOT = 24576, 16384
A_BASE = 4 * B_SLOT
GW_BASE = A_BASE + 3 * A_SLOT
K1_LDS = GW_BASE + 2048

TRI = [(dt, et) for dt in range(5) for et in range(5) if abs(dt - et) <= 1 and
       any(head(16 * dt + x) == head(16 * et + y) for x in range(16) for y in range(16))]
assert len(TRI) == 13

def kv_tile_index(par, dt, et):
    return par * 13 + TRI.index((dt, et))

def srd(a, d, lo, hi, size):
    a("s_mov_b32 s%d, s%d" % (d, lo))
    a("s_mov_b32 s%d, s%d" % (d + 1, hi))
    a("s_mov_b32 s%d, 0x%x" % (d + 2, size))
    a("s_mov_b32 s%d, 0x00020000" % (d + 3))

def code_prefetch(a, label_start, label_end, nbytes, vtmp, vdst, stmp, swave):
    a("s_getpc_b64 s[%d:%d]" % (stmp, stmp + 1))
    here = a.newlabel("PC")
    a.label(here)
    a("s_sub_u32 s%d, s%d, %s-%s" % (stmp, stmp, here, label_start))
    a("s_subb_u32 s%d, s%d, 0" % (stmp + 1, stmp + 1))
    a("v_and_b32 v%d, 63, v0" % vtmp)
    a("v_lshlrev_b32 v%d, 7, v%d" % (vtmp, vtmp))
    a("s_lshl_b32 s%d, s%d, 13" % (stmp + 2, swave))
    a("v_add_u32 v%d, s%d, v%d" % (vtmp, stmp + 2, vtmp))
    n = (nbytes + 32767) // 32768
    for i in range(n):
        a("v_min_u32 v%d, %s-%s-4, v%d" % (vdst + 1, label_end, label_start, vtmp))
        a("global_load_dword v%d, v%d, s[%d:%d]" % (vdst, vdst + 1, stmp, stmp + 1))
        if i + 1 < n:
            a("v_add_u32 v%d, 32768, v%d" % (vtmp, vtmp))

TS_OFF = 0x0F80000
STAMP = False
def stamp(a, idx, v):
    if not STAMP: return
    a("s_memrealtime s[94:95]")
    a("s_waitcnt lgkmcnt(0)")
    a("v_writelane_b32 v%d, s94, %d" % (v, idx))
def stampc(a, idx, v):
    if not STAMP: return
    a("s_memtime s[94:95]")
    a("s_waitcnt lgkmcnt(0)")
    a("v_writelane_b32 v%d, s94, %d" % (v, idx))
TS_CUR = [0]
def stamp_flush(a, v, vt, swg, swave, nw, wsrd=36):
    if not STAMP: return
    a("s_waitcnt vmcnt(0)")
    stamp(a, 7, v)
    a("s_mul_i32 s94, s%d, %d" % (swg, nw))
    a("s_add_u32 s94, s94, s%d" % swave)
    a("s_lshl_b32 s94, s94, 7")
    a("s_add_u32 s94, s94, 0x%x" % (TS_OFF + TS_CUR[0]))
    a("s_mov_b32 exec_lo, -1")
    a("s_mov_b32 exec_hi, 0")
    a("v_and_b32 v%d, 63, v0" % vt)
    a("v_lshlrev_b32 v%d, 2, v%d" % (vt, vt))
    a("buffer_store_dword v%d, v%d, s[%d:%d], s94 offen" % (v, vt, wsrd, wsrd + 3))
    a("s_waitcnt vmcnt(0)")

PF_FLAGS = ""
L2PF = True
PF_DIST = 3
PF_START = 0
PRETOUCH = False
K2_NOATT = False
K2_ROT = False
K2_NOMFMA = False
K2_NOMLP = False
ATT_PRIO = 3
ST_FLAGS = "sc0 sc1"
RAMP = False
L2PF2 = False
def gen_k1(a, name, code_bytes):
    a.begin_kernel(name)
    a("s_cmp_ge_u32 s2, 256")
    a("s_cbranch_scc1 K1_END")
    a("s_load_dwordx16 s[4:19], s[0:1], 0")
    a("s_load_dwordx4 s[20:23], s[0:1], 64")
    a("s_load_dwordx2 s[24:25], s[0:1], 80")
    a("v_lshrrev_b32 v2, 6, v0")
    a("v_and_b32 v1, 63, v0")
    a("v_readfirstlane_b32 s26, v2")
    a("s_and_b32 s40, s2, 7")
    a("s_lshr_b32 s41, s2, 3")
    a("s_and_b32 s42, s40, 1")
    a("s_lshl_b32 s42, s42, 3")
    a("s_and_b32 s43, s41, 7")
    a("s_add_u32 s42, s42, s43")
    a("s_lshr_b32 s43, s40, 1")
    a("s_lshl_b32 s43, s43, 2")
    a("s_lshr_b32 s44, s41, 3")
    a("s_add_u32 s43, s43, s44")
    def srds(sv):
        a("s_waitcnt lgkmcnt(0)")
        stamp(a, 0, sv)
        srd(a, 28, 4, 5, S * D * 2)
        srd(a, 36, 24, 25, WS_SIZE)
        srd(a, 48, 18, 19, D * 2)
        srd(a, 52, 22, 23, 256)
    a("s_cmp_eq_u32 s43, 15")
    a("s_cbranch_scc1 K1_PREP")
    a("s_cmp_lt_u32 s26, 4")
    a("s_cbranch_scc1 K1_COMPUTE")

    a.c("loader waves")
    a("s_sub_u32 s27, s26, 4")
    a("s_lshr_b32 s44, s27, 1")
    a("s_lshl_b32 s47, s27, 5")
    a("v_lshrrev_b32 v2, 3, v1")
    a("v_add_u32 v2, s47, v2")
    a("v_mul_u32_u24 v2, 1280, v2")
    a("v_lshrrev_b32 v3, 4, v1")
    a("v_and_b32 v5, 7, v1")
    a("v_xor_b32 v3, v3, v5")
    a("v_lshlrev_b32 v3, 4, v3")
    a("v_add_u32 v16, v2, v3")
    a("v_xor_b32 v3, 64, v3")
    a("v_add_u32 v17, v2, v3")
    a("v_add_u32 v17, 10240, v17")
    a("v_add_u32 v18, 20480, v16")
    a("v_add_u32 v19, 20480, v17")
    a("s_movk_i32 s45, 3456")
    a("s_mul_i32 s46, s43, 384")
    a("s_cmp_lt_u32 s43, 9")
    a("s_cbranch_scc1 K1_LD_GO")
    a("s_movk_i32 s45, 3840")
    a("s_sub_u32 s46, s43, 9")
    a("s_mul_i32 s46, s46, 320")
    a("s_mul_i32 s47, s44, 1280")
    a("s_add_u32 s46, s46, s47")
    a("s_add_u32 s46, s46, 1280")
    a("s_sub_u32 s47, s43, 13")
    a("s_lshl_b32 s47, s47, 1")
    a("s_add_u32 s47, s47, s44")
    a("s_mul_i32 s47, s47, 320")
    a("s_cmp_lt_u32 s43, 13")
    a("s_cselect_b32 s46, s46, s47")
    a("s_and_b32 s46, s46, 0xffffff80")
    a.label("K1_LD_GO")
    a("s_and_b32 s47, s27, 1")
    a("s_mul_i32 s47, s47, 384")
    a("s_mov_b32 s64, 2731")
    a("s_lshl_b32 s63, s45, 3")
    for c in range(768): assert (c * 2731) >> 16 == c // 24
    for i in range(3):
        a("v_add_u32 v2, s47, v1")
        if i: a("v_add_u32 v2, %d, v2" % (64 * i))
        a("v_mul_u32_u24 v3, s64, v2")
        a("v_lshrrev_b32 v3, 16, v3")
        a("v_mul_u32_u24 v5, 24, v3")
        a("v_sub_u32 v5, v2, v5")
        a("v_bfe_u32 v6, v3, 1, 1")
        a("v_lshrrev_b32 v7, 2, v3")
        a("v_and_or_b32 v6, v7, 2, v6")
        a("v_lshrrev_b32 v7, 1, v5")
        a("v_xor_b32 v7, v7, v6")
        a("v_lshlrev_b32 v7, 5, v7")
        a("v_and_b32 v5, 1, v5")
        a("v_lshl_add_u32 v7, v5, 4, v7")
        a("v_mul_lo_u32 v3, v3, s45")
        a("v_add_u32 v%d, v3, v7" % (10 + i))
        a("v_xor_b32 v7, 64, v7")
        a("v_add3_u32 v%d, v3, v7, s63" % (13 + i))
    a("s_mul_i32 s65, s42, %d" % (128 * 1280))
    a("s_lshl_b32 s66, s45, 5")
    a("s_mul_i32 s67, s27, 6144")
    a("s_lshl_b32 s68, s27, 12")
    a("s_add_u32 s68, s68, %d" % A_BASE)
    srds(20)
    srd(a, 32, 6, 7, D * 3 * D * 2)
    a("s_cmp_lt_u32 s43, 9")
    a("s_cbranch_scc0 K1_LD_GO2")
    a("s_cmp_eq_u32 s44, 0")
    a("s_cselect_b32 s32, s12, s14")
    a("s_cselect_b32 s33, s13, s15")
    a("s_mov_b32 s34, 0x%x" % (D * F * 2))
    a.label("K1_LD_GO2")
    issued = []
    def issueB(t):
        a("s_mul_i32 s69, s66, %d" % t)
        a("s_add_u32 s69, s69, s46")
        for i in range(6):
            a("s_add_u32 m0, s67, %d" % ((t % 4) * B_SLOT + i * 1024))
            a("s_nop 0")
            a("buffer_load_dwordx4 v%d, s[32:35], s69 offen lds" % (10 + i))
            issued.append(("B", t))
    def issueA(T):
        a("s_add_u32 s70, s65, %d" % (T * 128))
        for i in range(4):
            a("s_add_u32 m0, s68, %d" % ((T % 3) * A_SLOT + i * 1024))
            a("s_nop 0")
            a("buffer_load_dwordx4 v%d, s[28:31], s70 offen lds" % (16 + i))
            issued.append(("A", T))
    stamp(a, 2, 20)
    a("v_lshlrev_b32 v2, 4, v1")
    a("s_mov_b32 m0, %d" % GW_BASE)
    a("v_add_u32 v3, 1024, v2")
    a("buffer_load_dwordx4 v2, s[48:51], 0 offen lds")
    a("s_mov_b32 m0, %d" % (GW_BASE + 1024))
    a("s_nop 0")
    a("buffer_load_dwordx4 v3, s[48:51], 0 offen lds")
    stamp(a, 8, 20)
    issueA(0)
    stamp(a, 9, 20)
    issueB(0)
    stamp(a, 10, 20)
    issueB(1)
    stamp(a, 11, 20)
    nextB, nextA = 2, 1
    if not RAMP:
        issueA(1); issueB(2); issueB(3); issueA(2)
        nextB, nextA = 4, 3
    code_prefetch(a, name, "K1_END", code_bytes, 3, 4, 90, 27)
    issued.append(("P", 0))
    stamp(a, 3, 20)
    for t in range(21):
        if t <= 19:
            last = max(i for i, x in enumerate(issued) if x == ("B", t) or x == ("A", t // 2))
            n = len(issued) - 1 - last
            a("s_waitcnt vmcnt(%d)" % n)
        a("s_barrier")
        if t == 0: stamp(a, 1, 20)
        while nextA <= 9 and nextA - 3 <= t // 2 - 1 and nextA <= t // 2 + 2 and (nextA * 2 <= nextB + 1 or nextB > 19):
            issueA(nextA); nextA += 1
        while nextB <= 19 and nextB - 4 <= t - 1:
            issueB(nextB); nextB += 1
            while nextA <= 9 and nextA - 3 <= t // 2 - 1 and nextA * 2 <= nextB:
                issueA(nextA); nextA += 1
    assert nextA == 10 and nextB == 20
    if PRETOUCH:
        a("v_mov_b32 v2, 4")
        a("buffer_load_dword v3, v2, s[52:55], 0 offen sc0 sc1")
        a("s_and_b32 s71, s2, 7")
        a("s_lshr_b32 s71, s71, 2")
        a("s_waitcnt vmcnt(0)")
        a("v_readfirstlane_b32 s72, v3")
        a("s_cmp_lt_u32 s41, 24")
        a("s_cbranch_scc0 K1_LD_END")
        a("s_cmp_eq_u32 s72, 128")
        a("s_cbranch_scc0 K1_LD_END")
        a("s_lshl_b32 s73, s41, 2")
        a("s_add_u32 s73, s73, s27")
        a("v_lshlrev_b32 v2, 7, v1")
        a("s_mul_i32 s74, s71, %d" % (20 * 54 * 1024))
        a("s_mul_i32 s75, s73, %d" % (90 * 128))
        a("s_add_u32 s74, s74, s75")
        a("s_add_u32 s74, s74, 0x%x" % BF_OFF)
        a("buffer_load_dword v4, v2, s[36:39], s74 offen")
        a("v_min_u32 v3, 25, v1")
        a("v_lshlrev_b32 v3, 7, v3")
        a("s_add_u32 s74, s74, 8192")
        a("buffer_load_dword v4, v3, s[36:39], s74 offen")
        a("s_mul_i32 s74, s71, %d" % (20 * 20 * 1024))
        a("s_mul_i32 s75, s73, %d" % (34 * 128))
        a("s_min_u32 s75, s75, %d" % ((3200 - 34) * 128))
        a("s_add_u32 s74, s74, s75")
        a("s_add_u32 s74, s74, 0x%x" % WOF_OFF)
        a("v_min_u32 v3, 33, v1")
        a("v_lshlrev_b32 v3, 7, v3")
        a("buffer_load_dword v4, v3, s[36:39], s74 offen")
        a("s_waitcnt vmcnt(0)")
        a.label("K1_LD_END")
    stamp_flush(a, 20, 21, 2, 26, 8)
    a("s_endpgm")

    a.label("K1_COMPUTE")
    a("s_lshr_b32 s44, s26, 1")
    a("s_and_b32 s45, s26, 1")
    a("s_cmp_lt_u32 s43, 9")
    a("s_cbranch_scc0 K1_C_QKV")
    a("s_mul_i32 s46, s45, 6")
    a("s_mov_b32 s47, 0")
    a("s_branch K1_C_GO")
    a.label("K1_C_QKV")
    a("s_cmp_lt_u32 s43, 13")
    a("s_cbranch_scc0 K1_C_Q")
    a("s_sub_u32 s46, s43, 9")
    a("s_and_b32 s46, s46, 1")
    a("s_lshl_b32 s46, s46, 1")
    a("s_mul_i32 s47, s45, 5")
    a("s_add_u32 s46, s46, s47")
    a("s_mov_b32 s47, 0")
    a("s_branch K1_C_GO")
    a.label("K1_C_Q")
    a("s_lshl_b32 s46, s45, 1")
    a("s_mul_i32 s47, s45, 12288")
    a.label("K1_C_GO")
    VA, VB = 2, 4
    a("v_and_b32 v8, 15, v1")
    a("v_lshrrev_b32 v9, 4, v1")
    a("s_lshl_b32 s64, s44, 13")
    a("s_add_u32 s64, s64, %d" % A_BASE)
    a("v_lshrrev_b32 v10, 1, v8")
    a("v_xor_b32 v11, v9, v10")
    a("v_lshlrev_b32 v11, 4, v11")
    a("v_lshl_add_u32 v11, v8, 7, v11")
    a("v_add_u32 v2, s64, v11")
    a("v_xor_b32 v3, 64, v2")
    a("v_lshrrev_b32 v10, 2, v8")
    a("v_lshl_add_u32 v11, v9, 3, v10")
    a("v_mul_u32_u24 v11, 384, v11")
    a("v_and_b32 v12, 3, v1")
    a("v_lshl_add_u32 v11, v12, 3, v11")
    a("v_add_u32 v11, s47, v11")
    a("v_lshrrev_b32 v12, 1, v10")
    a("v_and_b32 v13, 1, v9")
    a("v_lshl_or_b32 v12, v13, 1, v12")
    for jp in range(4):
        a("s_add_u32 s64, s46, %d" % jp)
        a("s_and_b32 s65, s64, 3")
        a("s_lshr_b32 s64, s64, 2")
        a("s_lshl_b32 s64, s64, 7")
        a("v_xor_b32 v13, s65, v12")
        a("v_lshl_add_u32 v13, v13, 5, v11")
        a("v_add_u32 v%d, s64, v13" % (VB + jp))
    def pf_setup():
        a("s_and_b32 s76, s26, 1")
        a("s_movk_i32 s77, 3456")
        a("s_mul_i32 s78, s43, 384")
        srd(a, 32, 6, 7, D * 3 * D * 2)
        a("s_cmp_lt_u32 s43, 9")
        a("s_cbranch_scc0 K1_PF_QKV")
        a("s_cmp_eq_u32 s76, 0")
        a("s_cselect_b32 s32, s12, s14")
        a("s_cselect_b32 s33, s13, s15")
        a("s_mov_b32 s34, 0x%x" % (D * F * 2))
        a("s_branch K1_PF_GO")
        a.label("K1_PF_QKV")
        a("s_movk_i32 s77, 3840")
        a("s_sub_u32 s78, s43, 9")
        a("s_mul_i32 s78, s78, 320")
        a("s_mul_i32 s79, s76, 1280")
        a("s_add_u32 s78, s78, s79")
        a("s_add_u32 s78, s78, 1280")
        a("s_sub_u32 s79, s43, 13")
        a("s_lshl_b32 s79, s79, 1")
        a("s_add_u32 s79, s79, s76")
        a("s_mul_i32 s79, s79, 320")
        a("s_cmp_lt_u32 s43, 13")
        a("s_cselect_b32 s78, s78, s79")
        a("s_and_b32 s78, s78, 0xffffff80")
        a.label("K1_PF_GO")
        a("v_min_u32 v10, 23, v1")
        a("v_mul_u32_u24 v11, 0x5556, v10")
        a("v_lshrrev_b32 v11, 16, v11")
        a("v_mul_u32_u24 v12, 3, v11")
        a("v_sub_u32 v12, v10, v12")
        a("s_and_b32 s80, s41, 7")
        a("s_lshl_b32 s80, s80, 3")
        a("v_add_u32 v11, s80, v11")
        a("v_mul_lo_u32 v11, v11, s77")
        a("v_lshl_add_u32 v12, v12, 7, v11")
        a("s_lshl_b32 s79, s77, 6")
        a("s_cmp_lt_u32 s26, 2")
        a("s_cbranch_scc1 K1_PF_W")
        a("s_lshr_b32 s80, s41, 3")
        a("s_lshl_b32 s80, s80, 5")
        a("s_lshl_b32 s81, s76, 4")
        a("s_add_u32 s80, s80, s81")
        a("v_min_u32 v10, 15, v1")
        a("v_add_u32 v10, s80, v10")
        a("v_mul_u32_u24 v12, 1280, v10")
        a("s_mul_i32 s78, s42, %d" % (128 * 1280))
        a("s_movk_i32 s79, 128")
        a("s_mov_b32 s32, s4")
        a("s_mov_b32 s33, s5")
        a("s_mov_b32 s34, 0x%x" % (S * D * 2))
        a.label("K1_PF_W")
        if PF_START:
            a("s_mul_i32 s80, s79, %d" % PF_START)
            a("s_add_u32 s78, s78, s80")
        for _ in range(PF_DIST - PF_START): pf_issue()
    def pf_issue():
        a("buffer_load_dword v13, v12, s[32:35], s78 offen %s" % PF_FLAGS)
        a("s_add_u32 s78, s78, s79")
    srds(15)
    if L2PF: pf_setup()
    for r in range(64, 256):
        a("v_mov_b32 v%d, 0" % r)
    a("s_mov_b32 s70, 0")
    a("s_mov_b32 s71, 10")
    a("s_mov_b32 s75, 49152")
    a("s_cmp_lt_u32 s43, 9")
    a("s_cbranch_scc1 K1_GU")
    a("s_cmp_lt_u32 s43, 13")
    a("s_cbranch_scc1 K1_KV")
    a("s_branch K1_Q")

    ABUF = [16, 32]
    BR = 48
    ACC = 64

    def mainloop(role):
        q = LdsQ(a)
        if role == "gu":
            frags = [(p, j) for j in range(6) for p in range(2)]
        elif role == "kv":
            frags = [(p, j) for j in range(5) for p in range(2)]
        else:
            frags = [(0, j) for j in range(10)]
        nB = len(frags)
        def accreg(fi, rt): return ACC + (fi * 4 + rt) * 4
        def readB(J, par):
            p, j = frags[J]
            slot = (par * nB + J) % 4
            out = []
            for h in range(2):
                off = (j >> 2) * 128 + h * 1536 + p * 12288 + par * B_SLOT
                r = BR + slot * 4 + h * 2
                out.append((("B", par, J), "ds_read_b64_tr_b16 v[%d:%d], v%d offset:%d" % (r, r + 1, VB + (j & 3), off)))
            return out
        def readA(par):
            out = []
            for rt in range(4):
                r = ABUF[par] + rt * 4
                out.append((("A", par, rt), "ds_read_b128 v[%d:%d], v%d offset:%d" % (r, r + 3, VA + par, rt * 2048)))
            if role == "q":
                out.append((("G", par), "ds_read_b128 v[%d:%d], v14 offset:%d" % (GW[par], GW[par] + 3, 64 * par)))
            return out
        def mfma(par, J, rt):
            slot = (par * nB + J) % 4
            b = BR + slot * 4; x = ABUF[par] + rt * 4; c = accreg(J, rt)
            if role == "kv":
                return "v_mfma_f32_16x16x32_bf16 v[%d:%d], v[%d:%d], v[%d:%d], v[%d:%d]" % (c, c + 3, x, x + 3, b, b + 3, c, c + 3)
            return "v_mfma_f32_16x16x32_bf16 v[%d:%d], v[%d:%d], v[%d:%d], v[%d:%d]" % (c, c + 3, b, b + 3, x, x + 3, c, c + 3)
        GW = [ACC + 176, ACC + 180]
        LOG = ACC + 160
        if role == "q":
            a("v_lshlrev_b32 v14, 4, v9")
            a("v_add_u32 v14, %d, v14" % GW_BASE)
        stamp(a, 2, 15)
        a("s_barrier")
        stamp(a, 1, 15)
        stampc(a, 5, 15)
        for tag, t in readA(0) + readB(0, 0) + readB(1, 0) + readB(2, 0):
            q.issue(tag, t)
        state0 = list(q.q)
        lbl = "K1_LOOP_" + role
        a.label(lbl)
        if STAMP:
            a("s_memrealtime s[94:95]")
            a("s_sub_u32 m0, 18, s71")
            a("s_waitcnt lgkmcnt(0)")
            a("v_writelane_b32 v15, s94, m0")
        if L2PF: pf_issue()
        for par in range(2):
            for J in range(nB):
                reads = []
                pre = []
                if J + 3 <= nB - 1:
                    reads = readB(J + 3, par)
                if J == nB - 2:
                    if role == "q":
                        for rt in range(4):
                            x = ABUF[par] + rt * 4; c = LOG + rt * 4
                            a("v_mfma_f32_16x16x32_bf16 v[%d:%d], v[%d:%d], v[%d:%d], v[%d:%d]" % (c, c + 3, GW[par], GW[par] + 3, x, x + 3, c, c + 3))
                    q.drain()
                    a("s_barrier")
                    if par == 1:
                        for jp in range(4):
                            a("v_add_u32 v%d, s75, v%d" % (VB + jp, VB + jp))
                        a("s_sub_u32 s75, 0, s75")
                        a("s_add_u32 s70, s70, 16384")
                        a("s_cmp_eq_u32 s70, 49152")
                        a("s_cselect_b32 s73, s70, 0")
                        a("s_sub_u32 s70, s70, s73")
                        a("s_sub_u32 s73, 16384, s73")
                        a("v_add_u32 v2, s73, v2")
                        a("v_add_u32 v3, s73, v3")
                        if role == "q": a("v_add_u32 v14, 128, v14")
                    reads = readA(1 - par) + readB(0, 1 - par) + readB(1, 1 - par)
                if J == nB - 1:
                    reads = readB(2, 1 - par)
                q.need([("B", par, J)] + ([("A", par, 0)] if J == 0 else []))
                for rt in range(4):
                    if J == 0 and rt > 0: q.need([("A", par, rt)])
                    a(mfma(par, J, rt))
                    k = (len(reads) + (3 - rt)) // (4 - rt) if reads else 0
                    for _ in range(k):
                        tag, t = reads.pop(0); q.issue(tag, t)
                assert not reads
        a("s_sub_u32 s71, s71, 1")
        a("s_cmp_lg_u32 s71, 0")
        a("s_cbranch_scc1 %s" % lbl)
        assert q.q == state0, (q.q, state0)
        a("s_waitcnt lgkmcnt(0) vmcnt(0)")
        a("s_nop 7")
        stamp(a, 3, 15)
        stampc(a, 6, 15)
        return accreg

    a.label("K1_GU")
    accreg = mainloop("gu")
    a("s_mov_b32 s64, 0x%x" % NLOG2E); a("s_mov_b32 s65, 0x%x" % NLOG2E)
    a("s_mov_b32 s66, 1.0"); a("s_mov_b32 s67, 1.0")
    a("s_lshl_b32 s68, s42, 3")
    a("s_lshl_b32 s69, s44, 2")
    a("s_add_u32 s68, s68, s69")
    a("s_mul_i32 s68, s68, 74")
    a("s_mul_i32 s69, s43, 6")
    a("s_add_u32 s68, s68, s69")
    a("s_mul_i32 s69, s45, 3")
    a("s_add_u32 s68, s68, s69")
    a("s_lshl_b32 s68, s68, 10")
    if AF_OFF: a("s_add_u32 s68, s68, 0x%x" % AF_OFF)
    a("v_lshlrev_b32 v8, 4, v1")
    blk = 0
    for rt in range(4):
        for jp in range(3):
            T = 16 + (blk % 2) * 16
            O = T + 8
            for half in range(2):
                j = 2 * jp + half
                gq = accreg(j * 2 + 0, rt); uq = accreg(j * 2 + 1, rt)
                for e in range(0, 4, 2):
                    t = T + half * 4 + e
                    a("v_pk_mul_f32 v[%d:%d], v[%d:%d], s[64:65]" % (t, t + 1, gq + e, gq + e + 1))
            for x in range(8): a("v_exp_f32 v%d, v%d" % (T + x, T + x))
            for x in range(0, 8, 2): a("v_pk_add_f32 v[%d:%d], v[%d:%d], s[66:67]" % (T + x, T + x + 1, T + x, T + x + 1))
            for x in range(8): a("v_rcp_f32 v%d, v%d" % (T + x, T + x))
            for half in range(2):
                j = 2 * jp + half
                uq = accreg(j * 2 + 1, rt)
                for e in range(0, 4, 2):
                    t = T + half * 4 + e
                    a("v_pk_mul_f32 v[%d:%d], v[%d:%d], v[%d:%d]" % (t, t + 1, t, t + 1, uq + e, uq + e + 1))
            for x in range(4):
                a("v_cvt_pk_bf16_f32 v%d, v%d, v%d" % (O + x, T + 2 * x, T + 2 * x + 1))
            a("s_add_u32 s69, s68, %d" % ((rt * 74 + jp) * 1024))
            a("buffer_store_dwordx4 v[%d:%d], v8, s[36:39], s69 offen %s" % (O, O + 3, ST_FLAGS))
            blk += 1
    stamp_flush(a, 15, 14, 2, 26, 8)
    a("s_endpgm")

    a.label("K1_Q")
    accreg = mainloop("q")
    a("s_mov_b32 s64, 0x%x" % LOG2E); a("s_mov_b32 s65, 0x%x" % LOG2E)
    a("s_mov_b32 s66, 0x%x" % EPS6); a("s_mov_b32 s67, 0x%x" % EPS6)
    a("s_lshl_b32 s68, s42, 3")
    a("s_lshl_b32 s69, s44, 2")
    a("s_add_u32 s68, s68, s69")
    a("s_lshl_b32 s74, s68, 6")
    a("s_mul_i32 s68, s68, 74")
    a("s_sub_u32 s69, s43, 13")
    a("s_mul_i32 s69, s69, 10")
    a("s_add_u32 s68, s68, s69")
    a("s_mul_i32 s69, s45, 5")
    a("s_add_u32 s68, s68, s69")
    a("s_add_u32 s68, s68, 54")
    a("s_lshl_b32 s68, s68, 10")
    if AF_OFF: a("s_add_u32 s68, s68, 0x%x" % AF_OFF)
    a("v_lshlrev_b32 v8, 4, v1")
    def phi_pairs(srcs, T):
        n = len(srcs)
        U = T + 2 * n
        for x, s in enumerate(srcs):
            a("v_pk_mul_f32 v[%d:%d], v[%d:%d], s[64:65]" % (T + 2 * x, T + 2 * x + 1, s, s + 1))
        for x in range(2 * n):
            a("v_exp_f32 v%d, v%d clamp" % (T + x, T + x))
        for x, s in enumerate(srcs):
            a("v_max_f32 v%d, 0, v%d" % (U + 2 * x, s))
            a("v_max_f32 v%d, 0, v%d" % (U + 2 * x + 1, s + 1))
        for x in range(n):
            a("v_pk_add_f32 v[%d:%d], v[%d:%d], v[%d:%d]" % (T + 2 * x, T + 2 * x + 1, T + 2 * x, T + 2 * x + 1, U + 2 * x, U + 2 * x + 1))
        for x in range(n):
            a("v_pk_add_f32 v[%d:%d], v[%d:%d], s[66:67]" % (T + 2 * x, T + 2 * x + 1, T + 2 * x, T + 2 * x + 1))
    blk = 0
    for rt in range(4):
        for jp in range(5):
            T = 16 + (blk % 2) * 20
            O = T + 16
            srcs = [accreg(2 * jp + half, rt) + e for half in range(2) for e in (0, 2)]
            phi_pairs(srcs, T)
            for x in range(4):
                a("v_cvt_pk_bf16_f32 v%d, v%d, v%d" % (O + x, T + 2 * x, T + 2 * x + 1))
            a("s_add_u32 s69, s68, %d" % ((rt * 74 + jp) * 1024))
            a("buffer_store_dwordx4 v[%d:%d], v8, s[36:39], s69 offen %s" % (O, O + 3, ST_FLAGS))
            blk += 1
    a("s_cmp_eq_u32 s43, 13")
    a("s_cbranch_scc0 K1_Q_END")
    a("s_cmp_eq_u32 s45, 0")
    a("s_cbranch_scc0 K1_Q_END")
    a("v_cmp_gt_u32 vcc, 16, v1")
    a("s_and_saveexec_b64 s[76:77], vcc")
    a("v_lshlrev_b32 v9, 2, v1")
    a("s_mov_b32 s64, 0x%x" % NLOG2E)
    a("s_add_u32 s74, s74, 0x%x" % G_OFF)
    for rt in range(4):
        c = ACC + 160 + rt * 4
        a("v_mul_f32 v%d, s64, v%d" % (16 + rt, c))
    for rt in range(4): a("v_exp_f32 v%d, v%d" % (16 + rt, 16 + rt))
    a("s_nop 0")
    for rt in range(4): a("v_add_f32 v%d, 1.0, v%d" % (16 + rt, 16 + rt))
    for rt in range(4): a("v_rcp_f32 v%d, v%d" % (16 + rt, 16 + rt))
    a("s_nop 0")
    for rt in range(4):
        a("buffer_store_dword v%d, v9, s[36:39], s74 offen offset:%d" % (16 + rt, rt * 64))
    a.label("K1_Q_END")
    a("s_mov_b64 exec, -1")
    stamp_flush(a, 15, 14, 2, 26, 8)
    a("s_endpgm")

    a.label("K1_KV")
    accreg = mainloop("kv")
    a("v_mov_b32 v9, 0")
    a("buffer_load_dword v10, v9, s[52:55], 0 offen sc0 sc1")
    a("s_mov_b32 s64, 0x%x" % LOG2E); a("s_mov_b32 s65, 0x%x" % LOG2E)
    a("s_mov_b32 s66, 0x%x" % EPS6); a("s_mov_b32 s67, 0x%x" % EPS6)
    def fragreg(p, rp, j): return accreg(j * 2 + p, 2 * rp)
    res = [accreg(fi, 1) for fi in range(10)] + [ACC + 160 + 4 * x for x in range(8)]
    ONES = 48
    for x in range(4): a("v_mov_b32 v%d, 0x3f803f80" % (ONES + x))
    def conv_ops(rp):
        global_lines = a.lines
        a.lines = []
        blk = 0
        for j in range(5):
            T = 16 + (blk % 2) * 16
            srcs = [accreg(j * 2, 2 * rp + half) + e for half in range(2) for e in (0, 2)]
            phi_pairs(srcs, T)
            o = fragreg(0, rp, j)
            for x in range(4):
                a("v_cvt_pk_bf16_f32 v%d, v%d, v%d" % (o + x, T + 2 * x, T + 2 * x + 1))
            s0 = accreg(j * 2 + 1, 2 * rp); s1 = accreg(j * 2 + 1, 2 * rp + 1)
            a("v_cvt_pk_bf16_f32 v%d, v%d, v%d" % (s0, s0, s0 + 1))
            a("v_cvt_pk_bf16_f32 v%d, v%d, v%d" % (s0 + 1, s0 + 2, s0 + 3))
            a("v_cvt_pk_bf16_f32 v%d, v%d, v%d" % (s0 + 2, s1, s1 + 1))
            a("v_cvt_pk_bf16_f32 v%d, v%d, v%d" % (s0 + 3, s1 + 2, s1 + 3))
            blk += 1
        out = a.lines
        a.lines = global_lines
        return [l.strip() for l in out]
    def kv_mfmas(rp):
        out = []
        for ti, (dt, et) in enumerate(TRI):
            c = res[ti]
            A_ = fragreg(1, rp, et); B_ = fragreg(0, rp, dt)
            out.append("v_mfma_f32_16x16x32_bf16 v[%d:%d], v[%d:%d], v[%d:%d], %s" % (c, c + 3, A_, A_ + 3, B_, B_ + 3, "0" if rp == 0 else "v[%d:%d]" % (c, c + 3)))
        for dt in range(5):
            c = res[13 + dt]
            B_ = fragreg(0, rp, dt)
            out.append("v_mfma_f32_16x16x32_bf16 v[%d:%d], v[%d:%d], v[%d:%d], %s" % (c, c + 3, ONES, ONES + 3, B_, B_ + 3, "0" if rp == 0 else "v[%d:%d]" % (c, c + 3)))
        return out
    for t in conv_ops(0): a(t)
    a("s_nop 1")
    c1 = conv_ops(1); m0_ = kv_mfmas(0)
    per = len(c1) // len(m0_)
    for k_, m_ in enumerate(m0_):
        a(m_)
        for t in c1[k_ * per:(k_ + 1) * per]: a(t)
    for t in c1[len(m0_) * per:]: a(t)
    a("s_barrier")
    a("s_nop 0")
    for t in kv_mfmas(1): a(t)
    a("s_lshl_b32 s68, s45, 1")
    a("s_add_u32 s68, s68, s44")
    a("s_mul_i32 s68, s68, %d" % (18 * 1024))
    a("v_lshlrev_b32 v8, 4, v1")
    a("v_add_u32 v8, s68, v8")
    a.label("K1_KV_POLL")
    a("s_waitcnt vmcnt(0)")
    a("v_readfirstlane_b32 s69, v10")
    a("s_cmp_ge_u32 s69, 128")
    a("s_cbranch_scc1 K1_KV_GO")
    a("buffer_load_dword v10, v9, s[52:55], 0 offen sc0 sc1")
    a("s_branch K1_KV_POLL")
    a.label("K1_KV_GO")
    a("s_nop 3")
    for ti in range(18):
        c = res[ti]
        a("ds_write_b128 v8, v[%d:%d] offset:%d" % (c, c + 3, ti * 1024))
    a("s_mul_i32 s68, s45, %d" % (36 * 1024))
    a("v_lshlrev_b32 v8, 2, v1")
    a("v_add_u32 v9, s68, v8")
    a("v_lshl_add_u32 v10, v1, 4, s68")
    a("s_sub_u32 s68, s43, 9")
    a("s_mul_i32 s69, s68, 26")
    a("s_mul_i32 s70, s45, 13")
    a("s_add_u32 s69, s69, s70")
    a("s_lshl_b32 s69, s69, 10")
    a("s_add_u32 s69, s69, 0x%x" % KV_OFF)
    a("s_lshl_b32 s68, s68, 1")
    a("s_add_u32 s68, s68, s45")
    a("s_mul_i32 s68, s68, 320")
    a("s_add_u32 s68, s68, 0x%x" % Z_OFF)
    a("s_waitcnt lgkmcnt(0)")
    a("s_barrier")
    stamp(a, 4, 15)
    a("s_cmp_eq_u32 s44, 0")
    a("s_cbranch_scc0 K1_KV_R1")
    for rh in range(2):
        if rh == 1: a.label("K1_KV_R1")
        items = []
        tiles = list(range(0, 7)) if rh == 0 else list(range(7, 13))
        for ti in tiles:
            dt, et = TRI[ti]
            for q_ in range(4):
                m = 0
                for p in range(64):
                    if head(16 * dt + (p >> 2)) == head(16 * et + 4 * q_ + (p & 3)): m |= 1 << p
                if m: items.append(("kv", ti, q_, m))
        if rh == 1:
            for dt in range(5): items.append(("z", 13 + dt, 0, 0xffff))
        for n, (kind, ti, q_, m) in enumerate(items):
            r = 16 + 2 * n
            if kind == "kv":
                a("ds_read2st64_b32 v[%d:%d], v9 offset0:%d offset1:%d" % (r, r + 1, ti * 4 + q_, 72 + ti * 4 + q_))
            else:
                a("ds_read2st64_b32 v[%d:%d], v10 offset0:%d offset1:%d" % (r, r + 1, ti * 4, 72 + ti * 4))
        assert 16 + 2 * len(items) <= 120
        for n, (kind, ti, q_, m) in enumerate(items):
            r = 16 + 2 * n
            rem = len(items) - 1 - n
            a("s_waitcnt lgkmcnt(%d)" % min(15, rem))
            a("v_add_f32 v%d, v%d, v%d" % (r, r, r + 1))
            a("s_mov_b32 exec_lo, 0x%x" % (m & 0xffffffff))
            a("s_mov_b32 exec_hi, 0x%x" % (m >> 32))
            if kind == "kv":
                off = ti * 1024 + q_ * 256
                a("s_add_u32 s70, s69, %d" % (off & ~4095))
                a("buffer_atomic_add_f32 v%d, v8, s[36:39], s70 offen offset:%d" % (r, off & 4095))
            else:
                a("buffer_atomic_add_f32 v%d, v8, s[36:39], s68 offen offset:%d" % (r, (ti - 13) * 64))
            a("s_mov_b64 exec, -1")
        stamp_flush(a, 15, 14, 2, 26, 8)
        a("s_endpgm")

    a.label("K1_PREP")
    srds(40)
    srd(a, 56, 16, 17, F * D * 2)
    srd(a, 60, 8, 9, D * D * 2)
    a("s_lshl_b32 s44, s42, 3")
    a("s_add_u32 s44, s44, s26")
    a("v_mov_b32 v4, 0"); a("v_mov_b32 v5, 0"); a("v_mov_b32 v6, 0"); a("v_mov_b32 v7, 0")
    a("v_lshlrev_b32 v8, 4, v1")
    a("s_cmp_lt_u32 s44, %d" % (ZERO_BYTES // 1024))
    a("s_cbranch_scc0 K1_PREP_NZ")
    a("s_lshl_b32 s45, s44, 10")
    a("s_add_u32 s45, s45, 0x%x" % KV_OFF)
    a("buffer_store_dwordx4 v[4:7], v8, s[36:39], s45 offen sc0 sc1")
    a("s_waitcnt vmcnt(0)")
    a.label("K1_PREP_NZ")
    a("v_mov_b32 v9, 0")
    a("v_mov_b32 v10, 1")
    a("s_mov_b64 exec, 1")
    a("buffer_atomic_add v10, v9, s[52:55], 0 offen sc1")
    a("s_mov_b64 exec, -1")
    a("v_lshrrev_b32 v2, 3, v1")
    a("v_mul_u32_u24 v2, 1280, v2")
    a("v_and_b32 v3, 7, v1")
    a("v_lshl_add_u32 v10, v3, 4, v2")
    for i in range(1, 4): a("v_add_u32 v%d, %d, v10" % (10 + i, i * 8 * 1280))
    a("v_lshrrev_b32 v2, 4, v1")
    a("v_and_b32 v3, 15, v1")
    a("v_lshrrev_b32 v3, 2, v3")
    a("v_lshl_add_u32 v2, v2, 2, v3")
    a("v_lshlrev_b32 v2, 7, v2")
    a("v_and_b32 v3, 3, v1")
    a("v_lshl_add_u32 v14, v3, 3, v2")
    a("s_mul_i32 s46, s26, 12288")
    a("v_add_u32 v14, s46, v14")
    def prep_batch(tasks, lbl):
        skip = []
        for n, (sr, total, nks, rnd, dst) in enumerate(tasks):
            a("s_add_u32 s%d, s44, %d" % (64 + n, 128 * rnd))
            a("s_cmp_lt_u32 s%d, %d" % (64 + n, total))
            a("s_cselect_b32 s%d, s%d, 0" % (64 + n, 64 + n))
            a("s_cselect_b32 s%d, 1, 0" % (80 + n))
            a("s_mul_hi_u32 s%d, s%d, %d" % (68 + n, 64 + n, (1 << 32) // 10 + 1))
            a("s_mul_i32 s72, s%d, 10" % (68 + n))
            a("s_sub_u32 s%d, s%d, s72" % (64 + n, 64 + n))
            a("s_mul_i32 s72, s%d, %d" % (68 + n, 32 * 1280))
            a("s_lshl_b32 s73, s%d, 7" % (64 + n))
            a("s_add_u32 s72, s72, s73")
            for i in range(4):
                a("s_add_u32 m0, s46, %d" % (n * 4096 + i * 1024))
                a("s_nop 0")
                a("buffer_load_dwordx4 v%d, s[%d:%d], s72 offen lds" % (10 + i, sr, sr + 3))
        for n, (sr, total, nks, rnd, dst) in enumerate(tasks):
            a("s_waitcnt vmcnt(%d)" % (4 * (len(tasks) - 1 - n) + 4 * n))
            for j in range(4):
                for h in range(2):
                    r = 16 + j * 4 + h * 2
                    a("ds_read_b64_tr_b16 v[%d:%d], v14 offset:%d" % (r, r + 1, n * 4096 + h * 2048 + j * 32))
            a("s_lshl_b32 s72, s%d, 2" % (64 + n))
            a("s_mul_i32 s72, s72, %d" % nks)
            a("s_add_u32 s72, s72, s%d" % (68 + n))
            a("s_lshl_b32 s72, s72, 10")
            a("s_add_u32 s72, s72, 0x%x" % dst)
            a("s_cmp_eq_u32 s%d, 1" % (80 + n))
            a("s_cselect_b32 s72, s72, 0x%x" % JUNK_OFF)
            a("s_waitcnt lgkmcnt(0)")
            for j in range(4):
                a("buffer_store_dwordx4 v[%d:%d], v8, s[36:39], s72 offen %s" % (16 + j * 4, 16 + j * 4 + 3, ST_FLAGS))
                if j < 3: a("s_add_u32 s72, s72, %d" % (nks * 1024))
            a("s_nop 1")
        a("s_waitcnt vmcnt(0)")
    prep_batch([(56, 540, 54, 0, BF_OFF), (56, 540, 54, 1, BF_OFF), (56, 540, 54, 2, BF_OFF)], "b0")
    prep_batch([(56, 540, 54, 3, BF_OFF), (56, 540, 54, 4, BF_OFF), (60, 200, 20, 0, WOF_OFF)], "b1")
    prep_batch([(60, 200, 20, 1, WOF_OFF)], "b2")
    a("v_mov_b32 v9, 4")
    a("v_mov_b32 v10, 1")
    a("s_mov_b64 exec, 1")
    a("buffer_atomic_add v10, v9, s[52:55], 0 offen sc1")
    a("s_mov_b64 exec, -1")
    stamp_flush(a, 40, 41, 2, 26, 8)
    a.label("K1_END")
    a("s_endpgm")
    a.end_kernel(name, 256, 96)

K2_ATT = 20480
K2_EX  = 4 * K2_ATT
K2_TAB = K2_EX + 4 * 17 * 1024
K2_LDS = K2_TAB + 8192

def gen_k2(a, name, code_bytes):
    TS_CUR[0] = 0x40000
    a.begin_kernel(name)
    a("s_cmp_ge_u32 s2, 256")
    a("s_cbranch_scc1 K2_END")
    a("s_load_dwordx2 s[20:21], s[0:1], 64")
    a("s_load_dwordx2 s[24:25], s[0:1], 80")
    a("v_lshrrev_b32 v2, 6, v0")
    a("v_and_b32 v1, 63, v0")
    a("v_readfirstlane_b32 s26, v2")
    stamp(a, 0, 15)
    a("s_and_b32 s40, s2, 7")
    a("s_lshr_b32 s41, s2, 3")
    a("s_and_b32 s42, s40, 3")
    a("s_lshl_b32 s42, s42, 3")
    a("s_and_b32 s43, s41, 7")
    a("s_add_u32 s42, s42, s43")
    a("s_lshr_b32 s43, s40, 2")
    a("s_lshl_b32 s43, s43, 2")
    a("s_lshr_b32 s44, s41, 3")
    a("s_add_u32 s43, s43, s44")
    a("v_lshlrev_b32 v2, 4, v1")
    a("v_lshlrev_b32 v3, 2, v1")
    a("v_and_b32 v4, 15, v1")
    a("v_lshrrev_b32 v5, 4, v1")
    a("s_lshl_b32 s45, s42, 2")
    a("s_mul_i32 s46, s43, 5")
    a("s_waitcnt lgkmcnt(0)")
    srd(a, 36, 24, 25, WS_SIZE)
    srd(a, 28, 20, 21, S * D * 2)
    a("s_lshl_b32 s47, s45, 6")
    a("s_add_u32 s47, s47, 0x%x" % G_OFF)
    a("v_lshlrev_b32 v6, 2, v4")
    a("s_cmp_ge_u32 s26, 4")
    a("s_cbranch_scc1 K2_ATT")

    code_prefetch(a, name, "K2_END", code_bytes, 7, 8, 90, 26)
    if L2PF2:
        a("v_lshlrev_b32 v7, 7, v1")
        a("s_and_b32 s50, s40, 3")
        a("s_lshl_b32 s50, s50, 5")
        a("s_add_u32 s50, s50, s41")
        a("s_mul_i32 s50, s50, %d" % (74 * 1024))
        a("s_mul_i32 s51, s26, %d" % (148 * 128))
        a("s_add_u32 s50, s50, s51")
        if AF_OFF: a("s_add_u32 s50, s50, 0x%x" % AF_OFF)
        a("s_lshr_b32 s51, s40, 2")
        a("s_mul_i32 s52, s51, %d" % (20 * 54 * 1024))
        a("s_mul_i32 s53, s41, %d" % (270 * 128))
        a("s_add_u32 s52, s52, s53")
        a("s_mul_i32 s53, s26, %d" % (68 * 128))
        a("s_add_u32 s52, s52, s53")
        a("s_add_u32 s52, s52, 0x%x" % BF_OFF)
        a("buffer_load_dword v8, v7, s[36:39], s52 offen %s" % PF_FLAGS)
        a("v_min_u32 v9, 3, v1")
        a("v_lshlrev_b32 v9, 7, v9")
        a("buffer_load_dword v8, v9, s[36:39], s52 offen offset:0 %s" % PF_FLAGS) if False else None
        a("s_add_u32 s52, s52, 8192")
        a("buffer_load_dword v8, v9, s[36:39], s52 offen %s" % PF_FLAGS)
        a("buffer_load_dword v8, v7, s[36:39], s50 offen %s" % PF_FLAGS)
        a("s_add_u32 s50, s50, 8192")
        a("buffer_load_dword v8, v7, s[36:39], s50 offen %s" % PF_FLAGS)
        a("s_add_u32 s50, s50, 8192")
        a("v_min_u32 v9, 19, v1")
        a("v_lshlrev_b32 v9, 7, v9")
        a("buffer_load_dword v8, v9, s[36:39], s50 offen %s" % PF_FLAGS)
    ACC = 16; BUF = 96; GV = 240
    for rt in range(4):
        a("buffer_load_dword v%d, v6, s[36:39], s47 offen offset:%d" % (GV + rt, rt * 64))
    a("s_mul_i32 s48, s26, 14")
    a("s_cmp_eq_u32 s26, 3")
    a("s_cselect_b32 s49, 1, 0")
    a("s_sub_u32 s48, s48, s49")
    a("s_cmp_ge_u32 s26, 2")
    a("s_cselect_b32 s61, 13, 14")
    a("s_lshr_b32 s49, s41, 3")
    a("s_mul_i32 s49, s49, 14")
    a("s_and_b32 s50, s41, 7")
    a("s_mul_i32 s50, s50, 7")
    a("s_add_u32 s49, s49, s50")
    a("s_lshr_b32 s60, s49, 2")
    if not K2_ROT: a("s_mov_b32 s60, 0")
    a("s_cmp_ge_u32 s60, s61")
    a("s_cselect_b32 s49, s61, 0")
    a("s_sub_u32 s60, s60, s49")
    a("s_lshl_b32 s60, s60, 10")
    a("s_lshl_b32 s61, s61, 10")
    for rt in range(4):
        a("s_add_u32 s50, s45, %d" % rt)
        a("s_mul_i32 s50, s50, 74")
        a("s_add_u32 s50, s50, s48")
        a("s_lshl_b32 s50, s50, 10")
        if AF_OFF: a("s_add_u32 s50, s50, 0x%x" % AF_OFF)
        a("v_add_u32 v%d, s50, v2" % (244 + rt))
    for nt in range(5):
        a("s_add_u32 s50, s46, %d" % nt)
        a("s_mul_i32 s50, s50, 54")
        a("s_add_u32 s50, s50, s48")
        a("s_lshl_b32 s50, s50, 10")
        a("s_add_u32 s50, s50, 0x%x" % BF_OFF)
        a("v_add_u32 v%d, s50, v2" % (248 + nt))
    def loads(slot):
        b = BUF + (slot % 4) * 36
        out = []
        for nt in range(5):
            out.append("buffer_load_dwordx4 v[%d:%d], v%d, s[36:39], s60 offen" % (b + 16 + nt * 4, b + 16 + nt * 4 + 3, 248 + nt))
        for rt in range(4):
            out.append("buffer_load_dwordx4 v[%d:%d], v%d, s[36:39], s60 offen" % (b + rt * 4, b + rt * 4 + 3, 244 + rt))
        out.append("s_add_u32 s60, s60, 1024")
        out.append("s_cmp_eq_u32 s60, s61")
        out.append("s_cselect_b32 s60, 0, s60")
        return out
    def adv(): pass
    if K2_NOMLP:
        a("s_branch K2_M_DONE")
    a("s_cmp_ge_u32 s26, 2")
    a("s_cbranch_scc1 K2_M_SK0")
    for t in loads(0): a(t)
    a.label("K2_M_SK0")
    for sl in (1, 2):
        for t in loads(sl): a(t)
    for r in range(ACC, ACC + 80): a("v_mov_b32 v%d, 0" % r)
    stamp(a, 2, 15)
    for sl in range(14):
        if sl + 3 <= 13:
            for t in loads(sl + 3): a(t)
            if (sl + 3) % 4 == 3: adv()
        a("s_waitcnt vmcnt(%d)" % (9 * min(3, 13 - sl)))
        if sl == 0:
            stamp(a, 1, 15)
            a("s_cmp_ge_u32 s26, 2")
            a("s_cbranch_scc1 K2_M_SK1")
        b = BUF + (sl % 4) * 36
        for nt in range(5):
            for rt in range(4):
                c = ACC + (rt * 5 + nt) * 4
                if K2_NOMFMA: continue
                a("v_mfma_f32_16x16x32_bf16 v[%d:%d], v[%d:%d], v[%d:%d], v[%d:%d]" % (c, c + 3, b + 16 + nt * 4, b + 19 + nt * 4, b + rt * 4, b + rt * 4 + 3, c, c + 3))
        if sl == 0:
            a.label("K2_M_SK1")
    a.label("K2_M_DONE")
    stamp(a, 3, 15)
    for rt in range(4):
        a("v_sub_f32 v%d, 1.0, v%d" % (244 + 2 * rt, GV + rt))
        a("v_sub_f32 v%d, 1.0, v%d" % (245 + 2 * rt, GV + rt))
    a("v_add_u32 v7, %d, v2" % K2_EX)
    a("v_add_u32 v10, %d, v2" % (K2_EX + 2 * 17 * 1024))
    a("s_nop 4")
    for ti in range(20):
        rt = ti // 5
        c = ACC + ti * 4
        for e in (0, 2):
            a("v_pk_mul_f32 v[%d:%d], v[%d:%d], v[%d:%d]" % (c + e, c + e + 1, c + e, c + e + 1, 244 + 2 * rt, 245 + 2 * rt))
    T = BUF
    O = T + 96
    for w in range(4):
        a("s_cmp_eq_u32 s26, %d" % w)
        a("s_cbranch_scc0 K2_X%d" % w)
        for rt in range(4):
            for nt in range(5):
                c = ACC + (rt * 5 + nt) * 4
                if rt == w:
                    if nt >= 3:
                        a("ds_write_b128 v%d, v[%d:%d] offset:%d" % (7 if rt < 2 else 10, c, c + 3, ((rt % 2) * 17 + 15 + nt - 3) * 1024))
                    continue
                idx = w if w < rt else w - 1
                a("ds_write_b128 v%d, v[%d:%d] offset:%d" % (7 if rt < 2 else 10, c, c + 3, ((rt % 2) * 17 + idx * 5 + nt) * 1024))
        for x in range(12):
            a("v_mov_b32 v%d, v%d" % (O + x, ACC + w * 20 + x))
        a("s_branch K2_XD")
        a.label("K2_X%d" % w)
    a.label("K2_XD")
    a("s_mul_i32 s50, s26, %d" % (17 * 1024))
    a("v_add_u32 v7, s50, v7")
    a("s_mul_i32 s50, s26, %d" % (5 * 1024))
    a("v_add_u32 v9, s50, v2")
    a("s_add_u32 s50, s45, s26")
    a("s_mul_i32 s50, s50, %d" % (16 * 1280))
    a("s_mul_i32 s51, s46, 32")
    a("s_add_u32 s50, s50, s51")
    a("v_mul_u32_u24 v8, 1280, v4")
    a("v_lshl_add_u32 v8, v5, 3, v8")
    a("s_waitcnt lgkmcnt(0)")
    a("s_barrier")
    stamp(a, 4, 15)
    def final(nts, own):
        srcs = []
        for idx in range(3):
            for k_, nt in enumerate(nts): srcs.append((k_, "v7", (idx * 5 + nt) * 1024))
        if own is None:
            for k_, nt in enumerate(nts): srcs.append((k_, "v7", (15 + nt - 3) * 1024))
        for u in range(4):
            for k_, nt in enumerate(nts): srcs.append((k_, "v9" if u < 2 else "v10", (u % 2) * K2_ATT + nt * 1024))
        a("v_add_u32 v10, %d, v9" % (2 * K2_ATT))
        for n, (k_, ar, off) in enumerate(srcs):
            a("ds_read_b128 v[%d:%d], %s offset:%d" % (T + n * 4, T + n * 4 + 3, ar, off))
        first = [own is not None] * len(nts)
        for n, (k_, ar, off) in enumerate(srcs):
            rem = len(srcs) - 1 - n
            if n % len(nts) == 0: a("s_waitcnt lgkmcnt(%d)" % max(0, min(15, rem - (len(nts) - 1))))
            o = O + k_ * 4; r = T + n * 4
            if not first[k_]:
                for x in range(4): a("v_mov_b32 v%d, v%d" % (o + x, r + x))
                first[k_] = True
            else:
                for e in (0, 2):
                    a("v_pk_add_f32 v[%d:%d], v[%d:%d], v[%d:%d]" % (o + e, o + e + 1, o + e, o + e + 1, r + e, r + e + 1))
        stamp(a, 6, 15) if own is None else stamp(a, 5, 15)
        for k_, nt in enumerate(nts):
            o = O + k_ * 4
            a("v_cvt_pk_bf16_f32 v%d, v%d, v%d" % (o, o, o + 1))
            a("v_cvt_pk_bf16_f32 v%d, v%d, v%d" % (o + 1, o + 2, o + 3))
            a("buffer_store_dwordx2 v[%d:%d], v8, s[28:31], s50 offen offset:%d" % (o, o + 1, nt * 32))
    final([0, 1, 2], O)
    stamp_flush(a, 15, 14, 2, 26, 8)
    a("s_endpgm")
    FINAL = final

    a.label("K2_ATT")
    if K2_NOATT:
        a("s_barrier")
        stamp_flush(a, 15, 14, 2, 26, 8)
        a("s_endpgm")
    a("s_setprio %d" % ATT_PRIO)
    a("s_sub_u32 s27, s26, 4")
    RAW = 16; KVA = 120; WO = [192, 212]; DT = 232
    MF = 16
    GV = 252
    vmq = []
    def vm_issue(tag, text):
        a(text); vmq.append(tag)
    def vm_need(tag):
        idx = [i for i, t in enumerate(vmq) if t == tag]
        if not idx: return
        last = max(idx)
        a("s_waitcnt vmcnt(%d)" % min(63, len(vmq) - 1 - last))
        del vmq[:last + 1]
    a("s_mul_i32 s48, s27, 640")
    a("s_add_u32 s48, s48, 0x%x" % Z_OFF)
    a("v_lshlrev_b32 v7, 4, v5")
    for sx in range(5):
        for ab in range(2):
            r = KVA + (sx * 2 + ab) * 4
            vm_issue("Z", "buffer_load_dwordx4 v[%d:%d], v7, s[36:39], s48 offen offset:%d" % (r, r + 3, sx * 128 + ab * 64))
    for rt in range(4):
        vm_issue("G", "buffer_load_dword v%d, v6, s[36:39], s47 offen offset:%d" % (GV + rt, rt * 64))
    a("s_mul_i32 s52, s27, %d" % K2_ATT)
    a("s_mul_i32 s53, s45, 74")
    a("s_mul_i32 s54, s27, 5")
    a("s_add_u32 s53, s53, s54")
    a("s_add_u32 s53, s53, 54")
    a("s_lshl_b32 s53, s53, 10")
    if AF_OFF: a("s_add_u32 s53, s53, 0x%x" % AF_OFF)
    for rt in range(4):
        for sx in range(5):
            a("s_add_u32 s54, s53, %d" % ((rt * 74 + sx) * 1024))
            a("s_add_u32 m0, s52, %d" % ((rt * 5 + sx) * 1024))
            a("s_nop 0")
            vm_issue("PQ", "buffer_load_dwordx4 v2, s[36:39], s54 offen lds")
    a("s_mul_i32 s49, s27, %d" % (26 * 1024))
    a("s_add_u32 s49, s49, 0x%x" % KV_OFF)
    for ti in range(26):
        vm_issue("KV", "buffer_load_dwordx4 v[%d:%d], v2, s[36:39], s49 offen offset:%d" % (RAW + ti * 4, RAW + ti * 4 + 3, (ti % 4) * 1024))
        if ti % 4 == 3: a("s_add_u32 s49, s49, 4096")
    a("s_mul_i32 s50, s46, 20")
    a("s_mul_i32 s51, s27, 5")
    a("s_add_u32 s50, s50, s51")
    a("s_lshl_b32 s50, s50, 10")
    a("s_add_u32 s50, s50, 0x%x" % WOF_OFF)
    def wo_loads(nt):
        a("s_add_u32 s51, s50, %d" % (nt * 20480))
        for p in range(4):
            r = WO[nt % 2] + p * 4
            vm_issue("WO%d" % nt, "buffer_load_dwordx4 v[%d:%d], v2, s[36:39], s51 offen offset:%d" % (r, r + 3, p * 1024))
        a("s_add_u32 s51, s51, 4096")
        r = WO[nt % 2] + 16
        vm_issue("WO%d" % nt, "buffer_load_dwordx4 v[%d:%d], v2, s[36:39], s51 offen" % (r, r + 3))
    wo_loads(0); wo_loads(1)
    stamp(a, 2, 15)
    a("s_lshl_b32 s55, s27, 11")
    a("s_add_u32 s55, s55, %d" % K2_TAB)
    a("v_add_u32 v9, s52, v2")
    a("v_lshlrev_b32 v10, 5, v4")
    a("v_add_u32 v10, s55, v10")
    a("v_lshl_add_u32 v8, v5, 4, v10")
    for gb in (1, 2, 3):
        a("v_cmp_le_u32 vcc, %d, v5" % gb)
        a("s_nop 1")
        a("v_cndmask_b32 v%d, 0, 4, vcc" % (10 + gb))
        a("v_add_u32 v%d, v10, v%d" % (10 + gb, 10 + gb))
    ZF = 160
    vm_need("Z")
    for sx in range(5):
        r0 = KVA + sx * 8
        o = ZF + sx * 4
        a("v_cvt_pk_bf16_f32 v%d, v%d, v%d" % (o, r0, r0 + 1))
        a("v_cvt_pk_bf16_f32 v%d, v%d, v%d" % (o + 1, r0 + 2, r0 + 3))
        a("v_cvt_pk_bf16_f32 v%d, v%d, v%d" % (o + 2, r0 + 4, r0 + 5))
        a("v_cvt_pk_bf16_f32 v%d, v%d, v%d" % (o + 3, r0 + 6, r0 + 7))
        for ab in range(2):
            m = 0
            for l in range(64):
                if (32 * sx + 16 * ab + 4 * (l >> 4)) // 20 == (l & 15): m |= 1 << l
            a("s_mov_b32 s56, 0x%x" % (m & 0xffffffff))
            a("s_mov_b32 s57, 0x%x" % (m >> 32))
            a("v_cndmask_b32 v%d, 0, v%d, s[56:57]" % (o + 2 * ab, o + 2 * ab))
            a("v_cndmask_b32 v%d, 0, v%d, s[56:57]" % (o + 2 * ab + 1, o + 2 * ab + 1))
    PB = [120, 140]; DEN = 232; SC = 180
    vm_need("PQ")
    def pq_reads(rt, b):
        return ["ds_read_b128 v[%d:%d], v9 offset:%d" % (b + sx * 4, b + sx * 4 + 3, (rt * 5 + sx) * 1024) for sx in range(5)]
    for t in pq_reads(0, PB[0]) + pq_reads(1, PB[1]): a(t)
    for rt in range(4):
        b = PB[rt % 2]
        a("s_waitcnt lgkmcnt(%d)" % (5 if rt < 3 else 0))
        for sx in range(5):
            c = DEN + rt * 4
            a("v_mfma_f32_16x16x32_bf16 v[%d:%d], v[%d:%d], v[%d:%d], %s" % (c, c + 3, ZF + sx * 4, ZF + sx * 4 + 3, b + sx * 4, b + sx * 4 + 3, "0" if sx == 0 else "v[%d:%d]" % (c, c + 3)))
        if rt + 2 < 4:
            for t in pq_reads(rt + 2, b): a(t)
    for t in pq_reads(0, PB[0]) + pq_reads(1, PB[1]): a(t)
    vm_need("G")
    a("s_mov_b32 s56, 0x%x" % EPS6)
    for rt in range(4):
        for r in range(4): a("v_add_f32 v%d, s56, v%d" % (DEN + rt * 4 + r, DEN + rt * 4 + r))
    for rt in range(4):
        for r in range(4): a("v_rcp_f32 v%d, v%d" % (DEN + rt * 4 + r, DEN + rt * 4 + r))
    a("s_nop 0")
    for rt in range(4):
        for r in range(4): a("v_mul_f32 v%d, v%d, v%d" % (DEN + rt * 4 + r, GV + rt, DEN + rt * 4 + r))
    a("s_mov_b32 exec_lo, -1")
    a("s_mov_b32 exec_hi, 0")
    for rt in range(4):
        a("ds_write_b128 v8, v[%d:%d] offset:%d" % (DEN + rt * 4, DEN + rt * 4 + 3, rt * 512))
    a("s_mov_b64 exec, -1")
    a("s_waitcnt lgkmcnt(0)")
    def sc_reads(rt, base):
        out = []
        for sx in range(5):
            for ab in range(2):
                hs = [(32 * sx + 16 * ab + 4 * g) // 20 for g in range(4)]
                h0 = hs[0]
                gb = next((g for g in range(4) if hs[g] > h0), None)
                areg = 10 if gb is None else 10 + gb
                out.append("ds_read_b32 v%d, v%d offset:%d" % (base + sx * 2 + ab, areg, rt * 512 + h0 * 4))
        return out
    SCB = [180, 232]
    TMP = [190, 242, 244, 246]
    for t in sc_reads(0, SCB[0]) + sc_reads(1, SCB[1]): a(t)
    for rt in range(4):
        b = PB[rt % 2]; sc0 = SCB[rt % 2]
        a("s_waitcnt lgkmcnt(%d)" % (10 if rt == 0 else (15 if rt < 3 else 5)))
        if rt >= 1:
            pass
        n = 0
        for sx in range(5):
            for x in range(4):
                r = b + sx * 4 + x; sc = sc0 + sx * 2 + (x // 2)
                t = TMP[n % 4]; n += 1
                a("v_lshlrev_b32 v%d, 16, v%d" % (t, r))
                a("v_and_b32 v%d, 0xffff0000, v%d" % (t + 1, r))
                a("v_mul_f32 v%d, v%d, v%d" % (t, sc, t))
                a("v_mul_f32 v%d, v%d, v%d" % (t + 1, sc, t + 1))
                a("v_cvt_pk_bf16_f32 v%d, v%d, v%d" % (r, t, t + 1))
        for sx in range(5):
            a("ds_write_b128 v9, v[%d:%d] offset:%d" % (b + sx * 4, b + sx * 4 + 3, (rt * 5 + sx) * 1024))
        if rt + 2 < 4:
            for t in pq_reads(rt + 2, b) + sc_reads(rt + 2, sc0): a(t)
    stamp(a, 5, 15)
    vm_need("KV")
    def ktile(DTl, ET):
        par = DTl // 5
        if ET // 5 != par: return None
        key = (DTl % 5, ET % 5)
        if key not in TRI: return None
        return RAW + (par * 13 + TRI.index(key)) * 4
    frags = []
    for DTl in range(10):
        for p in range(5):
            if ktile(DTl, 2 * p) is not None or ktile(DTl, 2 * p + 1) is not None:
                frags.append((DTl, p))
    assert len(frags) == 18
    a("s_waitcnt lgkmcnt(0)")
    for fi, (DTl, p) in enumerate(frags):
        o = KVA + fi * 4
        for half in range(2):
            t = ktile(DTl, 2 * p + half)
            if t is None:
                a("v_mov_b32 v%d, 0" % (o + 2 * half)); a("v_mov_b32 v%d, 0" % (o + 2 * half + 1))
            else:
                a("v_cvt_pk_bf16_f32 v%d, v%d, v%d" % (o + 2 * half, t, t + 1))
                a("v_cvt_pk_bf16_f32 v%d, v%d, v%d" % (o + 2 * half + 1, t + 2, t + 3))
    stamp(a, 1, 15)
    dset = 0
    pend = []
    def conv(item):
        d, nt, sx = item
        o = MF + (sx * 5 + nt) * 4
        a("v_cvt_pk_bf16_f32 v%d, v%d, v%d" % (o, d, d + 1))
        a("v_cvt_pk_bf16_f32 v%d, v%d, v%d" % (o + 1, d + 2, d + 3))
        a("v_cvt_pk_bf16_f32 v%d, v%d, v%d" % (o + 2, d + 4, d + 5))
        a("v_cvt_pk_bf16_f32 v%d, v%d, v%d" % (o + 3, d + 6, d + 7))
    a("s_nop 1")
    for nt in range(5):
        vm_need("WO%d" % nt)
        for sx in range(5):
            d = DT + (dset % 3) * 8
            dset += 1
            for half in range(2):
                DTl = 2 * sx + half
                first = True
                for fi, (D_, p) in enumerate(frags):
                    if D_ != DTl: continue
                    A_ = KVA + fi * 4; B_ = WO[nt % 2] + p * 4; c = d + half * 4
                    a("v_mfma_f32_16x16x32_bf16 v[%d:%d], v[%d:%d], v[%d:%d], %s" % (c, c + 3, A_, A_ + 3, B_, B_ + 3, "0" if first else "v[%d:%d]" % (c, c + 3)))
                    first = False
            pend.append((d, nt, sx))
            if len(pend) == 3:
                a("s_nop 1")
                conv(pend.pop(0))
        if nt + 2 <= 4: wo_loads(nt + 2)
    ACC = 120; PQB = [200, 220]
    for t in pq_reads(0, PQB[0]): a(t)
    a("s_nop 7")
    while pend:
        conv(pend.pop(0))
    stamp(a, 3, 15)
    for rt in range(4):
        b = PQB[rt % 2]
        if rt < 3:
            for t in pq_reads(rt + 1, PQB[(rt + 1) % 2]): a(t)
        a("s_waitcnt lgkmcnt(%d)" % (5 if rt < 3 else 0))
        for sx in range(5):
            for nt in range(5):
                c = ACC + (rt * 5 + nt) * 4; m = MF + (sx * 5 + nt) * 4
                a("v_mfma_f32_16x16x32_bf16 v[%d:%d], v[%d:%d], v[%d:%d], %s" % (c, c + 3, m, m + 3, b + sx * 4, b + sx * 4 + 3, "0" if sx == 0 else "v[%d:%d]" % (c, c + 3)))
        if rt >= 1:
            for nt in range(5):
                c = ACC + ((rt - 1) * 5 + nt) * 4
                a("ds_write_b128 v9, v[%d:%d] offset:%d" % (c, c + 3, ((rt - 1) * 5 + nt) * 1024))
    a("s_nop 7")
    for nt in range(5):
        c = ACC + (15 + nt) * 4
        a("ds_write_b128 v9, v[%d:%d] offset:%d" % (c, c + 3, (15 + nt) * 1024))
    a("s_mul_i32 s50, s27, %d" % (17 * 1024))
    a("s_add_u32 s50, s50, %d" % K2_EX)
    a("v_add_u32 v7, s50, v2")
    a("s_mul_i32 s50, s27, %d" % (5 * 1024))
    a("v_add_u32 v9, s50, v2")
    a("s_add_u32 s50, s45, s27")
    a("s_mul_i32 s50, s50, %d" % (16 * 1280))
    a("s_mul_i32 s51, s46, 32")
    a("s_add_u32 s50, s50, s51")
    a("v_mul_u32_u24 v8, 1280, v4")
    a("v_lshl_add_u32 v8, v5, 3, v8")
    a("s_waitcnt lgkmcnt(0)")
    stamp(a, 4, 15)
    a("s_barrier")
    FINAL([3, 4], None)
    stamp_flush(a, 15, 14, 2, 26, 8)
    a.label("K2_END")
    a("s_endpgm")
    a.end_kernel(name, 256, 96)

HDR = """; Kernarg layout for this problem (88 bytes, ptrs only, base s[0:1]):
;   offset   0: d_in[0] A_x  shape=(1, 2048, 640) dtype=bfloat16 strides=(2621440, 1280, 2) contiguous=True
;   offset   8: d_in[1] A_wqkv  shape=(640, 1920) dtype=bfloat16 strides=(3840, 2) contiguous=True
;   offset  16: d_in[2] A_wo  shape=(640, 640) dtype=bfloat16 strides=(1280, 2) contiguous=True
;   offset  24: d_in[3] B_x  shape=(1, 2048, 640) dtype=bfloat16 strides=(2621440, 1280, 2) contiguous=True
;   offset  32: d_in[4] B_w_gate  shape=(640, 1728) dtype=bfloat16 strides=(3456, 2) contiguous=True
;   offset  40: d_in[5] B_w_up  shape=(640, 1728) dtype=bfloat16 strides=(3456, 2) contiguous=True
;   offset  48: d_in[6] B_w_down  shape=(1728, 640) dtype=bfloat16 strides=(1280, 2) contiguous=True
;   offset  56: d_in[7] gate_w  shape=(640,) dtype=bfloat16 strides=(2,) contiguous=True
;   k1: x @ [wqkv | w_gate | w_up] with fused epilogues (phi(q), h = sigmoid(g)*u, kv/z partial sums via atomics, gate)
;   k2: [h | phi(q)/den] @ [w_down ; blockdiag(kv) @ wo] with the gated mix
"""
if __name__ == "__main__":
    if len(sys.argv) > 1 and sys.argv[1] == "stamp": STAMP = True
    for o in sys.argv[3:]:
        k_, v_ = o.split("=")
        globals()[k_] = eval(v_)
    a = Asm()
    gen_k1(a, "k1_kernel", 32768)
    gen_k2(a, "k2_kernel", 32768)
    hdr = HDR + "; @launch kernel=k1_kernel grid=(256,1,1) block=(512,1,1) lds=%d\n" % K1_LDS
    hdr += "; @launch kernel=k2_kernel grid=(256,1,1) block=(512,1,1) lds=%d" % K2_LDS
    out = sys.argv[2] if len(sys.argv) > 2 else "k12.s"
    open(out, "w").write(a.text(hdr))
```

```python
import sys
from asmlib import Asm

S, D, F = 2048, 640, 1728
AF_OFF  = 0x0000000
BF_OFF  = 0x0A00000
WOF_OFF = 0x0D00000
KV_OFF  = 0x0E00000
Z_OFF   = KV_OFF + 4 * 26 * 1024
ZERO_BYTES = 108 * 1024
G_OFF   = 0x0E40000
JUNK_OFF = 0x0F00000
WS_SIZE = 0x10000000
LOG2E = 0x3fb8aa3b
NLOG2E = 0xbfb8aa3b
EPS6 = 0x358637bd

def head(c): return c // 20

class LdsQ:
    def __init__(self, a):
        self.a = a; self.q = []
    def issue(self, tag, text):
        self.a(text); self.q.append(tag)
    def need(self, tags):
        idx = [i for i, t in enumerate(self.q) if t in tags]
        if not idx: return
        last = max(idx)
        n = len(self.q) - 1 - last
        assert n <= 15
        self.a("s_waitcnt lgkmcnt(%d)" % n)
        self.q = self.q[last + 1:]
    def drain(self):
        self.a("s_waitcnt lgkmcnt(0)"); self.q = []

B_SLOT, A_SLOT = 24576, 16384
A_BASE = 4 * B_SLOT
GW_BASE = A_BASE + 3 * A_SLOT
K1_LDS = GW_BASE + 2048

TRI = [(dt, et) for dt in range(5) for et in range(5) if abs(dt - et) <= 1 and
       any(head(16 * dt + x) == head(16 * et + y) for x in range(16) for y in range(16))]
assert len(TRI) == 13

def kv_tile_index(par, dt, et):
    return par * 13 + TRI.index((dt, et))

def srd(a, d, lo, hi, size):
    a("s_mov_b32 s%d, s%d" % (d, lo))
    a("s_mov_b32 s%d, s%d" % (d + 1, hi))
    a("s_mov_b32 s%d, 0x%x" % (d + 2, size))
    a("s_mov_b32 s%d, 0x00020000" % (d + 3))

def code_prefetch(a, label_start, label_end, nbytes, vtmp, vdst, stmp, swave):
    a("s_getpc_b64 s[%d:%d]" % (stmp, stmp + 1))
    here = a.newlabel("PC")
    a.label(here)
    a("s_sub_u32 s%d, s%d, %s-%s" % (stmp, stmp, here, label_start))
    a("s_subb_u32 s%d, s%d, 0" % (stmp + 1, stmp + 1))
    a("v_and_b32 v%d, 63, v0" % vtmp)
    a("v_lshlrev_b32 v%d, 7, v%d" % (vtmp, vtmp))
    a("s_lshl_b32 s%d, s%d, 13" % (stmp + 2, swave))
    a("v_add_u32 v%d, s%d, v%d" % (vtmp, stmp + 2, vtmp))
    n = (nbytes + 32767) // 32768
    for i in range(n):
        a("v_min_u32 v%d, %s-%s-4, v%d" % (vdst + 1, label_end, label_start, vtmp))
        a("global_load_dword v%d, v%d, s[%d:%d]" % (vdst, vdst + 1, stmp, stmp + 1))
        if i + 1 < n:
            a("v_add_u32 v%d, 32768, v%d" % (vtmp, vtmp))

TS_OFF = 0x0F80000
STAMP = False
def stamp(a, idx, v):
    if not STAMP: return
    a("s_memrealtime s[94:95]")
    a("s_waitcnt lgkmcnt(0)")
    a("v_writelane_b32 v%d, s94, %d" % (v, idx))
def stampc(a, idx, v):
    if not STAMP: return
    a("s_memtime s[94:95]")
    a("s_waitcnt lgkmcnt(0)")
    a("v_writelane_b32 v%d, s94, %d" % (v, idx))
TS_CUR = [0]
def stamp_flush(a, v, vt, swg, swave, nw, wsrd=36):
    if not STAMP: return
    a("s_waitcnt vmcnt(0)")
    stamp(a, 7, v)
    a("s_mul_i32 s94, s%d, %d" % (swg, nw))
    a("s_add_u32 s94, s94, s%d" % swave)
    a("s_lshl_b32 s94, s94, 7")
    a("s_add_u32 s94, s94, 0x%x" % (TS_OFF + TS_CUR[0]))
    a("s_mov_b32 exec_lo, -1")
    a("s_mov_b32 exec_hi, 0")
    a("v_and_b32 v%d, 63, v0" % vt)
    a("v_lshlrev_b32 v%d, 2, v%d" % (vt, vt))
    a("buffer_store_dword v%d, v%d, s[%d:%d], s94 offen" % (v, vt, wsrd, wsrd + 3))
    a("s_waitcnt vmcnt(0)")

PF_FLAGS = ""
L2PF = True
PF_DIST = 3
PF_K2CODE = True
PF_START = 0
PRETOUCH = False
K2_NOATT = False
K2_ROT = False
K2_NOMFMA = False
K2_NOMLP = False
ATT_PRIO = 3
ST_FLAGS = "sc0 sc1"
RAMP = False
L2PF2 = False
def gen_k1(a, name, code_bytes):
    a.begin_kernel(name)
    a("s_cmp_ge_u32 s2, 256")
    a("s_cbranch_scc1 K1_END")
    a("s_load_dwordx16 s[4:19], s[0:1], 0")
    a("s_load_dwordx4 s[20:23], s[0:1], 64")
    a("s_load_dwordx2 s[24:25], s[0:1], 80")
    a("v_lshrrev_b32 v2, 6, v0")
    a("v_and_b32 v1, 63, v0")
    a("v_readfirstlane_b32 s26, v2")
    a("s_and_b32 s40, s2, 7")
    a("s_lshr_b32 s41, s2, 3")
    a("s_and_b32 s42, s40, 1")
    a("s_lshl_b32 s42, s42, 3")
    a("s_and_b32 s43, s41, 7")
    a("s_add_u32 s42, s42, s43")
    a("s_lshr_b32 s43, s40, 1")
    a("s_lshl_b32 s43, s43, 2")
    a("s_lshr_b32 s44, s41, 3")
    a("s_add_u32 s43, s43, s44")
    def srds(sv):
        a("s_waitcnt lgkmcnt(0)")
        stamp(a, 0, sv)
        srd(a, 28, 4, 5, S * D * 2)
        srd(a, 36, 24, 25, WS_SIZE)
        srd(a, 48, 18, 19, D * 2)
        srd(a, 52, 22, 23, 256)
    a("s_cmp_eq_u32 s43, 15")
    a("s_cbranch_scc1 K1_PREP")
    a("s_cmp_lt_u32 s26, 4")
    a("s_cbranch_scc1 K1_COMPUTE")

    a.c("loader waves")
    a("s_sub_u32 s27, s26, 4")
    a("s_lshr_b32 s44, s27, 1")
    a("s_lshl_b32 s47, s27, 5")
    a("v_lshrrev_b32 v2, 3, v1")
    a("v_add_u32 v2, s47, v2")
    a("v_mul_u32_u24 v2, 1280, v2")
    a("v_lshrrev_b32 v3, 4, v1")
    a("v_and_b32 v5, 7, v1")
    a("v_xor_b32 v3, v3, v5")
    a("v_lshlrev_b32 v3, 4, v3")
    a("v_add_u32 v16, v2, v3")
    a("v_xor_b32 v3, 64, v3")
    a("v_add_u32 v17, v2, v3")
    a("v_add_u32 v17, 10240, v17")
    a("v_add_u32 v18, 20480, v16")
    a("v_add_u32 v19, 20480, v17")
    a("s_movk_i32 s45, 3456")
    a("s_mul_i32 s46, s43, 384")
    a("s_cmp_lt_u32 s43, 9")
    a("s_cbranch_scc1 K1_LD_GO")
    a("s_movk_i32 s45, 3840")
    a("s_sub_u32 s46, s43, 9")
    a("s_mul_i32 s46, s46, 320")
    a("s_mul_i32 s47, s44, 1280")
    a("s_add_u32 s46, s46, s47")
    a("s_add_u32 s46, s46, 1280")
    a("s_sub_u32 s47, s43, 13")
    a("s_lshl_b32 s47, s47, 1")
    a("s_add_u32 s47, s47, s44")
    a("s_mul_i32 s47, s47, 320")
    a("s_cmp_lt_u32 s43, 13")
    a("s_cselect_b32 s46, s46, s47")
    a("s_and_b32 s46, s46, 0xffffff80")
    a.label("K1_LD_GO")
    a("s_and_b32 s47, s27, 1")
    a("s_mul_i32 s47, s47, 384")
    a("s_mov_b32 s64, 2731")
    a("s_lshl_b32 s63, s45, 3")
    for c in range(768): assert (c * 2731) >> 16 == c // 24
    for i in range(3):
        a("v_add_u32 v2, s47, v1")
        if i: a("v_add_u32 v2, %d, v2" % (64 * i))
        a("v_mul_u32_u24 v3, s64, v2")
        a("v_lshrrev_b32 v3, 16, v3")
        a("v_mul_u32_u24 v5, 24, v3")
        a("v_sub_u32 v5, v2, v5")
        a("v_bfe_u32 v6, v3, 1, 1")
        a("v_lshrrev_b32 v7, 2, v3")
        a("v_and_or_b32 v6, v7, 2, v6")
        a("v_lshrrev_b32 v7, 1, v5")
        a("v_xor_b32 v7, v7, v6")
        a("v_lshlrev_b32 v7, 5, v7")
        a("v_and_b32 v5, 1, v5")
        a("v_lshl_add_u32 v7, v5, 4, v7")
        a("v_mul_lo_u32 v3, v3, s45")
        a("v_add_u32 v%d, v3, v7" % (10 + i))
        a("v_xor_b32 v7, 64, v7")
        a("v_add3_u32 v%d, v3, v7, s63" % (13 + i))
    a("s_mul_i32 s65, s42, %d" % (128 * 1280))
    a("s_lshl_b32 s66, s45, 5")
    a("s_mul_i32 s67, s27, 6144")
    a("s_lshl_b32 s68, s27, 12")
    a("s_add_u32 s68, s68, %d" % A_BASE)
    srds(20)
    srd(a, 32, 6, 7, D * 3 * D * 2)
    a("s_cmp_lt_u32 s43, 9")
    a("s_cbranch_scc0 K1_LD_GO2")
    a("s_cmp_eq_u32 s44, 0")
    a("s_cselect_b32 s32, s12, s14")
    a("s_cselect_b32 s33, s13, s15")
    a("s_mov_b32 s34, 0x%x" % (D * F * 2))
    a.label("K1_LD_GO2")
    issued = []
    def issueB(t):
        a("s_mul_i32 s69, s66, %d" % t)
        a("s_add_u32 s69, s69, s46")
        for i in range(6):
            a("s_add_u32 m0, s67, %d" % ((t % 4) * B_SLOT + i * 1024))
            a("s_nop 0")
            a("buffer_load_dwordx4 v%d, s[32:35], s69 offen lds" % (10 + i))
            issued.append(("B", t))
    def issueA(T):
        a("s_add_u32 s70, s65, %d" % (T * 128))
        for i in range(4):
            a("s_add_u32 m0, s68, %d" % ((T % 3) * A_SLOT + i * 1024))
            a("s_nop 0")
            a("buffer_load_dwordx4 v%d, s[28:31], s70 offen lds" % (16 + i))
            issued.append(("A", T))
    stamp(a, 2, 20)
    a("v_lshlrev_b32 v2, 4, v1")
    a("s_mov_b32 m0, %d" % GW_BASE)
    a("v_add_u32 v3, 1024, v2")
    a("buffer_load_dwordx4 v2, s[48:51], 0 offen lds")
    a("s_mov_b32 m0, %d" % (GW_BASE + 1024))
    a("s_nop 0")
    a("buffer_load_dwordx4 v3, s[48:51], 0 offen lds")
    stamp(a, 8, 20)
    issueA(0)
    stamp(a, 9, 20)
    issueB(0)
    stamp(a, 10, 20)
    issueB(1)
    stamp(a, 11, 20)
    nextB, nextA = 2, 1
    if not RAMP:
        issueA(1); issueB(2); issueB(3); issueA(2)
        nextB, nextA = 4, 3
    code_prefetch(a, name, "K2_END" if PF_K2CODE else "K1_END", 65536 if PF_K2CODE else code_bytes, 3, 4, 90, 27)
    issued.append(("P", 0))
    if PF_K2CODE: issued.append(("P", 0))
    stamp(a, 3, 20)
    for t in range(21):
        if t <= 19:
            last = max(i for i, x in enumerate(issued) if x == ("B", t) or x == ("A", t // 2))
            n = len(issued) - 1 - last
            a("s_waitcnt vmcnt(%d)" % n)
        a("s_barrier")
        if t == 0: stamp(a, 1, 20)
        while nextA <= 9 and nextA - 3 <= t // 2 - 1 and nextA <= t // 2 + 2 and (nextA * 2 <= nextB + 1 or nextB > 19):
            issueA(nextA); nextA += 1
        while nextB <= 19 and nextB - 4 <= t - 1:
            issueB(nextB); nextB += 1
            while nextA <= 9 and nextA - 3 <= t // 2 - 1 and nextA * 2 <= nextB:
                issueA(nextA); nextA += 1
    assert nextA == 10 and nextB == 20
    if PRETOUCH:
        a("v_mov_b32 v2, 4")
        a("buffer_load_dword v3, v2, s[52:55], 0 offen sc0 sc1")
        a("s_and_b32 s71, s2, 7")
        a("s_lshr_b32 s71, s71, 2")
        a("s_waitcnt vmcnt(0)")
        a("v_readfirstlane_b32 s72, v3")
        a("s_cmp_lt_u32 s41, 24")
        a("s_cbranch_scc0 K1_LD_END")
        a("s_cmp_eq_u32 s72, 128")
        a("s_cbranch_scc0 K1_LD_END")
        a("s_lshl_b32 s73, s41, 2")
        a("s_add_u32 s73, s73, s27")
        a("v_lshlrev_b32 v2, 7, v1")
        a("s_mul_i32 s74, s71, %d" % (20 * 54 * 1024))
        a("s_mul_i32 s75, s73, %d" % (90 * 128))
        a("s_add_u32 s74, s74, s75")
        a("s_add_u32 s74, s74, 0x%x" % BF_OFF)
        a("buffer_load_dword v4, v2, s[36:39], s74 offen")
        a("v_min_u32 v3, 25, v1")
        a("v_lshlrev_b32 v3, 7, v3")
        a("s_add_u32 s74, s74, 8192")
        a("buffer_load_dword v4, v3, s[36:39], s74 offen")
        a("s_mul_i32 s74, s71, %d" % (20 * 20 * 1024))
        a("s_mul_i32 s75, s73, %d" % (34 * 128))
        a("s_min_u32 s75, s75, %d" % ((3200 - 34) * 128))
        a("s_add_u32 s74, s74, s75")
        a("s_add_u32 s74, s74, 0x%x" % WOF_OFF)
        a("v_min_u32 v3, 33, v1")
        a("v_lshlrev_b32 v3, 7, v3")
        a("buffer_load_dword v4, v3, s[36:39], s74 offen")
        a("s_waitcnt vmcnt(0)")
        a.label("K1_LD_END")
    stamp_flush(a, 20, 21, 2, 26, 8)
    a("s_endpgm")

    a.label("K1_COMPUTE")
    a("s_lshr_b32 s44, s26, 1")
    a("s_and_b32 s45, s26, 1")
    a("s_cmp_lt_u32 s43, 9")
    a("s_cbranch_scc0 K1_C_QKV")
    a("s_mul_i32 s46, s45, 6")
    a("s_mov_b32 s47, 0")
    a("s_branch K1_C_GO")
    a.label("K1_C_QKV")
    a("s_cmp_lt_u32 s43, 13")
    a("s_cbranch_scc0 K1_C_Q")
    a("s_sub_u32 s46, s43, 9")
    a("s_and_b32 s46, s46, 1")
    a("s_lshl_b32 s46, s46, 1")
    a("s_mul_i32 s47, s45, 5")
    a("s_add_u32 s46, s46, s47")
    a("s_mov_b32 s47, 0")
    a("s_branch K1_C_GO")
    a.label("K1_C_Q")
    a("s_lshl_b32 s46, s45, 1")
    a("s_mul_i32 s47, s45, 12288")
    a.label("K1_C_GO")
    VA, VB = 2, 4
    a("v_and_b32 v8, 15, v1")
    a("v_lshrrev_b32 v9, 4, v1")
    a("s_lshl_b32 s64, s44, 13")
    a("s_add_u32 s64, s64, %d" % A_BASE)
    a("v_lshrrev_b32 v10, 1, v8")
    a("v_xor_b32 v11, v9, v10")
    a("v_lshlrev_b32 v11, 4, v11")
    a("v_lshl_add_u32 v11, v8, 7, v11")
    a("v_add_u32 v2, s64, v11")
    a("v_xor_b32 v3, 64, v2")
    a("v_lshrrev_b32 v10, 2, v8")
    a("v_lshl_add_u32 v11, v9, 3, v10")
    a("v_mul_u32_u24 v11, 384, v11")
    a("v_and_b32 v12, 3, v1")
    a("v_lshl_add_u32 v11, v12, 3, v11")
    a("v_add_u32 v11, s47, v11")
    a("v_lshrrev_b32 v12, 1, v10")
    a("v_and_b32 v13, 1, v9")
    a("v_lshl_or_b32 v12, v13, 1, v12")
    for jp in range(4):
        a("s_add_u32 s64, s46, %d" % jp)
        a("s_and_b32 s65, s64, 3")
        a("s_lshr_b32 s64, s64, 2")
        a("s_lshl_b32 s64, s64, 7")
        a("v_xor_b32 v13, s65, v12")
        a("v_lshl_add_u32 v13, v13, 5, v11")
        a("v_add_u32 v%d, s64, v13" % (VB + jp))
    def pf_setup():
        a("s_and_b32 s76, s26, 1")
        a("s_movk_i32 s77, 3456")
        a("s_mul_i32 s78, s43, 384")
        srd(a, 32, 6, 7, D * 3 * D * 2)
        a("s_cmp_lt_u32 s43, 9")
        a("s_cbranch_scc0 K1_PF_QKV")
        a("s_cmp_eq_u32 s76, 0")
        a("s_cselect_b32 s32, s12, s14")
        a("s_cselect_b32 s33, s13, s15")
        a("s_mov_b32 s34, 0x%x" % (D * F * 2))
        a("s_branch K1_PF_GO")
        a.label("K1_PF_QKV")
        a("s_movk_i32 s77, 3840")
        a("s_sub_u32 s78, s43, 9")
        a("s_mul_i32 s78, s78, 320")
        a("s_mul_i32 s79, s76, 1280")
        a("s_add_u32 s78, s78, s79")
        a("s_add_u32 s78, s78, 1280")
        a("s_sub_u32 s79, s43, 13")
        a("s_lshl_b32 s79, s79, 1")
        a("s_add_u32 s79, s79, s76")
        a("s_mul_i32 s79, s79, 320")
        a("s_cmp_lt_u32 s43, 13")
        a("s_cselect_b32 s78, s78, s79")
        a("s_and_b32 s78, s78, 0xffffff80")
        a.label("K1_PF_GO")
        a("v_min_u32 v10, 23, v1")
        a("v_mul_u32_u24 v11, 0x5556, v10")
        a("v_lshrrev_b32 v11, 16, v11")
        a("v_mul_u32_u24 v12, 3, v11")
        a("v_sub_u32 v12, v10, v12")
        a("s_and_b32 s80, s41, 7")
        a("s_lshl_b32 s80, s80, 3")
        a("v_add_u32 v11, s80, v11")
        a("v_mul_lo_u32 v11, v11, s77")
        a("v_lshl_add_u32 v12, v12, 7, v11")
        a("s_lshl_b32 s79, s77, 6")
        a("s_cmp_lt_u32 s26, 2")
        a("s_cbranch_scc1 K1_PF_W")
        a("s_lshr_b32 s80, s41, 3")
        a("s_lshl_b32 s80, s80, 5")
        a("s_lshl_b32 s81, s76, 4")
        a("s_add_u32 s80, s80, s81")
        a("v_min_u32 v10, 15, v1")
        a("v_add_u32 v10, s80, v10")
        a("v_mul_u32_u24 v12, 1280, v10")
        a("s_mul_i32 s78, s42, %d" % (128 * 1280))
        a("s_movk_i32 s79, 128")
        a("s_mov_b32 s32, s4")
        a("s_mov_b32 s33, s5")
        a("s_mov_b32 s34, 0x%x" % (S * D * 2))
        a.label("K1_PF_W")
        if PF_START:
            a("s_mul_i32 s80, s79, %d" % PF_START)
            a("s_add_u32 s78, s78, s80")
        for _ in range(PF_DIST - PF_START): pf_issue()
    def pf_issue():
        a("buffer_load_dword v13, v12, s[32:35], s78 offen %s" % PF_FLAGS)
        a("s_add_u32 s78, s78, s79")
    srds(15)
    if L2PF: pf_setup()
    for r in range(64, 256):
        a("v_mov_b32 v%d, 0" % r)
    a("s_mov_b32 s70, 0")
    a("s_mov_b32 s71, 10")
    a("s_mov_b32 s75, 49152")
    a("s_cmp_lt_u32 s43, 9")
    a("s_cbranch_scc1 K1_GU")
    a("s_cmp_lt_u32 s43, 13")
    a("s_cbranch_scc1 K1_KV")
    a("s_branch K1_Q")

    ABUF = [16, 32]
    BR = 48
    ACC = 64

    def mainloop(role):
        q = LdsQ(a)
        if role == "gu":
            frags = [(p, j) for j in range(6) for p in range(2)]
        elif role == "kv":
            frags = [(p, j) for j in range(5) for p in range(2)]
        else:
            frags = [(0, j) for j in range(10)]
        nB = len(frags)
        def accreg(fi, rt): return ACC + (fi * 4 + rt) * 4
        def readB(J, par):
            p, j = frags[J]
            slot = (par * nB + J) % 4
            out = []
            for h in range(2):
                off = (j >> 2) * 128 + h * 1536 + p * 12288 + par * B_SLOT
                r = BR + slot * 4 + h * 2
                out.append((("B", par, J), "ds_read_b64_tr_b16 v[%d:%d], v%d offset:%d" % (r, r + 1, VB + (j & 3), off)))
            return out
        def readA(par):
            out = []
            for rt in range(4):
                r = ABUF[par] + rt * 4
                out.append((("A", par, rt), "ds_read_b128 v[%d:%d], v%d offset:%d" % (r, r + 3, VA + par, rt * 2048)))
            if role == "q":
                out.append((("G", par), "ds_read_b128 v[%d:%d], v14 offset:%d" % (GW[par], GW[par] + 3, 64 * par)))
            return out
        def mfma(par, J, rt):
            slot = (par * nB + J) % 4
            b = BR + slot * 4; x = ABUF[par] + rt * 4; c = accreg(J, rt)
            if role == "kv":
                return "v_mfma_f32_16x16x32_bf16 v[%d:%d], v[%d:%d], v[%d:%d], v[%d:%d]" % (c, c + 3, x, x + 3, b, b + 3, c, c + 3)
            return "v_mfma_f32_16x16x32_bf16 v[%d:%d], v[%d:%d], v[%d:%d], v[%d:%d]" % (c, c + 3, b, b + 3, x, x + 3, c, c + 3)
        GW = [ACC + 176, ACC + 180]
        LOG = ACC + 160
        if role == "q":
            a("v_lshlrev_b32 v14, 4, v9")
            a("v_add_u32 v14, %d, v14" % GW_BASE)
        stamp(a, 2, 15)
        a("s_barrier")
        stamp(a, 1, 15)
        stampc(a, 5, 15)
        for tag, t in readA(0) + readB(0, 0) + readB(1, 0) + readB(2, 0):
            q.issue(tag, t)
        state0 = list(q.q)
        lbl = "K1_LOOP_" + role
        a.label(lbl)
        if STAMP:
            a("s_memrealtime s[94:95]")
            a("s_sub_u32 m0, 18, s71")
            a("s_waitcnt lgkmcnt(0)")
            a("v_writelane_b32 v15, s94, m0")
        if L2PF: pf_issue()
        for par in range(2):
            for J in range(nB):
                reads = []
                pre = []
                if J + 3 <= nB - 1:
                    reads = readB(J + 3, par)
                if J == nB - 2:
                    if role == "q":
                        for rt in range(4):
                            x = ABUF[par] + rt * 4; c = LOG + rt * 4
                            a("v_mfma_f32_16x16x32_bf16 v[%d:%d], v[%d:%d], v[%d:%d], v[%d:%d]" % (c, c + 3, GW[par], GW[par] + 3, x, x + 3, c, c + 3))
                    q.drain()
                    a("s_barrier")
                    if par == 1:
                        for jp in range(4):
                            a("v_add_u32 v%d, s75, v%d" % (VB + jp, VB + jp))
                        a("s_sub_u32 s75, 0, s75")
                        a("s_add_u32 s70, s70, 16384")
                        a("s_cmp_eq_u32 s70, 49152")
                        a("s_cselect_b32 s73, s70, 0")
                        a("s_sub_u32 s70, s70, s73")
                        a("s_sub_u32 s73, 16384, s73")
                        a("v_add_u32 v2, s73, v2")
                        a("v_add_u32 v3, s73, v3")
                        if role == "q": a("v_add_u32 v14, 128, v14")
                    reads = readA(1 - par) + readB(0, 1 - par) + readB(1, 1 - par)
                if J == nB - 1:
                    reads = readB(2, 1 - par)
                q.need([("B", par, J)] + ([("A", par, 0)] if J == 0 else []))
                for rt in range(4):
                    if J == 0 and rt > 0: q.need([("A", par, rt)])
                    a(mfma(par, J, rt))
                    k = (len(reads) + (3 - rt)) // (4 - rt) if reads else 0
                    for _ in range(k):
                        tag, t = reads.pop(0); q.issue(tag, t)
                assert not reads
        a("s_sub_u32 s71, s71, 1")
        a("s_cmp_lg_u32 s71, 0")
        a("s_cbranch_scc1 %s" % lbl)
        assert q.q == state0, (q.q, state0)
        a("s_waitcnt lgkmcnt(0) vmcnt(0)")
        a("s_nop 7")
        stamp(a, 3, 15)
        stampc(a, 6, 15)
        return accreg

    a.label("K1_GU")
    accreg = mainloop("gu")
    a("s_mov_b32 s64, 0x%x" % NLOG2E); a("s_mov_b32 s65, 0x%x" % NLOG2E)
    a("s_mov_b32 s66, 1.0"); a("s_mov_b32 s67, 1.0")
    a("s_lshl_b32 s68, s42, 3")
    a("s_lshl_b32 s69, s44, 2")
    a("s_add_u32 s68, s68, s69")
    a("s_mul_i32 s68, s68, 74")
    a("s_mul_i32 s69, s43, 6")
    a("s_add_u32 s68, s68, s69")
    a("s_mul_i32 s69, s45, 3")
    a("s_add_u32 s68, s68, s69")
    a("s_lshl_b32 s68, s68, 10")
    if AF_OFF: a("s_add_u32 s68, s68, 0x%x" % AF_OFF)
    a("v_lshlrev_b32 v8, 4, v1")
    blk = 0
    for rt in range(4):
        for jp in range(3):
            T = 16 + (blk % 2) * 16
            O = T + 8
            for half in range(2):
                j = 2 * jp + half
                gq = accreg(j * 2 + 0, rt); uq = accreg(j * 2 + 1, rt)
                for e in range(0, 4, 2):
                    t = T + half * 4 + e
                    a("v_pk_mul_f32 v[%d:%d], v[%d:%d], s[64:65]" % (t, t + 1, gq + e, gq + e + 1))
            for x in range(8): a("v_exp_f32 v%d, v%d" % (T + x, T + x))
            for x in range(0, 8, 2): a("v_pk_add_f32 v[%d:%d], v[%d:%d], s[66:67]" % (T + x, T + x + 1, T + x, T + x + 1))
            for x in range(8): a("v_rcp_f32 v%d, v%d" % (T + x, T + x))
            for half in range(2):
                j = 2 * jp + half
                uq = accreg(j * 2 + 1, rt)
                for e in range(0, 4, 2):
                    t = T + half * 4 + e
                    a("v_pk_mul_f32 v[%d:%d], v[%d:%d], v[%d:%d]" % (t, t + 1, t, t + 1, uq + e, uq + e + 1))
            for x in range(4):
                a("v_cvt_pk_bf16_f32 v%d, v%d, v%d" % (O + x, T + 2 * x, T + 2 * x + 1))
            a("s_add_u32 s69, s68, %d" % ((rt * 74 + jp) * 1024))
            a("buffer_store_dwordx4 v[%d:%d], v8, s[36:39], s69 offen %s" % (O, O + 3, ST_FLAGS))
            blk += 1
    stamp_flush(a, 15, 14, 2, 26, 8)
    a("s_endpgm")

    a.label("K1_Q")
    accreg = mainloop("q")
    a("s_mov_b32 s64, 0x%x" % LOG2E); a("s_mov_b32 s65, 0x%x" % LOG2E)
    a("s_mov_b32 s66, 0x%x" % EPS6); a("s_mov_b32 s67, 0x%x" % EPS6)
    a("s_lshl_b32 s68, s42, 3")
    a("s_lshl_b32 s69, s44, 2")
    a("s_add_u32 s68, s68, s69")
    a("s_lshl_b32 s74, s68, 6")
    a("s_mul_i32 s68, s68, 74")
    a("s_sub_u32 s69, s43, 13")
    a("s_mul_i32 s69, s69, 10")
    a("s_add_u32 s68, s68, s69")
    a("s_mul_i32 s69, s45, 5")
    a("s_add_u32 s68, s68, s69")
    a("s_add_u32 s68, s68, 54")
    a("s_lshl_b32 s68, s68, 10")
    if AF_OFF: a("s_add_u32 s68, s68, 0x%x" % AF_OFF)
    a("v_lshlrev_b32 v8, 4, v1")
    def phi_pairs(srcs, T):
        n = len(srcs)
        U = T + 2 * n
        for x, s in enumerate(srcs):
            a("v_pk_mul_f32 v[%d:%d], v[%d:%d], s[64:65]" % (T + 2 * x, T + 2 * x + 1, s, s + 1))
        for x in range(2 * n):
            a("v_exp_f32 v%d, v%d clamp" % (T + x, T + x))
        for x, s in enumerate(srcs):
            a("v_max_f32 v%d, 0, v%d" % (U + 2 * x, s))
            a("v_max_f32 v%d, 0, v%d" % (U + 2 * x + 1, s + 1))
        for x in range(n):
            a("v_pk_add_f32 v[%d:%d], v[%d:%d], v[%d:%d]" % (T + 2 * x, T + 2 * x + 1, T + 2 * x, T + 2 * x + 1, U + 2 * x, U + 2 * x + 1))
        for x in range(n):
            a("v_pk_add_f32 v[%d:%d], v[%d:%d], s[66:67]" % (T + 2 * x, T + 2 * x + 1, T + 2 * x, T + 2 * x + 1))
    blk = 0
    for rt in range(4):
        for jp in range(5):
            T = 16 + (blk % 2) * 20
            O = T + 16
            srcs = [accreg(2 * jp + half, rt) + e for half in range(2) for e in (0, 2)]
            phi_pairs(srcs, T)
            for x in range(4):
                a("v_cvt_pk_bf16_f32 v%d, v%d, v%d" % (O + x, T + 2 * x, T + 2 * x + 1))
            a("s_add_u32 s69, s68, %d" % ((rt * 74 + jp) * 1024))
            a("buffer_store_dwordx4 v[%d:%d], v8, s[36:39], s69 offen %s" % (O, O + 3, ST_FLAGS))
            blk += 1
    a("s_cmp_eq_u32 s43, 13")
    a("s_cbranch_scc0 K1_Q_END")
    a("s_cmp_eq_u32 s45, 0")
    a("s_cbranch_scc0 K1_Q_END")
    a("v_cmp_gt_u32 vcc, 16, v1")
    a("s_and_saveexec_b64 s[76:77], vcc")
    a("v_lshlrev_b32 v9, 2, v1")
    a("s_mov_b32 s64, 0x%x" % NLOG2E)
    a("s_add_u32 s74, s74, 0x%x" % G_OFF)
    for rt in range(4):
        c = ACC + 160 + rt * 4
        a("v_mul_f32 v%d, s64, v%d" % (16 + rt, c))
    for rt in range(4): a("v_exp_f32 v%d, v%d" % (16 + rt, 16 + rt))
    a("s_nop 0")
    for rt in range(4): a("v_add_f32 v%d, 1.0, v%d" % (16 + rt, 16 + rt))
    for rt in range(4): a("v_rcp_f32 v%d, v%d" % (16 + rt, 16 + rt))
    a("s_nop 0")
    for rt in range(4):
        a("buffer_store_dword v%d, v9, s[36:39], s74 offen offset:%d" % (16 + rt, rt * 64))
    a.label("K1_Q_END")
    a("s_mov_b64 exec, -1")
    stamp_flush(a, 15, 14, 2, 26, 8)
    a("s_endpgm")

    a.label("K1_KV")
    accreg = mainloop("kv")
    a("v_mov_b32 v9, 0")
    a("buffer_load_dword v10, v9, s[52:55], 0 offen sc0 sc1")
    a("s_mov_b32 s64, 0x%x" % LOG2E); a("s_mov_b32 s65, 0x%x" % LOG2E)
    a("s_mov_b32 s66, 0x%x" % EPS6); a("s_mov_b32 s67, 0x%x" % EPS6)
    def fragreg(p, rp, j): return accreg(j * 2 + p, 2 * rp)
    res = [accreg(fi, 1) for fi in range(10)] + [ACC + 160 + 4 * x for x in range(8)]
    ONES = 48
    for x in range(4): a("v_mov_b32 v%d, 0x3f803f80" % (ONES + x))
    def conv_ops(rp):
        global_lines = a.lines
        a.lines = []
        blk = 0
        for j in range(5):
            T = 16 + (blk % 2) * 16
            srcs = [accreg(j * 2, 2 * rp + half) + e for half in range(2) for e in (0, 2)]
            phi_pairs(srcs, T)
            o = fragreg(0, rp, j)
            for x in range(4):
                a("v_cvt_pk_bf16_f32 v%d, v%d, v%d" % (o + x, T + 2 * x, T + 2 * x + 1))
            s0 = accreg(j * 2 + 1, 2 * rp); s1 = accreg(j * 2 + 1, 2 * rp + 1)
            a("v_cvt_pk_bf16_f32 v%d, v%d, v%d" % (s0, s0, s0 + 1))
            a("v_cvt_pk_bf16_f32 v%d, v%d, v%d" % (s0 + 1, s0 + 2, s0 + 3))
            a("v_cvt_pk_bf16_f32 v%d, v%d, v%d" % (s0 + 2, s1, s1 + 1))
            a("v_cvt_pk_bf16_f32 v%d, v%d, v%d" % (s0 + 3, s1 + 2, s1 + 3))
            blk += 1
        out = a.lines
        a.lines = global_lines
        return [l.strip() for l in out]
    def kv_mfmas(rp):
        out = []
        for ti, (dt, et) in enumerate(TRI):
            c = res[ti]
            A_ = fragreg(1, rp, et); B_ = fragreg(0, rp, dt)
            out.append("v_mfma_f32_16x16x32_bf16 v[%d:%d], v[%d:%d], v[%d:%d], %s" % (c, c + 3, A_, A_ + 3, B_, B_ + 3, "0" if rp == 0 else "v[%d:%d]" % (c, c + 3)))
        for dt in range(5):
            c = res[13 + dt]
            B_ = fragreg(0, rp, dt)
            out.append("v_mfma_f32_16x16x32_bf16 v[%d:%d], v[%d:%d], v[%d:%d], %s" % (c, c + 3, ONES, ONES + 3, B_, B_ + 3, "0" if rp == 0 else "v[%d:%d]" % (c, c + 3)))
        return out
    for t in conv_ops(0): a(t)
    a("s_nop 1")
    c1 = conv_ops(1); m0_ = kv_mfmas(0)
    per = len(c1) // len(m0_)
    for k_, m_ in enumerate(m0_):
        a(m_)
        for t in c1[k_ * per:(k_ + 1) * per]: a(t)
    for t in c1[len(m0_) * per:]: a(t)
    a("s_barrier")
    a("s_nop 0")
    for t in kv_mfmas(1): a(t)
    a("s_lshl_b32 s68, s45, 1")
    a("s_add_u32 s68, s68, s44")
    a("s_mul_i32 s68, s68, %d" % (18 * 1024))
    a("v_lshlrev_b32 v8, 4, v1")
    a("v_add_u32 v8, s68, v8")
    a.label("K1_KV_POLL")
    a("s_waitcnt vmcnt(0)")
    a("v_readfirstlane_b32 s69, v10")
    a("s_cmp_ge_u32 s69, 128")
    a("s_cbranch_scc1 K1_KV_GO")
    a("buffer_load_dword v10, v9, s[52:55], 0 offen sc0 sc1")
    a("s_branch K1_KV_POLL")
    a.label("K1_KV_GO")
    a("s_nop 3")
    for ti in range(18):
        c = res[ti]
        a("ds_write_b128 v8, v[%d:%d] offset:%d" % (c, c + 3, ti * 1024))
    a("s_mul_i32 s68, s45, %d" % (36 * 1024))
    a("v_lshlrev_b32 v8, 2, v1")
    a("v_add_u32 v9, s68, v8")
    a("v_lshl_add_u32 v10, v1, 4, s68")
    a("s_sub_u32 s68, s43, 9")
    a("s_mul_i32 s69, s68, 26")
    a("s_mul_i32 s70, s45, 13")
    a("s_add_u32 s69, s69, s70")
    a("s_lshl_b32 s69, s69, 10")
    a("s_add_u32 s69, s69, 0x%x" % KV_OFF)
    a("s_lshl_b32 s68, s68, 1")
    a("s_add_u32 s68, s68, s45")
    a("s_mul_i32 s68, s68, 320")
    a("s_add_u32 s68, s68, 0x%x" % Z_OFF)
    a("s_waitcnt lgkmcnt(0)")
    a("s_barrier")
    stamp(a, 4, 15)
    a("s_cmp_eq_u32 s44, 0")
    a("s_cbranch_scc0 K1_KV_R1")
    for rh in range(2):
        if rh == 1: a.label("K1_KV_R1")
        items = []
        tiles = list(range(0, 7)) if rh == 0 else list(range(7, 13))
        for ti in tiles:
            dt, et = TRI[ti]
            for q_ in range(4):
                m = 0
                for p in range(64):
                    if head(16 * dt + (p >> 2)) == head(16 * et + 4 * q_ + (p & 3)): m |= 1 << p
                if m: items.append(("kv", ti, q_, m))
        if rh == 1:
            for dt in range(5): items.append(("z", 13 + dt, 0, 0xffff))
        for n, (kind, ti, q_, m) in enumerate(items):
            r = 16 + 2 * n
            if kind == "kv":
                a("ds_read2st64_b32 v[%d:%d], v9 offset0:%d offset1:%d" % (r, r + 1, ti * 4 + q_, 72 + ti * 4 + q_))
            else:
                a("ds_read2st64_b32 v[%d:%d], v10 offset0:%d offset1:%d" % (r, r + 1, ti * 4, 72 + ti * 4))
        assert 16 + 2 * len(items) <= 120
        for n, (kind, ti, q_, m) in enumerate(items):
            r = 16 + 2 * n
            rem = len(items) - 1 - n
            a("s_waitcnt lgkmcnt(%d)" % min(15, rem))
            a("v_add_f32 v%d, v%d, v%d" % (r, r, r + 1))
            a("s_mov_b32 exec_lo, 0x%x" % (m & 0xffffffff))
            a("s_mov_b32 exec_hi, 0x%x" % (m >> 32))
            if kind == "kv":
                off = ti * 1024 + q_ * 256
                a("s_add_u32 s70, s69, %d" % (off & ~4095))
                a("buffer_atomic_add_f32 v%d, v8, s[36:39], s70 offen offset:%d" % (r, off & 4095))
            else:
                a("buffer_atomic_add_f32 v%d, v8, s[36:39], s68 offen offset:%d" % (r, (ti - 13) * 64))
            a("s_mov_b64 exec, -1")
        stamp_flush(a, 15, 14, 2, 26, 8)
        a("s_endpgm")

    a.label("K1_PREP")
    srds(40)
    srd(a, 56, 16, 17, F * D * 2)
    srd(a, 60, 8, 9, D * D * 2)
    a("s_lshl_b32 s44, s42, 3")
    a("s_add_u32 s44, s44, s26")
    a("v_mov_b32 v4, 0"); a("v_mov_b32 v5, 0"); a("v_mov_b32 v6, 0"); a("v_mov_b32 v7, 0")
    a("v_lshlrev_b32 v8, 4, v1")
    a("s_cmp_lt_u32 s44, %d" % (ZERO_BYTES // 1024))
    a("s_cbranch_scc0 K1_PREP_NZ")
    a("s_lshl_b32 s45, s44, 10")
    a("s_add_u32 s45, s45, 0x%x" % KV_OFF)
    a("buffer_store_dwordx4 v[4:7], v8, s[36:39], s45 offen sc0 sc1")
    a("s_waitcnt vmcnt(0)")
    a.label("K1_PREP_NZ")
    a("v_mov_b32 v9, 0")
    a("v_mov_b32 v10, 1")
    a("s_mov_b64 exec, 1")
    a("buffer_atomic_add v10, v9, s[52:55], 0 offen sc1")
    a("s_mov_b64 exec, -1")
    a("v_lshrrev_b32 v2, 3, v1")
    a("v_mul_u32_u24 v2, 1280, v2")
    a("v_and_b32 v3, 7, v1")
    a("v_lshl_add_u32 v10, v3, 4, v2")
    for i in range(1, 4): a("v_add_u32 v%d, %d, v10" % (10 + i, i * 8 * 1280))
    a("v_lshrrev_b32 v2, 4, v1")
    a("v_and_b32 v3, 15, v1")
    a("v_lshrrev_b32 v3, 2, v3")
    a("v_lshl_add_u32 v2, v2, 2, v3")
    a("v_lshlrev_b32 v2, 7, v2")
    a("v_and_b32 v3, 3, v1")
    a("v_lshl_add_u32 v14, v3, 3, v2")
    a("s_mul_i32 s46, s26, 12288")
    a("v_add_u32 v14, s46, v14")
    def prep_batch(tasks, lbl):
        skip = []
        for n, (sr, total, nks, rnd, dst) in enumerate(tasks):
            a("s_add_u32 s%d, s44, %d" % (64 + n, 128 * rnd))
            a("s_cmp_lt_u32 s%d, %d" % (64 + n, total))
            a("s_cselect_b32 s%d, s%d, 0" % (64 + n, 64 + n))
            a("s_cselect_b32 s%d, 1, 0" % (80 + n))
            a("s_mul_hi_u32 s%d, s%d, %d" % (68 + n, 64 + n, (1 << 32) // 10 + 1))
            a("s_mul_i32 s72, s%d, 10" % (68 + n))
            a("s_sub_u32 s%d, s%d, s72" % (64 + n, 64 + n))
            a("s_mul_i32 s72, s%d, %d" % (68 + n, 32 * 1280))
            a("s_lshl_b32 s73, s%d, 7" % (64 + n))
            a("s_add_u32 s72, s72, s73")
            for i in range(4):
                a("s_add_u32 m0, s46, %d" % (n * 4096 + i * 1024))
                a("s_nop 0")
                a("buffer_load_dwordx4 v%d, s[%d:%d], s72 offen lds" % (10 + i, sr, sr + 3))
        for n, (sr, total, nks, rnd, dst) in enumerate(tasks):
            a("s_waitcnt vmcnt(%d)" % (4 * (len(tasks) - 1 - n) + 4 * n))
            for j in range(4):
                for h in range(2):
                    r = 16 + j * 4 + h * 2
                    a("ds_read_b64_tr_b16 v[%d:%d], v14 offset:%d" % (r, r + 1, n * 4096 + h * 2048 + j * 32))
            a("s_lshl_b32 s72, s%d, 2" % (64 + n))
            a("s_mul_i32 s72, s72, %d" % nks)
            a("s_add_u32 s72, s72, s%d" % (68 + n))
            a("s_lshl_b32 s72, s72, 10")
            a("s_add_u32 s72, s72, 0x%x" % dst)
            a("s_cmp_eq_u32 s%d, 1" % (80 + n))
            a("s_cselect_b32 s72, s72, 0x%x" % JUNK_OFF)
            a("s_waitcnt lgkmcnt(0)")
            for j in range(4):
                a("buffer_store_dwordx4 v[%d:%d], v8, s[36:39], s72 offen %s" % (16 + j * 4, 16 + j * 4 + 3, ST_FLAGS))
                if j < 3: a("s_add_u32 s72, s72, %d" % (nks * 1024))
            a("s_nop 1")
        a("s_waitcnt vmcnt(0)")
    prep_batch([(56, 540, 54, 0, BF_OFF), (56, 540, 54, 1, BF_OFF), (56, 540, 54, 2, BF_OFF)], "b0")
    prep_batch([(56, 540, 54, 3, BF_OFF), (56, 540, 54, 4, BF_OFF), (60, 200, 20, 0, WOF_OFF)], "b1")
    prep_batch([(60, 200, 20, 1, WOF_OFF)], "b2")
    a("v_mov_b32 v9, 4")
    a("v_mov_b32 v10, 1")
    a("s_mov_b64 exec, 1")
    a("buffer_atomic_add v10, v9, s[52:55], 0 offen sc1")
    a("s_mov_b64 exec, -1")
    stamp_flush(a, 40, 41, 2, 26, 8)
    a.label("K1_END")
    a("s_endpgm")
    a.end_kernel(name, 256, 96)

K2_ATT = 20480
K2_EX  = 4 * K2_ATT
K2_TAB = K2_EX + 4 * 17 * 1024
K2_LDS = K2_TAB + 8192

def gen_k2(a, name, code_bytes):
    TS_CUR[0] = 0x40000
    a.begin_kernel(name)
    a("s_cmp_ge_u32 s2, 256")
    a("s_cbranch_scc1 K2_END")
    a("s_load_dwordx2 s[20:21], s[0:1], 64")
    a("s_load_dwordx2 s[24:25], s[0:1], 80")
    a("v_lshrrev_b32 v2, 6, v0")
    a("v_and_b32 v1, 63, v0")
    a("v_readfirstlane_b32 s26, v2")
    stamp(a, 0, 15)
    a("s_and_b32 s40, s2, 7")
    a("s_lshr_b32 s41, s2, 3")
    a("s_and_b32 s42, s40, 3")
    a("s_lshl_b32 s42, s42, 3")
    a("s_and_b32 s43, s41, 7")
    a("s_add_u32 s42, s42, s43")
    a("s_lshr_b32 s43, s40, 2")
    a("s_lshl_b32 s43, s43, 2")
    a("s_lshr_b32 s44, s41, 3")
    a("s_add_u32 s43, s43, s44")
    a("v_lshlrev_b32 v2, 4, v1")
    a("v_lshlrev_b32 v3, 2, v1")
    a("v_and_b32 v4, 15, v1")
    a("v_lshrrev_b32 v5, 4, v1")
    a("s_lshl_b32 s45, s42, 2")
    a("s_mul_i32 s46, s43, 5")
    a("s_waitcnt lgkmcnt(0)")
    srd(a, 36, 24, 25, WS_SIZE)
    srd(a, 28, 20, 21, S * D * 2)
    a("s_lshl_b32 s47, s45, 6")
    a("s_add_u32 s47, s47, 0x%x" % G_OFF)
    a("v_lshlrev_b32 v6, 2, v4")
    a("s_cmp_ge_u32 s26, 4")
    a("s_cbranch_scc1 K2_ATT")

    code_prefetch(a, name, "K2_END", code_bytes, 7, 8, 90, 26)
    if L2PF2:
        a("v_lshlrev_b32 v7, 7, v1")
        a("s_and_b32 s50, s40, 3")
        a("s_lshl_b32 s50, s50, 5")
        a("s_add_u32 s50, s50, s41")
        a("s_mul_i32 s50, s50, %d" % (74 * 1024))
        a("s_mul_i32 s51, s26, %d" % (148 * 128))
        a("s_add_u32 s50, s50, s51")
        if AF_OFF: a("s_add_u32 s50, s50, 0x%x" % AF_OFF)
        a("s_lshr_b32 s51, s40, 2")
        a("s_mul_i32 s52, s51, %d" % (20 * 54 * 1024))
        a("s_mul_i32 s53, s41, %d" % (270 * 128))
        a("s_add_u32 s52, s52, s53")
        a("s_mul_i32 s53, s26, %d" % (68 * 128))
        a("s_add_u32 s52, s52, s53")
        a("s_add_u32 s52, s52, 0x%x" % BF_OFF)
        a("buffer_load_dword v8, v7, s[36:39], s52 offen %s" % PF_FLAGS)
        a("v_min_u32 v9, 3, v1")
        a("v_lshlrev_b32 v9, 7, v9")
        a("buffer_load_dword v8, v9, s[36:39], s52 offen offset:0 %s" % PF_FLAGS) if False else None
        a("s_add_u32 s52, s52, 8192")
        a("buffer_load_dword v8, v9, s[36:39], s52 offen %s" % PF_FLAGS)
        a("buffer_load_dword v8, v7, s[36:39], s50 offen %s" % PF_FLAGS)
        a("s_add_u32 s50, s50, 8192")
        a("buffer_load_dword v8, v7, s[36:39], s50 offen %s" % PF_FLAGS)
        a("s_add_u32 s50, s50, 8192")
        a("v_min_u32 v9, 19, v1")
        a("v_lshlrev_b32 v9, 7, v9")
        a("buffer_load_dword v8, v9, s[36:39], s50 offen %s" % PF_FLAGS)
    ACC = 16; BUF = 96; GV = 240
    for rt in range(4):
        a("buffer_load_dword v%d, v6, s[36:39], s47 offen offset:%d" % (GV + rt, rt * 64))
    a("s_mul_i32 s48, s26, 14")
    a("s_cmp_eq_u32 s26, 3")
    a("s_cselect_b32 s49, 1, 0")
    a("s_sub_u32 s48, s48, s49")
    a("s_cmp_ge_u32 s26, 2")
    a("s_cselect_b32 s61, 13, 14")
    a("s_lshr_b32 s49, s41, 3")
    a("s_mul_i32 s49, s49, 14")
    a("s_and_b32 s50, s41, 7")
    a("s_mul_i32 s50, s50, 7")
    a("s_add_u32 s49, s49, s50")
    a("s_lshr_b32 s60, s49, 2")
    if not K2_ROT: a("s_mov_b32 s60, 0")
    a("s_cmp_ge_u32 s60, s61")
    a("s_cselect_b32 s49, s61, 0")
    a("s_sub_u32 s60, s60, s49")
    a("s_lshl_b32 s60, s60, 10")
    a("s_lshl_b32 s61, s61, 10")
    for rt in range(4):
        a("s_add_u32 s50, s45, %d" % rt)
        a("s_mul_i32 s50, s50, 74")
        a("s_add_u32 s50, s50, s48")
        a("s_lshl_b32 s50, s50, 10")
        if AF_OFF: a("s_add_u32 s50, s50, 0x%x" % AF_OFF)
        a("v_add_u32 v%d, s50, v2" % (244 + rt))
    for nt in range(5):
        a("s_add_u32 s50, s46, %d" % nt)
        a("s_mul_i32 s50, s50, 54")
        a("s_add_u32 s50, s50, s48")
        a("s_lshl_b32 s50, s50, 10")
        a("s_add_u32 s50, s50, 0x%x" % BF_OFF)
        a("v_add_u32 v%d, s50, v2" % (248 + nt))
    def loads(slot):
        b = BUF + (slot % 4) * 36
        out = []
        for nt in range(5):
            out.append("buffer_load_dwordx4 v[%d:%d], v%d, s[36:39], s60 offen" % (b + 16 + nt * 4, b + 16 + nt * 4 + 3, 248 + nt))
        for rt in range(4):
            out.append("buffer_load_dwordx4 v[%d:%d], v%d, s[36:39], s60 offen" % (b + rt * 4, b + rt * 4 + 3, 244 + rt))
        out.append("s_add_u32 s60, s60, 1024")
        out.append("s_cmp_eq_u32 s60, s61")
        out.append("s_cselect_b32 s60, 0, s60")
        return out
    def adv(): pass
    if K2_NOMLP:
        a("s_branch K2_M_DONE")
    a("s_cmp_ge_u32 s26, 2")
    a("s_cbranch_scc1 K2_M_SK0")
    for t in loads(0): a(t)
    a.label("K2_M_SK0")
    for sl in (1, 2):
        for t in loads(sl): a(t)
    for r in range(ACC, ACC + 80): a("v_mov_b32 v%d, 0" % r)
    stamp(a, 2, 15)
    for sl in range(14):
        if sl + 3 <= 13:
            for t in loads(sl + 3): a(t)
            if (sl + 3) % 4 == 3: adv()
        a("s_waitcnt vmcnt(%d)" % (9 * min(3, 13 - sl)))
        if sl == 0:
            stamp(a, 1, 15)
            a("s_cmp_ge_u32 s26, 2")
            a("s_cbranch_scc1 K2_M_SK1")
        b = BUF + (sl % 4) * 36
        for nt in range(5):
            for rt in range(4):
                c = ACC + (rt * 5 + nt) * 4
                if K2_NOMFMA: continue
                a("v_mfma_f32_16x16x32_bf16 v[%d:%d], v[%d:%d], v[%d:%d], v[%d:%d]" % (c, c + 3, b + 16 + nt * 4, b + 19 + nt * 4, b + rt * 4, b + rt * 4 + 3, c, c + 3))
        if sl == 0:
            a.label("K2_M_SK1")
    a.label("K2_M_DONE")
    stamp(a, 3, 15)
    for rt in range(4):
        a("v_sub_f32 v%d, 1.0, v%d" % (244 + 2 * rt, GV + rt))
        a("v_sub_f32 v%d, 1.0, v%d" % (245 + 2 * rt, GV + rt))
    a("v_add_u32 v7, %d, v2" % K2_EX)
    a("v_add_u32 v10, %d, v2" % (K2_EX + 2 * 17 * 1024))
    a("s_nop 4")
    for ti in range(20):
        rt = ti // 5
        c = ACC + ti * 4
        for e in (0, 2):
            a("v_pk_mul_f32 v[%d:%d], v[%d:%d], v[%d:%d]" % (c + e, c + e + 1, c + e, c + e + 1, 244 + 2 * rt, 245 + 2 * rt))
    T = BUF
    O = T + 96
    for w in range(4):
        a("s_cmp_eq_u32 s26, %d" % w)
        a("s_cbranch_scc0 K2_X%d" % w)
        for rt in range(4):
            for nt in range(5):
                c = ACC + (rt * 5 + nt) * 4
                if rt == w:
                    if nt >= 3:
                        a("ds_write_b128 v%d, v[%d:%d] offset:%d" % (7 if rt < 2 else 10, c, c + 3, ((rt % 2) * 17 + 15 + nt - 3) * 1024))
                    continue
                idx = w if w < rt else w - 1
                a("ds_write_b128 v%d, v[%d:%d] offset:%d" % (7 if rt < 2 else 10, c, c + 3, ((rt % 2) * 17 + idx * 5 + nt) * 1024))
        for x in range(12):
            a("v_mov_b32 v%d, v%d" % (O + x, ACC + w * 20 + x))
        a("s_branch K2_XD")
        a.label("K2_X%d" % w)
    a.label("K2_XD")
    a("s_mul_i32 s50, s26, %d" % (17 * 1024))
    a("v_add_u32 v7, s50, v7")
    a("s_mul_i32 s50, s26, %d" % (5 * 1024))
    a("v_add_u32 v9, s50, v2")
    a("s_add_u32 s50, s45, s26")
    a("s_mul_i32 s50, s50, %d" % (16 * 1280))
    a("s_mul_i32 s51, s46, 32")
    a("s_add_u32 s50, s50, s51")
    a("v_mul_u32_u24 v8, 1280, v4")
    a("v_lshl_add_u32 v8, v5, 3, v8")
    a("s_waitcnt lgkmcnt(0)")
    a("s_barrier")
    stamp(a, 4, 15)
    def final(nts, own):
        srcs = []
        for idx in range(3):
            for k_, nt in enumerate(nts): srcs.append((k_, "v7", (idx * 5 + nt) * 1024))
        if own is None:
            for k_, nt in enumerate(nts): srcs.append((k_, "v7", (15 + nt - 3) * 1024))
        for u in range(4):
            for k_, nt in enumerate(nts): srcs.append((k_, "v9" if u < 2 else "v10", (u % 2) * K2_ATT + nt * 1024))
        a("v_add_u32 v10, %d, v9" % (2 * K2_ATT))
        for n, (k_, ar, off) in enumerate(srcs):
            a("ds_read_b128 v[%d:%d], %s offset:%d" % (T + n * 4, T + n * 4 + 3, ar, off))
        first = [own is not None] * len(nts)
        for n, (k_, ar, off) in enumerate(srcs):
            rem = len(srcs) - 1 - n
            if n % len(nts) == 0: a("s_waitcnt lgkmcnt(%d)" % max(0, min(15, rem - (len(nts) - 1))))
            o = O + k_ * 4; r = T + n * 4
            if not first[k_]:
                for x in range(4): a("v_mov_b32 v%d, v%d" % (o + x, r + x))
                first[k_] = True
            else:
                for e in (0, 2):
                    a("v_pk_add_f32 v[%d:%d], v[%d:%d], v[%d:%d]" % (o + e, o + e + 1, o + e, o + e + 1, r + e, r + e + 1))
        stamp(a, 6, 15) if own is None else stamp(a, 5, 15)
        for k_, nt in enumerate(nts):
            o = O + k_ * 4
            a("v_cvt_pk_bf16_f32 v%d, v%d, v%d" % (o, o, o + 1))
            a("v_cvt_pk_bf16_f32 v%d, v%d, v%d" % (o + 1, o + 2, o + 3))
            a("buffer_store_dwordx2 v[%d:%d], v8, s[28:31], s50 offen offset:%d" % (o, o + 1, nt * 32))
    final([0, 1, 2], O)
    stamp_flush(a, 15, 14, 2, 26, 8)
    a("s_endpgm")
    FINAL = final

    a.label("K2_ATT")
    if K2_NOATT:
        a("s_barrier")
        stamp_flush(a, 15, 14, 2, 26, 8)
        a("s_endpgm")
    a("s_setprio %d" % ATT_PRIO)
    a("s_sub_u32 s27, s26, 4")
    RAW = 16; KVA = 120; WO = [192, 212]; DT = 232
    MF = 16
    GV = 252
    vmq = []
    def vm_issue(tag, text):
        a(text); vmq.append(tag)
    def vm_need(tag):
        idx = [i for i, t in enumerate(vmq) if t == tag]
        if not idx: return
        last = max(idx)
        a("s_waitcnt vmcnt(%d)" % min(63, len(vmq) - 1 - last))
        del vmq[:last + 1]
    a("s_mul_i32 s48, s27, 640")
    a("s_add_u32 s48, s48, 0x%x" % Z_OFF)
    a("v_lshlrev_b32 v7, 4, v5")
    for sx in range(5):
        for ab in range(2):
            r = KVA + (sx * 2 + ab) * 4
            vm_issue("Z", "buffer_load_dwordx4 v[%d:%d], v7, s[36:39], s48 offen offset:%d" % (r, r + 3, sx * 128 + ab * 64))
    for rt in range(4):
        vm_issue("G", "buffer_load_dword v%d, v6, s[36:39], s47 offen offset:%d" % (GV + rt, rt * 64))
    a("s_mul_i32 s52, s27, %d" % K2_ATT)
    a("s_mul_i32 s53, s45, 74")
    a("s_mul_i32 s54, s27, 5")
    a("s_add_u32 s53, s53, s54")
    a("s_add_u32 s53, s53, 54")
    a("s_lshl_b32 s53, s53, 10")
    if AF_OFF: a("s_add_u32 s53, s53, 0x%x" % AF_OFF)
    for rt in range(4):
        for sx in range(5):
            a("s_add_u32 s54, s53, %d" % ((rt * 74 + sx) * 1024))
            a("s_add_u32 m0, s52, %d" % ((rt * 5 + sx) * 1024))
            a("s_nop 0")
            vm_issue("PQ", "buffer_load_dwordx4 v2, s[36:39], s54 offen lds")
    a("s_mul_i32 s49, s27, %d" % (26 * 1024))
    a("s_add_u32 s49, s49, 0x%x" % KV_OFF)
    for ti in range(26):
        vm_issue("KV", "buffer_load_dwordx4 v[%d:%d], v2, s[36:39], s49 offen offset:%d" % (RAW + ti * 4, RAW + ti * 4 + 3, (ti % 4) * 1024))
        if ti % 4 == 3: a("s_add_u32 s49, s49, 4096")
    a("s_mul_i32 s50, s46, 20")
    a("s_mul_i32 s51, s27, 5")
    a("s_add_u32 s50, s50, s51")
    a("s_lshl_b32 s50, s50, 10")
    a("s_add_u32 s50, s50, 0x%x" % WOF_OFF)
    def wo_loads(nt):
        a("s_add_u32 s51, s50, %d" % (nt * 20480))
        for p in range(4):
            r = WO[nt % 2] + p * 4
            vm_issue("WO%d" % nt, "buffer_load_dwordx4 v[%d:%d], v2, s[36:39], s51 offen offset:%d" % (r, r + 3, p * 1024))
        a("s_add_u32 s51, s51, 4096")
        r = WO[nt % 2] + 16
        vm_issue("WO%d" % nt, "buffer_load_dwordx4 v[%d:%d], v2, s[36:39], s51 offen" % (r, r + 3))
    wo_loads(0); wo_loads(1)
    stamp(a, 2, 15)
    a("s_lshl_b32 s55, s27, 11")
    a("s_add_u32 s55, s55, %d" % K2_TAB)
    a("v_add_u32 v9, s52, v2")
    a("v_lshlrev_b32 v10, 5, v4")
    a("v_add_u32 v10, s55, v10")
    a("v_lshl_add_u32 v8, v5, 4, v10")
    for gb in (1, 2, 3):
        a("v_cmp_le_u32 vcc, %d, v5" % gb)
        a("s_nop 1")
        a("v_cndmask_b32 v%d, 0, 4, vcc" % (10 + gb))
        a("v_add_u32 v%d, v10, v%d" % (10 + gb, 10 + gb))
    ZF = 160
    vm_need("Z")
    for sx in range(5):
        r0 = KVA + sx * 8
        o = ZF + sx * 4
        a("v_cvt_pk_bf16_f32 v%d, v%d, v%d" % (o, r0, r0 + 1))
        a("v_cvt_pk_bf16_f32 v%d, v%d, v%d" % (o + 1, r0 + 2, r0 + 3))
        a("v_cvt_pk_bf16_f32 v%d, v%d, v%d" % (o + 2, r0 + 4, r0 + 5))
        a("v_cvt_pk_bf16_f32 v%d, v%d, v%d" % (o + 3, r0 + 6, r0 + 7))
        for ab in range(2):
            m = 0
            for l in range(64):
                if (32 * sx + 16 * ab + 4 * (l >> 4)) // 20 == (l & 15): m |= 1 << l
            a("s_mov_b32 s56, 0x%x" % (m & 0xffffffff))
            a("s_mov_b32 s57, 0x%x" % (m >> 32))
            a("v_cndmask_b32 v%d, 0, v%d, s[56:57]" % (o + 2 * ab, o + 2 * ab))
            a("v_cndmask_b32 v%d, 0, v%d, s[56:57]" % (o + 2 * ab + 1, o + 2 * ab + 1))
    PB = [120, 140]; DEN = 232; SC = 180
    vm_need("PQ")
    def pq_reads(rt, b):
        return ["ds_read_b128 v[%d:%d], v9 offset:%d" % (b + sx * 4, b + sx * 4 + 3, (rt * 5 + sx) * 1024) for sx in range(5)]
    for t in pq_reads(0, PB[0]) + pq_reads(1, PB[1]): a(t)
    for rt in range(4):
        b = PB[rt % 2]
        a("s_waitcnt lgkmcnt(%d)" % (5 if rt < 3 else 0))
        for sx in range(5):
            c = DEN + rt * 4
            a("v_mfma_f32_16x16x32_bf16 v[%d:%d], v[%d:%d], v[%d:%d], %s" % (c, c + 3, ZF + sx * 4, ZF + sx * 4 + 3, b + sx * 4, b + sx * 4 + 3, "0" if sx == 0 else "v[%d:%d]" % (c, c + 3)))
        if rt + 2 < 4:
            for t in pq_reads(rt + 2, b): a(t)
    for t in pq_reads(0, PB[0]) + pq_reads(1, PB[1]): a(t)
    vm_need("G")
    a("s_mov_b32 s56, 0x%x" % EPS6)
    for rt in range(4):
        for r in range(4): a("v_add_f32 v%d, s56, v%d" % (DEN + rt * 4 + r, DEN + rt * 4 + r))
    for rt in range(4):
        for r in range(4): a("v_rcp_f32 v%d, v%d" % (DEN + rt * 4 + r, DEN + rt * 4 + r))
    a("s_nop 0")
    for rt in range(4):
        for r in range(4): a("v_mul_f32 v%d, v%d, v%d" % (DEN + rt * 4 + r, GV + rt, DEN + rt * 4 + r))
    a("s_mov_b32 exec_lo, -1")
    a("s_mov_b32 exec_hi, 0")
    for rt in range(4):
        a("ds_write_b128 v8, v[%d:%d] offset:%d" % (DEN + rt * 4, DEN + rt * 4 + 3, rt * 512))
    a("s_mov_b64 exec, -1")
    a("s_waitcnt lgkmcnt(0)")
    def sc_reads(rt, base):
        out = []
        for sx in range(5):
            for ab in range(2):
                hs = [(32 * sx + 16 * ab + 4 * g) // 20 for g in range(4)]
                h0 = hs[0]
                gb = next((g for g in range(4) if hs[g] > h0), None)
                areg = 10 if gb is None else 10 + gb
                out.append("ds_read_b32 v%d, v%d offset:%d" % (base + sx * 2 + ab, areg, rt * 512 + h0 * 4))
        return out
    SCB = [180, 232]
    TMP = [190, 242, 244, 246]
    for t in sc_reads(0, SCB[0]) + sc_reads(1, SCB[1]): a(t)
    for rt in range(4):
        b = PB[rt % 2]; sc0 = SCB[rt % 2]
        a("s_waitcnt lgkmcnt(%d)" % (10 if rt == 0 else (15 if rt < 3 else 5)))
        if rt >= 1:
            pass
        n = 0
        for sx in range(5):
            for x in range(4):
                r = b + sx * 4 + x; sc = sc0 + sx * 2 + (x // 2)
                t = TMP[n % 4]; n += 1
                a("v_lshlrev_b32 v%d, 16, v%d" % (t, r))
                a("v_and_b32 v%d, 0xffff0000, v%d" % (t + 1, r))
                a("v_mul_f32 v%d, v%d, v%d" % (t, sc, t))
                a("v_mul_f32 v%d, v%d, v%d" % (t + 1, sc, t + 1))
                a("v_cvt_pk_bf16_f32 v%d, v%d, v%d" % (r, t, t + 1))
        for sx in range(5):
            a("ds_write_b128 v9, v[%d:%d] offset:%d" % (b + sx * 4, b + sx * 4 + 3, (rt * 5 + sx) * 1024))
        if rt + 2 < 4:
            for t in pq_reads(rt + 2, b) + sc_reads(rt + 2, sc0): a(t)
    stamp(a, 5, 15)
    vm_need("KV")
    def ktile(DTl, ET):
        par = DTl // 5
        if ET // 5 != par: return None
        key = (DTl % 5, ET % 5)
        if key not in TRI: return None
        return RAW + (par * 13 + TRI.index(key)) * 4
    frags = []
    for DTl in range(10):
        for p in range(5):
            if ktile(DTl, 2 * p) is not None or ktile(DTl, 2 * p + 1) is not None:
                frags.append((DTl, p))
    assert len(frags) == 18
    a("s_waitcnt lgkmcnt(0)")
    for fi, (DTl, p) in enumerate(frags):
        o = KVA + fi * 4
        for half in range(2):
            t = ktile(DTl, 2 * p + half)
            if t is None:
                a("v_mov_b32 v%d, 0" % (o + 2 * half)); a("v_mov_b32 v%d, 0" % (o + 2 * half + 1))
            else:
                a("v_cvt_pk_bf16_f32 v%d, v%d, v%d" % (o + 2 * half, t, t + 1))
                a("v_cvt_pk_bf16_f32 v%d, v%d, v%d" % (o + 2 * half + 1, t + 2, t + 3))
    stamp(a, 1, 15)
    dset = 0
    pend = []
    def conv(item):
        d, nt, sx = item
        o = MF + (sx * 5 + nt) * 4
        a("v_cvt_pk_bf16_f32 v%d, v%d, v%d" % (o, d, d + 1))
        a("v_cvt_pk_bf16_f32 v%d, v%d, v%d" % (o + 1, d + 2, d + 3))
        a("v_cvt_pk_bf16_f32 v%d, v%d, v%d" % (o + 2, d + 4, d + 5))
        a("v_cvt_pk_bf16_f32 v%d, v%d, v%d" % (o + 3, d + 6, d + 7))
    a("s_nop 1")
    for nt in range(5):
        vm_need("WO%d" % nt)
        for sx in range(5):
            d = DT + (dset % 3) * 8
            dset += 1
            for half in range(2):
                DTl = 2 * sx + half
                first = True
                for fi, (D_, p) in enumerate(frags):
                    if D_ != DTl: continue
                    A_ = KVA + fi * 4; B_ = WO[nt % 2] + p * 4; c = d + half * 4
                    a("v_mfma_f32_16x16x32_bf16 v[%d:%d], v[%d:%d], v[%d:%d], %s" % (c, c + 3, A_, A_ + 3, B_, B_ + 3, "0" if first else "v[%d:%d]" % (c, c + 3)))
                    first = False
            pend.append((d, nt, sx))
            if len(pend) == 3:
                a("s_nop 1")
                conv(pend.pop(0))
        if nt + 2 <= 4: wo_loads(nt + 2)
    ACC = 120; PQB = [200, 220]
    for t in pq_reads(0, PQB[0]): a(t)
    a("s_nop 7")
    while pend:
        conv(pend.pop(0))
    stamp(a, 3, 15)
    for rt in range(4):
        b = PQB[rt % 2]
        if rt < 3:
            for t in pq_reads(rt + 1, PQB[(rt + 1) % 2]): a(t)
        a("s_waitcnt lgkmcnt(%d)" % (5 if rt < 3 else 0))
        for sx in range(5):
            for nt in range(5):
                c = ACC + (rt * 5 + nt) * 4; m = MF + (sx * 5 + nt) * 4
                a("v_mfma_f32_16x16x32_bf16 v[%d:%d], v[%d:%d], v[%d:%d], %s" % (c, c + 3, m, m + 3, b + sx * 4, b + sx * 4 + 3, "0" if sx == 0 else "v[%d:%d]" % (c, c + 3)))
        if rt >= 1:
            for nt in range(5):
                c = ACC + ((rt - 1) * 5 + nt) * 4
                a("ds_write_b128 v9, v[%d:%d] offset:%d" % (c, c + 3, ((rt - 1) * 5 + nt) * 1024))
    a("s_nop 7")
    for nt in range(5):
        c = ACC + (15 + nt) * 4
        a("ds_write_b128 v9, v[%d:%d] offset:%d" % (c, c + 3, (15 + nt) * 1024))
    a("s_mul_i32 s50, s27, %d" % (17 * 1024))
    a("s_add_u32 s50, s50, %d" % K2_EX)
    a("v_add_u32 v7, s50, v2")
    a("s_mul_i32 s50, s27, %d" % (5 * 1024))
    a("v_add_u32 v9, s50, v2")
    a("s_add_u32 s50, s45, s27")
    a("s_mul_i32 s50, s50, %d" % (16 * 1280))
    a("s_mul_i32 s51, s46, 32")
    a("s_add_u32 s50, s50, s51")
    a("v_mul_u32_u24 v8, 1280, v4")
    a("v_lshl_add_u32 v8, v5, 3, v8")
    a("s_waitcnt lgkmcnt(0)")
    stamp(a, 4, 15)
    a("s_barrier")
    FINAL([3, 4], None)
    stamp_flush(a, 15, 14, 2, 26, 8)
    a.label("K2_END")
    a("s_endpgm")
    a.end_kernel(name, 256, 96)

HDR = """; Kernarg layout for this problem (88 bytes, ptrs only, base s[0:1]):
;   offset   0: d_in[0] A_x  shape=(1, 2048, 640) dtype=bfloat16 strides=(2621440, 1280, 2) contiguous=True
;   offset   8: d_in[1] A_wqkv  shape=(640, 1920) dtype=bfloat16 strides=(3840, 2) contiguous=True
;   offset  16: d_in[2] A_wo  shape=(640, 640) dtype=bfloat16 strides=(1280, 2) contiguous=True
;   offset  24: d_in[3] B_x  shape=(1, 2048, 640) dtype=bfloat16 strides=(2621440, 1280, 2) contiguous=True
;   offset  32: d_in[4] B_w_gate  shape=(640, 1728) dtype=bfloat16 strides=(3456, 2) contiguous=True
;   offset  40: d_in[5] B_w_up  shape=(640, 1728) dtype=bfloat16 strides=(3456, 2) contiguous=True
;   offset  48: d_in[6] B_w_down  shape=(1728, 640) dtype=bfloat16 strides=(1280, 2) contiguous=True
;   offset  56: d_in[7] gate_w  shape=(640,) dtype=bfloat16 strides=(2,) contiguous=True
;   k1: x @ [wqkv | w_gate | w_up] with fused epilogues (phi(q), h = sigmoid(g)*u, kv/z partial sums via atomics, gate)
;   k2: [h | phi(q)/den] @ [w_down ; blockdiag(kv) @ wo] with the gated mix
"""
if __name__ == "__main__":
    if len(sys.argv) > 1 and sys.argv[1] == "stamp": STAMP = True
    for o in sys.argv[3:]:
        k_, v_ = o.split("=")
        globals()[k_] = eval(v_)
    a = Asm()
    gen_k1(a, "k1_kernel", 32768)
    gen_k2(a, "k2_kernel", 32768)
    hdr = HDR + "; @launch kernel=k1_kernel grid=(256,1,1) block=(512,1,1) lds=%d\n" % K1_LDS
    hdr += "; @launch kernel=k2_kernel grid=(256,1,1) block=(512,1,1) lds=%d" % K2_LDS
    out = sys.argv[2] if len(sys.argv) > 2 else "k12.s"
    open(out, "w").write(a.text(hdr))
```

```python
import sys
from asmlib import Asm

S, D, F = 2048, 640, 1728
AF_OFF  = 0x0000000
BF_OFF  = 0x0A00000
WOF_OFF = 0x0D00000
KV_OFF  = 0x0E00000
Z_OFF   = KV_OFF + 4 * 26 * 1024
ZERO_BYTES = 108 * 1024
G_OFF   = 0x0E40000
JUNK_OFF = 0x0F00000
WS_SIZE = 0x10000000
LOG2E = 0x3fb8aa3b
NLOG2E = 0xbfb8aa3b
EPS6 = 0x358637bd

def head(c): return c // 20

class LdsQ:
    def __init__(self, a):
        self.a = a; self.q = []
    def issue(self, tag, text):
        self.a(text); self.q.append(tag)
    def need(self, tags):
        idx = [i for i, t in enumerate(self.q) if t in tags]
        if not idx: return
        last = max(idx)
        n = len(self.q) - 1 - last
        assert n <= 15
        self.a("s_waitcnt lgkmcnt(%d)" % n)
        self.q = self.q[last + 1:]
    def drain(self):
        self.a("s_waitcnt lgkmcnt(0)"); self.q = []

B_SLOT, A_SLOT = 24576, 16384
A_BASE = 4 * B_SLOT
GW_BASE = A_BASE + 3 * A_SLOT
K1_LDS = GW_BASE + 2048

TRI = [(dt, et) for dt in range(5) for et in range(5) if abs(dt - et) <= 1 and
       any(head(16 * dt + x) == head(16 * et + y) for x in range(16) for y in range(16))]
assert len(TRI) == 13

def kv_tile_index(par, dt, et):
    return par * 13 + TRI.index((dt, et))

def srd(a, d, lo, hi, size):
    a("s_mov_b32 s%d, s%d" % (d, lo))
    a("s_mov_b32 s%d, s%d" % (d + 1, hi))
    a("s_mov_b32 s%d, 0x%x" % (d + 2, size))
    a("s_mov_b32 s%d, 0x00020000" % (d + 3))

def code_prefetch(a, label_start, label_end, nbytes, vtmp, vdst, stmp, swave):
    a("s_getpc_b64 s[%d:%d]" % (stmp, stmp + 1))
    here = a.newlabel("PC")
    a.label(here)
    a("s_sub_u32 s%d, s%d, %s-%s" % (stmp, stmp, here, label_start))
    a("s_subb_u32 s%d, s%d, 0" % (stmp + 1, stmp + 1))
    a("v_and_b32 v%d, 63, v0" % vtmp)
    a("v_lshlrev_b32 v%d, 7, v%d" % (vtmp, vtmp))
    a("s_lshl_b32 s%d, s%d, 13" % (stmp + 2, swave))
    a("v_add_u32 v%d, s%d, v%d" % (vtmp, stmp + 2, vtmp))
    n = (nbytes + 32767) // 32768
    for i in range(n):
        a("v_min_u32 v%d, %s-%s-4, v%d" % (vdst + 1, label_end, label_start, vtmp))
        a("global_load_dword v%d, v%d, s[%d:%d]" % (vdst, vdst + 1, stmp, stmp + 1))
        if i + 1 < n:
            a("v_add_u32 v%d, 32768, v%d" % (vtmp, vtmp))

TS_OFF = 0x0F80000
STAMP = False
def stamp(a, idx, v):
    if not STAMP: return
    a("s_memrealtime s[94:95]")
    a("s_waitcnt lgkmcnt(0)")
    a("v_writelane_b32 v%d, s94, %d" % (v, idx))
def stampc(a, idx, v):
    if not STAMP: return
    a("s_memtime s[94:95]")
    a("s_waitcnt lgkmcnt(0)")
    a("v_writelane_b32 v%d, s94, %d" % (v, idx))
TS_CUR = [0]
def stamp_flush(a, v, vt, swg, swave, nw, wsrd=36):
    if not STAMP: return
    a("s_waitcnt vmcnt(0)")
    stamp(a, 7, v)
    a("s_mul_i32 s94, s%d, %d" % (swg, nw))
    a("s_add_u32 s94, s94, s%d" % swave)
    a("s_lshl_b32 s94, s94, 7")
    a("s_add_u32 s94, s94, 0x%x" % (TS_OFF + TS_CUR[0]))
    a("s_mov_b32 exec_lo, -1")
    a("s_mov_b32 exec_hi, 0")
    a("v_and_b32 v%d, 63, v0" % vt)
    a("v_lshlrev_b32 v%d, 2, v%d" % (vt, vt))
    a("buffer_store_dword v%d, v%d, s[%d:%d], s94 offen" % (v, vt, wsrd, wsrd + 3))
    a("s_waitcnt vmcnt(0)")

PF_FLAGS = ""
L2PF = True
PF_DIST = 3
TLBWARM = True
TLB_IT = 3
PF_K2CODE = True
PF_START = 0
PRETOUCH = False
K2_NOATT = False
K2_ROT = False
K2_NOMFMA = False
K2_NOMLP = False
ATT_PRIO = 3
ST_FLAGS = "sc0 sc1"
RAMP = False
L2PF2 = False
def gen_k1(a, name, code_bytes):
    a.begin_kernel(name)
    a("s_cmp_ge_u32 s2, 256")
    a("s_cbranch_scc1 K1_END")
    a("s_load_dwordx16 s[4:19], s[0:1], 0")
    a("s_load_dwordx4 s[20:23], s[0:1], 64")
    a("s_load_dwordx2 s[24:25], s[0:1], 80")
    a("v_lshrrev_b32 v2, 6, v0")
    a("v_and_b32 v1, 63, v0")
    a("v_readfirstlane_b32 s26, v2")
    a("s_and_b32 s40, s2, 7")
    a("s_lshr_b32 s41, s2, 3")
    a("s_and_b32 s42, s40, 1")
    a("s_lshl_b32 s42, s42, 3")
    a("s_and_b32 s43, s41, 7")
    a("s_add_u32 s42, s42, s43")
    a("s_lshr_b32 s43, s40, 1")
    a("s_lshl_b32 s43, s43, 2")
    a("s_lshr_b32 s44, s41, 3")
    a("s_add_u32 s43, s43, s44")
    def srds(sv):
        a("s_waitcnt lgkmcnt(0)")
        stamp(a, 0, sv)
        srd(a, 28, 4, 5, S * D * 2)
        srd(a, 36, 24, 25, WS_SIZE)
        srd(a, 48, 18, 19, D * 2)
        srd(a, 52, 22, 23, 256)
    a("s_cmp_eq_u32 s43, 15")
    a("s_cbranch_scc1 K1_PREP")
    a("s_cmp_lt_u32 s26, 4")
    a("s_cbranch_scc1 K1_COMPUTE")

    a.c("loader waves")
    a("s_sub_u32 s27, s26, 4")
    a("s_lshr_b32 s44, s27, 1")
    a("s_lshl_b32 s47, s27, 5")
    a("v_lshrrev_b32 v2, 3, v1")
    a("v_add_u32 v2, s47, v2")
    a("v_mul_u32_u24 v2, 1280, v2")
    a("v_lshrrev_b32 v3, 4, v1")
    a("v_and_b32 v5, 7, v1")
    a("v_xor_b32 v3, v3, v5")
    a("v_lshlrev_b32 v3, 4, v3")
    a("v_add_u32 v16, v2, v3")
    a("v_xor_b32 v3, 64, v3")
    a("v_add_u32 v17, v2, v3")
    a("v_add_u32 v17, 10240, v17")
    a("v_add_u32 v18, 20480, v16")
    a("v_add_u32 v19, 20480, v17")
    a("s_movk_i32 s45, 3456")
    a("s_mul_i32 s46, s43, 384")
    a("s_cmp_lt_u32 s43, 9")
    a("s_cbranch_scc1 K1_LD_GO")
    a("s_movk_i32 s45, 3840")
    a("s_sub_u32 s46, s43, 9")
    a("s_mul_i32 s46, s46, 320")
    a("s_mul_i32 s47, s44, 1280")
    a("s_add_u32 s46, s46, s47")
    a("s_add_u32 s46, s46, 1280")
    a("s_sub_u32 s47, s43, 13")
    a("s_lshl_b32 s47, s47, 1")
    a("s_add_u32 s47, s47, s44")
    a("s_mul_i32 s47, s47, 320")
    a("s_cmp_lt_u32 s43, 13")
    a("s_cselect_b32 s46, s46, s47")
    a("s_and_b32 s46, s46, 0xffffff80")
    a.label("K1_LD_GO")
    a("s_and_b32 s47, s27, 1")
    a("s_mul_i32 s47, s47, 384")
    a("s_mov_b32 s64, 2731")
    a("s_lshl_b32 s63, s45, 3")
    for c in range(768): assert (c * 2731) >> 16 == c // 24
    for i in range(3):
        a("v_add_u32 v2, s47, v1")
        if i: a("v_add_u32 v2, %d, v2" % (64 * i))
        a("v_mul_u32_u24 v3, s64, v2")
        a("v_lshrrev_b32 v3, 16, v3")
        a("v_mul_u32_u24 v5, 24, v3")
        a("v_sub_u32 v5, v2, v5")
        a("v_bfe_u32 v6, v3, 1, 1")
        a("v_lshrrev_b32 v7, 2, v3")
        a("v_and_or_b32 v6, v7, 2, v6")
        a("v_lshrrev_b32 v7, 1, v5")
        a("v_xor_b32 v7, v7, v6")
        a("v_lshlrev_b32 v7, 5, v7")
        a("v_and_b32 v5, 1, v5")
        a("v_lshl_add_u32 v7, v5, 4, v7")
        a("v_mul_lo_u32 v3, v3, s45")
        a("v_add_u32 v%d, v3, v7" % (10 + i))
        a("v_xor_b32 v7, 64, v7")
        a("v_add3_u32 v%d, v3, v7, s63" % (13 + i))
    a("s_mul_i32 s65, s42, %d" % (128 * 1280))
    a("s_lshl_b32 s66, s45, 5")
    a("s_mul_i32 s67, s27, 6144")
    a("s_lshl_b32 s68, s27, 12")
    a("s_add_u32 s68, s68, %d" % A_BASE)
    srds(20)
    srd(a, 32, 6, 7, D * 3 * D * 2)
    a("s_cmp_lt_u32 s43, 9")
    a("s_cbranch_scc0 K1_LD_GO2")
    a("s_cmp_eq_u32 s44, 0")
    a("s_cselect_b32 s32, s12, s14")
    a("s_cselect_b32 s33, s13, s15")
    a("s_mov_b32 s34, 0x%x" % (D * F * 2))
    a.label("K1_LD_GO2")
    issued = []
    def issueB(t):
        a("s_mul_i32 s69, s66, %d" % t)
        a("s_add_u32 s69, s69, s46")
        for i in range(6):
            a("s_add_u32 m0, s67, %d" % ((t % 4) * B_SLOT + i * 1024))
            a("s_nop 0")
            a("buffer_load_dwordx4 v%d, s[32:35], s69 offen lds" % (10 + i))
            issued.append(("B", t))
    def issueA(T):
        a("s_add_u32 s70, s65, %d" % (T * 128))
        for i in range(4):
            a("s_add_u32 m0, s68, %d" % ((T % 3) * A_SLOT + i * 1024))
            a("s_nop 0")
            a("buffer_load_dwordx4 v%d, s[28:31], s70 offen lds" % (16 + i))
            issued.append(("A", T))
    stamp(a, 2, 20)
    a("v_lshlrev_b32 v2, 4, v1")
    a("s_mov_b32 m0, %d" % GW_BASE)
    a("v_add_u32 v3, 1024, v2")
    a("buffer_load_dwordx4 v2, s[48:51], 0 offen lds")
    a("s_mov_b32 m0, %d" % (GW_BASE + 1024))
    a("s_nop 0")
    a("buffer_load_dwordx4 v3, s[48:51], 0 offen lds")
    stamp(a, 8, 20)
    issueA(0)
    stamp(a, 9, 20)
    issueB(0)
    stamp(a, 10, 20)
    issueB(1)
    stamp(a, 11, 20)
    nextB, nextA = 2, 1
    if not RAMP:
        issueA(1); issueB(2); issueB(3); issueA(2)
        nextB, nextA = 4, 3
    code_prefetch(a, name, "K2_END" if PF_K2CODE else "K1_END", 65536 if PF_K2CODE else code_bytes, 3, 4, 90, 27)
    issued.append(("P", 0))
    if PF_K2CODE: issued.append(("P", 0))
    stamp(a, 3, 20)
    for t in range(21):
        if t <= 19:
            last = max(i for i, x in enumerate(issued) if x == ("B", t) or x == ("A", t // 2))
            n = len(issued) - 1 - last
            a("s_waitcnt vmcnt(%d)" % n)
        a("s_barrier")
        if t == 0: stamp(a, 1, 20)
        while nextA <= 9 and nextA - 3 <= t // 2 - 1 and nextA <= t // 2 + 2 and (nextA * 2 <= nextB + 1 or nextB > 19):
            issueA(nextA); nextA += 1
        while nextB <= 19 and nextB - 4 <= t - 1:
            issueB(nextB); nextB += 1
            while nextA <= 9 and nextA - 3 <= t // 2 - 1 and nextA * 2 <= nextB:
                issueA(nextA); nextA += 1
    assert nextA == 10 and nextB == 20
    if PRETOUCH:
        a("v_mov_b32 v2, 4")
        a("buffer_load_dword v3, v2, s[52:55], 0 offen sc0 sc1")
        a("s_and_b32 s71, s2, 7")
        a("s_lshr_b32 s71, s71, 2")
        a("s_waitcnt vmcnt(0)")
        a("v_readfirstlane_b32 s72, v3")
        a("s_cmp_lt_u32 s41, 24")
        a("s_cbranch_scc0 K1_LD_END")
        a("s_cmp_eq_u32 s72, 128")
        a("s_cbranch_scc0 K1_LD_END")
        a("s_lshl_b32 s73, s41, 2")
        a("s_add_u32 s73, s73, s27")
        a("v_lshlrev_b32 v2, 7, v1")
        a("s_mul_i32 s74, s71, %d" % (20 * 54 * 1024))
        a("s_mul_i32 s75, s73, %d" % (90 * 128))
        a("s_add_u32 s74, s74, s75")
        a("s_add_u32 s74, s74, 0x%x" % BF_OFF)
        a("buffer_load_dword v4, v2, s[36:39], s74 offen")
        a("v_min_u32 v3, 25, v1")
        a("v_lshlrev_b32 v3, 7, v3")
        a("s_add_u32 s74, s74, 8192")
        a("buffer_load_dword v4, v3, s[36:39], s74 offen")
        a("s_mul_i32 s74, s71, %d" % (20 * 20 * 1024))
        a("s_mul_i32 s75, s73, %d" % (34 * 128))
        a("s_min_u32 s75, s75, %d" % ((3200 - 34) * 128))
        a("s_add_u32 s74, s74, s75")
        a("s_add_u32 s74, s74, 0x%x" % WOF_OFF)
        a("v_min_u32 v3, 33, v1")
        a("v_lshlrev_b32 v3, 7, v3")
        a("buffer_load_dword v4, v3, s[36:39], s74 offen")
        a("s_waitcnt vmcnt(0)")
        a.label("K1_LD_END")
    stamp_flush(a, 20, 21, 2, 26, 8)
    a("s_endpgm")

    a.label("K1_COMPUTE")
    a("s_lshr_b32 s44, s26, 1")
    a("s_and_b32 s45, s26, 1")
    a("s_cmp_lt_u32 s43, 9")
    a("s_cbranch_scc0 K1_C_QKV")
    a("s_mul_i32 s46, s45, 6")
    a("s_mov_b32 s47, 0")
    a("s_branch K1_C_GO")
    a.label("K1_C_QKV")
    a("s_cmp_lt_u32 s43, 13")
    a("s_cbranch_scc0 K1_C_Q")
    a("s_sub_u32 s46, s43, 9")
    a("s_and_b32 s46, s46, 1")
    a("s_lshl_b32 s46, s46, 1")
    a("s_mul_i32 s47, s45, 5")
    a("s_add_u32 s46, s46, s47")
    a("s_mov_b32 s47, 0")
    a("s_branch K1_C_GO")
    a.label("K1_C_Q")
    a("s_lshl_b32 s46, s45, 1")
    a("s_mul_i32 s47, s45, 12288")
    a.label("K1_C_GO")
    VA, VB = 2, 4
    a("v_and_b32 v8, 15, v1")
    a("v_lshrrev_b32 v9, 4, v1")
    a("s_lshl_b32 s64, s44, 13")
    a("s_add_u32 s64, s64, %d" % A_BASE)
    a("v_lshrrev_b32 v10, 1, v8")
    a("v_xor_b32 v11, v9, v10")
    a("v_lshlrev_b32 v11, 4, v11")
    a("v_lshl_add_u32 v11, v8, 7, v11")
    a("v_add_u32 v2, s64, v11")
    a("v_xor_b32 v3, 64, v2")
    a("v_lshrrev_b32 v10, 2, v8")
    a("v_lshl_add_u32 v11, v9, 3, v10")
    a("v_mul_u32_u24 v11, 384, v11")
    a("v_and_b32 v12, 3, v1")
    a("v_lshl_add_u32 v11, v12, 3, v11")
    a("v_add_u32 v11, s47, v11")
    a("v_lshrrev_b32 v12, 1, v10")
    a("v_and_b32 v13, 1, v9")
    a("v_lshl_or_b32 v12, v13, 1, v12")
    for jp in range(4):
        a("s_add_u32 s64, s46, %d" % jp)
        a("s_and_b32 s65, s64, 3")
        a("s_lshr_b32 s64, s64, 2")
        a("s_lshl_b32 s64, s64, 7")
        a("v_xor_b32 v13, s65, v12")
        a("v_lshl_add_u32 v13, v13, 5, v11")
        a("v_add_u32 v%d, s64, v13" % (VB + jp))
    def pf_setup():
        a("s_and_b32 s76, s26, 1")
        a("s_movk_i32 s77, 3456")
        a("s_mul_i32 s78, s43, 384")
        srd(a, 32, 6, 7, D * 3 * D * 2)
        a("s_cmp_lt_u32 s43, 9")
        a("s_cbranch_scc0 K1_PF_QKV")
        a("s_cmp_eq_u32 s76, 0")
        a("s_cselect_b32 s32, s12, s14")
        a("s_cselect_b32 s33, s13, s15")
        a("s_mov_b32 s34, 0x%x" % (D * F * 2))
        a("s_branch K1_PF_GO")
        a.label("K1_PF_QKV")
        a("s_movk_i32 s77, 3840")
        a("s_sub_u32 s78, s43, 9")
        a("s_mul_i32 s78, s78, 320")
        a("s_mul_i32 s79, s76, 1280")
        a("s_add_u32 s78, s78, s79")
        a("s_add_u32 s78, s78, 1280")
        a("s_sub_u32 s79, s43, 13")
        a("s_lshl_b32 s79, s79, 1")
        a("s_add_u32 s79, s79, s76")
        a("s_mul_i32 s79, s79, 320")
        a("s_cmp_lt_u32 s43, 13")
        a("s_cselect_b32 s78, s78, s79")
        a("s_and_b32 s78, s78, 0xffffff80")
        a.label("K1_PF_GO")
        a("v_min_u32 v10, 23, v1")
        a("v_mul_u32_u24 v11, 0x5556, v10")
        a("v_lshrrev_b32 v11, 16, v11")
        a("v_mul_u32_u24 v12, 3, v11")
        a("v_sub_u32 v12, v10, v12")
        a("s_and_b32 s80, s41, 7")
        a("s_lshl_b32 s80, s80, 3")
        a("v_add_u32 v11, s80, v11")
        a("v_mul_lo_u32 v11, v11, s77")
        a("v_lshl_add_u32 v12, v12, 7, v11")
        a("s_lshl_b32 s79, s77, 6")
        a("s_cmp_lt_u32 s26, 2")
        a("s_cbranch_scc1 K1_PF_W")
        a("s_lshr_b32 s80, s41, 3")
        a("s_lshl_b32 s80, s80, 5")
        a("s_lshl_b32 s81, s76, 4")
        a("s_add_u32 s80, s80, s81")
        a("v_min_u32 v10, 15, v1")
        a("v_add_u32 v10, s80, v10")
        a("v_mul_u32_u24 v12, 1280, v10")
        a("s_mul_i32 s78, s42, %d" % (128 * 1280))
        a("s_movk_i32 s79, 128")
        a("s_mov_b32 s32, s4")
        a("s_mov_b32 s33, s5")
        a("s_mov_b32 s34, 0x%x" % (S * D * 2))
        a.label("K1_PF_W")
        if PF_START:
            a("s_mul_i32 s80, s79, %d" % PF_START)
            a("s_add_u32 s78, s78, s80")
        for _ in range(PF_DIST - PF_START): pf_issue()
    def pf_issue():
        a("buffer_load_dword v13, v12, s[32:35], s78 offen %s" % PF_FLAGS)
        a("s_add_u32 s78, s78, s79")
    srds(15)
    if L2PF: pf_setup()
    if TLBWARM:
        srd(a, 84, 20, 21, S * D * 2)
        a("v_min_u32 v11, 15, v1")
        a("v_lshlrev_b32 v11, 20, v11")
        a("s_cmp_eq_u32 s41, 0")
        a("s_cselect_b32 s82, 1, 0")
        a("s_cmp_eq_u32 s26, 3")
        a("s_cselect_b32 s82, s82, 0")
    for r in range(64, 256):
        a("v_mov_b32 v%d, 0" % r)
    a("s_mov_b32 s70, 0")
    a("s_mov_b32 s71, 10")
    a("s_mov_b32 s75, 49152")
    a("s_cmp_lt_u32 s43, 9")
    a("s_cbranch_scc1 K1_GU")
    a("s_cmp_lt_u32 s43, 13")
    a("s_cbranch_scc1 K1_KV")
    a("s_branch K1_Q")

    ABUF = [16, 32]
    BR = 48
    ACC = 64

    def mainloop(role):
        q = LdsQ(a)
        if role == "gu":
            frags = [(p, j) for j in range(6) for p in range(2)]
        elif role == "kv":
            frags = [(p, j) for j in range(5) for p in range(2)]
        else:
            frags = [(0, j) for j in range(10)]
        nB = len(frags)
        def accreg(fi, rt): return ACC + (fi * 4 + rt) * 4
        def readB(J, par):
            p, j = frags[J]
            slot = (par * nB + J) % 4
            out = []
            for h in range(2):
                off = (j >> 2) * 128 + h * 1536 + p * 12288 + par * B_SLOT
                r = BR + slot * 4 + h * 2
                out.append((("B", par, J), "ds_read_b64_tr_b16 v[%d:%d], v%d offset:%d" % (r, r + 1, VB + (j & 3), off)))
            return out
        def readA(par):
            out = []
            for rt in range(4):
                r = ABUF[par] + rt * 4
                out.append((("A", par, rt), "ds_read_b128 v[%d:%d], v%d offset:%d" % (r, r + 3, VA + par, rt * 2048)))
            if role == "q":
                out.append((("G", par), "ds_read_b128 v[%d:%d], v14 offset:%d" % (GW[par], GW[par] + 3, 64 * par)))
            return out
        def mfma(par, J, rt):
            slot = (par * nB + J) % 4
            b = BR + slot * 4; x = ABUF[par] + rt * 4; c = accreg(J, rt)
            if role == "kv":
                return "v_mfma_f32_16x16x32_bf16 v[%d:%d], v[%d:%d], v[%d:%d], v[%d:%d]" % (c, c + 3, x, x + 3, b, b + 3, c, c + 3)
            return "v_mfma_f32_16x16x32_bf16 v[%d:%d], v[%d:%d], v[%d:%d], v[%d:%d]" % (c, c + 3, b, b + 3, x, x + 3, c, c + 3)
        GW = [ACC + 176, ACC + 180]
        LOG = ACC + 160
        if role == "q":
            a("v_lshlrev_b32 v14, 4, v9")
            a("v_add_u32 v14, %d, v14" % GW_BASE)
        stamp(a, 2, 15)
        a("s_barrier")
        stamp(a, 1, 15)
        stampc(a, 5, 15)
        for tag, t in readA(0) + readB(0, 0) + readB(1, 0) + readB(2, 0):
            q.issue(tag, t)
        state0 = list(q.q)
        lbl = "K1_LOOP_" + role
        a.label(lbl)
        if STAMP:
            a("s_memrealtime s[94:95]")
            a("s_sub_u32 m0, 18, s71")
            a("s_waitcnt lgkmcnt(0)")
            a("v_writelane_b32 v15, s94, m0")
        if L2PF: pf_issue()
        if TLBWARM:
            a("s_cmp_eq_u32 s71, %d" % (10 - TLB_IT))
            a("s_cselect_b32 s83, s82, 0")
            a("s_cmp_eq_u32 s83, 1")
            a("s_cbranch_scc0 %s_NT" % lbl)
            a("buffer_load_dword v13, v11, s[36:39], 0 offen")
            a("buffer_load_dword v13, v11, s[84:87], 0 offen")
            a.label(lbl + "_NT")
        for par in range(2):
            for J in range(nB):
                reads = []
                pre = []
                if J + 3 <= nB - 1:
                    reads = readB(J + 3, par)
                if J == nB - 2:
                    if role == "q":
                        for rt in range(4):
                            x = ABUF[par] + rt * 4; c = LOG + rt * 4
                            a("v_mfma_f32_16x16x32_bf16 v[%d:%d], v[%d:%d], v[%d:%d], v[%d:%d]" % (c, c + 3, GW[par], GW[par] + 3, x, x + 3, c, c + 3))
                    q.drain()
                    a("s_barrier")
                    if par == 1:
                        for jp in range(4):
                            a("v_add_u32 v%d, s75, v%d" % (VB + jp, VB + jp))
                        a("s_sub_u32 s75, 0, s75")
                        a("s_add_u32 s70, s70, 16384")
                        a("s_cmp_eq_u32 s70, 49152")
                        a("s_cselect_b32 s73, s70, 0")
                        a("s_sub_u32 s70, s70, s73")
                        a("s_sub_u32 s73, 16384, s73")
                        a("v_add_u32 v2, s73, v2")
                        a("v_add_u32 v3, s73, v3")
                        if role == "q": a("v_add_u32 v14, 128, v14")
                    reads = readA(1 - par) + readB(0, 1 - par) + readB(1, 1 - par)
                if J == nB - 1:
                    reads = readB(2, 1 - par)
                q.need([("B", par, J)] + ([("A", par, 0)] if J == 0 else []))
                for rt in range(4):
                    if J == 0 and rt > 0: q.need([("A", par, rt)])
                    a(mfma(par, J, rt))
                    k = (len(reads) + (3 - rt)) // (4 - rt) if reads else 0
                    for _ in range(k):
                        tag, t = reads.pop(0); q.issue(tag, t)
                assert not reads
        a("s_sub_u32 s71, s71, 1")
        a("s_cmp_lg_u32 s71, 0")
        a("s_cbranch_scc1 %s" % lbl)
        assert q.q == state0, (q.q, state0)
        a("s_waitcnt lgkmcnt(0) vmcnt(0)")
        a("s_nop 7")
        stamp(a, 3, 15)
        stampc(a, 6, 15)
        return accreg

    a.label("K1_GU")
    accreg = mainloop("gu")
    a("s_mov_b32 s64, 0x%x" % NLOG2E); a("s_mov_b32 s65, 0x%x" % NLOG2E)
    a("s_mov_b32 s66, 1.0"); a("s_mov_b32 s67, 1.0")
    a("s_lshl_b32 s68, s42, 3")
    a("s_lshl_b32 s69, s44, 2")
    a("s_add_u32 s68, s68, s69")
    a("s_mul_i32 s68, s68, 74")
    a("s_mul_i32 s69, s43, 6")
    a("s_add_u32 s68, s68, s69")
    a("s_mul_i32 s69, s45, 3")
    a("s_add_u32 s68, s68, s69")
    a("s_lshl_b32 s68, s68, 10")
    if AF_OFF: a("s_add_u32 s68, s68, 0x%x" % AF_OFF)
    a("v_lshlrev_b32 v8, 4, v1")
    blk = 0
    for rt in range(4):
        for jp in range(3):
            T = 16 + (blk % 2) * 16
            O = T + 8
            for half in range(2):
                j = 2 * jp + half
                gq = accreg(j * 2 + 0, rt); uq = accreg(j * 2 + 1, rt)
                for e in range(0, 4, 2):
                    t = T + half * 4 + e
                    a("v_pk_mul_f32 v[%d:%d], v[%d:%d], s[64:65]" % (t, t + 1, gq + e, gq + e + 1))
            for x in range(8): a("v_exp_f32 v%d, v%d" % (T + x, T + x))
            for x in range(0, 8, 2): a("v_pk_add_f32 v[%d:%d], v[%d:%d], s[66:67]" % (T + x, T + x + 1, T + x, T + x + 1))
            for x in range(8): a("v_rcp_f32 v%d, v%d" % (T + x, T + x))
            for half in range(2):
                j = 2 * jp + half
                uq = accreg(j * 2 + 1, rt)
                for e in range(0, 4, 2):
                    t = T + half * 4 + e
                    a("v_pk_mul_f32 v[%d:%d], v[%d:%d], v[%d:%d]" % (t, t + 1, t, t + 1, uq + e, uq + e + 1))
            for x in range(4):
                a("v_cvt_pk_bf16_f32 v%d, v%d, v%d" % (O + x, T + 2 * x, T + 2 * x + 1))
            a("s_add_u32 s69, s68, %d" % ((rt * 74 + jp) * 1024))
            a("buffer_store_dwordx4 v[%d:%d], v8, s[36:39], s69 offen %s" % (O, O + 3, ST_FLAGS))
            blk += 1
    stamp_flush(a, 15, 14, 2, 26, 8)
    a("s_endpgm")

    a.label("K1_Q")
    accreg = mainloop("q")
    a("s_mov_b32 s64, 0x%x" % LOG2E); a("s_mov_b32 s65, 0x%x" % LOG2E)
    a("s_mov_b32 s66, 0x%x" % EPS6); a("s_mov_b32 s67, 0x%x" % EPS6)
    a("s_lshl_b32 s68, s42, 3")
    a("s_lshl_b32 s69, s44, 2")
    a("s_add_u32 s68, s68, s69")
    a("s_lshl_b32 s74, s68, 6")
    a("s_mul_i32 s68, s68, 74")
    a("s_sub_u32 s69, s43, 13")
    a("s_mul_i32 s69, s69, 10")
    a("s_add_u32 s68, s68, s69")
    a("s_mul_i32 s69, s45, 5")
    a("s_add_u32 s68, s68, s69")
    a("s_add_u32 s68, s68, 54")
    a("s_lshl_b32 s68, s68, 10")
    if AF_OFF: a("s_add_u32 s68, s68, 0x%x" % AF_OFF)
    a("v_lshlrev_b32 v8, 4, v1")
    def phi_pairs(srcs, T):
        n = len(srcs)
        U = T + 2 * n
        for x, s in enumerate(srcs):
            a("v_pk_mul_f32 v[%d:%d], v[%d:%d], s[64:65]" % (T + 2 * x, T + 2 * x + 1, s, s + 1))
        for x in range(2 * n):
            a("v_exp_f32 v%d, v%d clamp" % (T + x, T + x))
        for x, s in enumerate(srcs):
            a("v_max_f32 v%d, 0, v%d" % (U + 2 * x, s))
            a("v_max_f32 v%d, 0, v%d" % (U + 2 * x + 1, s + 1))
        for x in range(n):
            a("v_pk_add_f32 v[%d:%d], v[%d:%d], v[%d:%d]" % (T + 2 * x, T + 2 * x + 1, T + 2 * x, T + 2 * x + 1, U + 2 * x, U + 2 * x + 1))
        for x in range(n):
            a("v_pk_add_f32 v[%d:%d], v[%d:%d], s[66:67]" % (T + 2 * x, T + 2 * x + 1, T + 2 * x, T + 2 * x + 1))
    blk = 0
    for rt in range(4):
        for jp in range(5):
            T = 16 + (blk % 2) * 20
            O = T + 16
            srcs = [accreg(2 * jp + half, rt) + e for half in range(2) for e in (0, 2)]
            phi_pairs(srcs, T)
            for x in range(4):
                a("v_cvt_pk_bf16_f32 v%d, v%d, v%d" % (O + x, T + 2 * x, T + 2 * x + 1))
            a("s_add_u32 s69, s68, %d" % ((rt * 74 + jp) * 1024))
            a("buffer_store_dwordx4 v[%d:%d], v8, s[36:39], s69 offen %s" % (O, O + 3, ST_FLAGS))
            blk += 1
    a("s_cmp_eq_u32 s43, 13")
    a("s_cbranch_scc0 K1_Q_END")
    a("s_cmp_eq_u32 s45, 0")
    a("s_cbranch_scc0 K1_Q_END")
    a("v_cmp_gt_u32 vcc, 16, v1")
    a("s_and_saveexec_b64 s[76:77], vcc")
    a("v_lshlrev_b32 v9, 2, v1")
    a("s_mov_b32 s64, 0x%x" % NLOG2E)
    a("s_add_u32 s74, s74, 0x%x" % G_OFF)
    for rt in range(4):
        c = ACC + 160 + rt * 4
        a("v_mul_f32 v%d, s64, v%d" % (16 + rt, c))
    for rt in range(4): a("v_exp_f32 v%d, v%d" % (16 + rt, 16 + rt))
    a("s_nop 0")
    for rt in range(4): a("v_add_f32 v%d, 1.0, v%d" % (16 + rt, 16 + rt))
    for rt in range(4): a("v_rcp_f32 v%d, v%d" % (16 + rt, 16 + rt))
    a("s_nop 0")
    for rt in range(4):
        a("buffer_store_dword v%d, v9, s[36:39], s74 offen offset:%d" % (16 + rt, rt * 64))
    a.label("K1_Q_END")
    a("s_mov_b64 exec, -1")
    stamp_flush(a, 15, 14, 2, 26, 8)
    a("s_endpgm")

    a.label("K1_KV")
    accreg = mainloop("kv")
    a("v_mov_b32 v9, 0")
    a("buffer_load_dword v10, v9, s[52:55], 0 offen sc0 sc1")
    a("s_mov_b32 s64, 0x%x" % LOG2E); a("s_mov_b32 s65, 0x%x" % LOG2E)
    a("s_mov_b32 s66, 0x%x" % EPS6); a("s_mov_b32 s67, 0x%x" % EPS6)
    def fragreg(p, rp, j): return accreg(j * 2 + p, 2 * rp)
    res = [accreg(fi, 1) for fi in range(10)] + [ACC + 160 + 4 * x for x in range(8)]
    ONES = 48
    for x in range(4): a("v_mov_b32 v%d, 0x3f803f80" % (ONES + x))
    def conv_ops(rp):
        global_lines = a.lines
        a.lines = []
        blk = 0
        for j in range(5):
            T = 16 + (blk % 2) * 16
            srcs = [accreg(j * 2, 2 * rp + half) + e for half in range(2) for e in (0, 2)]
            phi_pairs(srcs, T)
            o = fragreg(0, rp, j)
            for x in range(4):
                a("v_cvt_pk_bf16_f32 v%d, v%d, v%d" % (o + x, T + 2 * x, T + 2 * x + 1))
            s0 = accreg(j * 2 + 1, 2 * rp); s1 = accreg(j * 2 + 1, 2 * rp + 1)
            a("v_cvt_pk_bf16_f32 v%d, v%d, v%d" % (s0, s0, s0 + 1))
            a("v_cvt_pk_bf16_f32 v%d, v%d, v%d" % (s0 + 1, s0 + 2, s0 + 3))
            a("v_cvt_pk_bf16_f32 v%d, v%d, v%d" % (s0 + 2, s1, s1 + 1))
            a("v_cvt_pk_bf16_f32 v%d, v%d, v%d" % (s0 + 3, s1 + 2, s1 + 3))
            blk += 1
        out = a.lines
        a.lines = global_lines
        return [l.strip() for l in out]
    def kv_mfmas(rp):
        out = []
        for ti, (dt, et) in enumerate(TRI):
            c = res[ti]
            A_ = fragreg(1, rp, et); B_ = fragreg(0, rp, dt)
            out.append("v_mfma_f32_16x16x32_bf16 v[%d:%d], v[%d:%d], v[%d:%d], %s" % (c, c + 3, A_, A_ + 3, B_, B_ + 3, "0" if rp == 0 else "v[%d:%d]" % (c, c + 3)))
        for dt in range(5):
            c = res[13 + dt]
            B_ = fragreg(0, rp, dt)
            out.append("v_mfma_f32_16x16x32_bf16 v[%d:%d], v[%d:%d], v[%d:%d], %s" % (c, c + 3, ONES, ONES + 3, B_, B_ + 3, "0" if rp == 0 else "v[%d:%d]" % (c, c + 3)))
        return out
    for t in conv_ops(0): a(t)
    a("s_nop 1")
    c1 = conv_ops(1); m0_ = kv_mfmas(0)
    per = len(c1) // len(m0_)
    for k_, m_ in enumerate(m0_):
        a(m_)
        for t in c1[k_ * per:(k_ + 1) * per]: a(t)
    for t in c1[len(m0_) * per:]: a(t)
    a("s_barrier")
    a("s_nop 0")
    for t in kv_mfmas(1): a(t)
    a("s_lshl_b32 s68, s45, 1")
    a("s_add_u32 s68, s68, s44")
    a("s_mul_i32 s68, s68, %d" % (18 * 1024))
    a("v_lshlrev_b32 v8, 4, v1")
    a("v_add_u32 v8, s68, v8")
    a.label("K1_KV_POLL")
    a("s_waitcnt vmcnt(0)")
    a("v_readfirstlane_b32 s69, v10")
    a("s_cmp_ge_u32 s69, 128")
    a("s_cbranch_scc1 K1_KV_GO")
    a("buffer_load_dword v10, v9, s[52:55], 0 offen sc0 sc1")
    a("s_branch K1_KV_POLL")
    a.label("K1_KV_GO")
    a("s_nop 3")
    for ti in range(18):
        c = res[ti]
        a("ds_write_b128 v8, v[%d:%d] offset:%d" % (c, c + 3, ti * 1024))
    a("s_mul_i32 s68, s45, %d" % (36 * 1024))
    a("v_lshlrev_b32 v8, 2, v1")
    a("v_add_u32 v9, s68, v8")
    a("v_lshl_add_u32 v10, v1, 4, s68")
    a("s_sub_u32 s68, s43, 9")
    a("s_mul_i32 s69, s68, 26")
    a("s_mul_i32 s70, s45, 13")
    a("s_add_u32 s69, s69, s70")
    a("s_lshl_b32 s69, s69, 10")
    a("s_add_u32 s69, s69, 0x%x" % KV_OFF)
    a("s_lshl_b32 s68, s68, 1")
    a("s_add_u32 s68, s68, s45")
    a("s_mul_i32 s68, s68, 320")
    a("s_add_u32 s68, s68, 0x%x" % Z_OFF)
    a("s_waitcnt lgkmcnt(0)")
    a("s_barrier")
    stamp(a, 4, 15)
    a("s_cmp_eq_u32 s44, 0")
    a("s_cbranch_scc0 K1_KV_R1")
    for rh in range(2):
        if rh == 1: a.label("K1_KV_R1")
        items = []
        tiles = list(range(0, 7)) if rh == 0 else list(range(7, 13))
        for ti in tiles:
            dt, et = TRI[ti]
            for q_ in range(4):
                m = 0
                for p in range(64):
                    if head(16 * dt + (p >> 2)) == head(16 * et + 4 * q_ + (p & 3)): m |= 1 << p
                if m: items.append(("kv", ti, q_, m))
        if rh == 1:
            for dt in range(5): items.append(("z", 13 + dt, 0, 0xffff))
        for n, (kind, ti, q_, m) in enumerate(items):
            r = 16 + 2 * n
            if kind == "kv":
                a("ds_read2st64_b32 v[%d:%d], v9 offset0:%d offset1:%d" % (r, r + 1, ti * 4 + q_, 72 + ti * 4 + q_))
            else:
                a("ds_read2st64_b32 v[%d:%d], v10 offset0:%d offset1:%d" % (r, r + 1, ti * 4, 72 + ti * 4))
        assert 16 + 2 * len(items) <= 120
        for n, (kind, ti, q_, m) in enumerate(items):
            r = 16 + 2 * n
            rem = len(items) - 1 - n
            a("s_waitcnt lgkmcnt(%d)" % min(15, rem))
            a("v_add_f32 v%d, v%d, v%d" % (r, r, r + 1))
            a("s_mov_b32 exec_lo, 0x%x" % (m & 0xffffffff))
            a("s_mov_b32 exec_hi, 0x%x" % (m >> 32))
            if kind == "kv":
                off = ti * 1024 + q_ * 256
                a("s_add_u32 s70, s69, %d" % (off & ~4095))
                a("buffer_atomic_add_f32 v%d, v8, s[36:39], s70 offen offset:%d" % (r, off & 4095))
            else:
                a("buffer_atomic_add_f32 v%d, v8, s[36:39], s68 offen offset:%d" % (r, (ti - 13) * 64))
            a("s_mov_b64 exec, -1")
        stamp_flush(a, 15, 14, 2, 26, 8)
        a("s_endpgm")

    a.label("K1_PREP")
    srds(40)
    srd(a, 56, 16, 17, F * D * 2)
    srd(a, 60, 8, 9, D * D * 2)
    a("s_lshl_b32 s44, s42, 3")
    a("s_add_u32 s44, s44, s26")
    a("v_mov_b32 v4, 0"); a("v_mov_b32 v5, 0"); a("v_mov_b32 v6, 0"); a("v_mov_b32 v7, 0")
    a("v_lshlrev_b32 v8, 4, v1")
    a("s_cmp_lt_u32 s44, %d" % (ZERO_BYTES // 1024))
    a("s_cbranch_scc0 K1_PREP_NZ")
    a("s_lshl_b32 s45, s44, 10")
    a("s_add_u32 s45, s45, 0x%x" % KV_OFF)
    a("buffer_store_dwordx4 v[4:7], v8, s[36:39], s45 offen sc0 sc1")
    a("s_waitcnt vmcnt(0)")
    a.label("K1_PREP_NZ")
    a("v_mov_b32 v9, 0")
    a("v_mov_b32 v10, 1")
    a("s_mov_b64 exec, 1")
    a("buffer_atomic_add v10, v9, s[52:55], 0 offen sc1")
    a("s_mov_b64 exec, -1")
    a("v_lshrrev_b32 v2, 3, v1")
    a("v_mul_u32_u24 v2, 1280, v2")
    a("v_and_b32 v3, 7, v1")
    a("v_lshl_add_u32 v10, v3, 4, v2")
    for i in range(1, 4): a("v_add_u32 v%d, %d, v10" % (10 + i, i * 8 * 1280))
    a("v_lshrrev_b32 v2, 4, v1")
    a("v_and_b32 v3, 15, v1")
    a("v_lshrrev_b32 v3, 2, v3")
    a("v_lshl_add_u32 v2, v2, 2, v3")
    a("v_lshlrev_b32 v2, 7, v2")
    a("v_and_b32 v3, 3, v1")
    a("v_lshl_add_u32 v14, v3, 3, v2")
    a("s_mul_i32 s46, s26, 12288")
    a("v_add_u32 v14, s46, v14")
    def prep_batch(tasks, lbl):
        skip = []
        for n, (sr, total, nks, rnd, dst) in enumerate(tasks):
            a("s_add_u32 s%d, s44, %d" % (64 + n, 128 * rnd))
            a("s_cmp_lt_u32 s%d, %d" % (64 + n, total))
            a("s_cselect_b32 s%d, s%d, 0" % (64 + n, 64 + n))
            a("s_cselect_b32 s%d, 1, 0" % (80 + n))
            a("s_mul_hi_u32 s%d, s%d, %d" % (68 + n, 64 + n, (1 << 32) // 10 + 1))
            a("s_mul_i32 s72, s%d, 10" % (68 + n))
            a("s_sub_u32 s%d, s%d, s72" % (64 + n, 64 + n))
            a("s_mul_i32 s72, s%d, %d" % (68 + n, 32 * 1280))
            a("s_lshl_b32 s73, s%d, 7" % (64 + n))
            a("s_add_u32 s72, s72, s73")
            for i in range(4):
                a("s_add_u32 m0, s46, %d" % (n * 4096 + i * 1024))
                a("s_nop 0")
                a("buffer_load_dwordx4 v%d, s[%d:%d], s72 offen lds" % (10 + i, sr, sr + 3))
        for n, (sr, total, nks, rnd, dst) in enumerate(tasks):
            a("s_waitcnt vmcnt(%d)" % (4 * (len(tasks) - 1 - n) + 4 * n))
            for j in range(4):
                for h in range(2):
                    r = 16 + j * 4 + h * 2
                    a("ds_read_b64_tr_b16 v[%d:%d], v14 offset:%d" % (r, r + 1, n * 4096 + h * 2048 + j * 32))
            a("s_lshl_b32 s72, s%d, 2" % (64 + n))
            a("s_mul_i32 s72, s72, %d" % nks)
            a("s_add_u32 s72, s72, s%d" % (68 + n))
            a("s_lshl_b32 s72, s72, 10")
            a("s_add_u32 s72, s72, 0x%x" % dst)
            a("s_cmp_eq_u32 s%d, 1" % (80 + n))
            a("s_cselect_b32 s72, s72, 0x%x" % JUNK_OFF)
            a("s_waitcnt lgkmcnt(0)")
            for j in range(4):
                a("buffer_store_dwordx4 v[%d:%d], v8, s[36:39], s72 offen %s" % (16 + j * 4, 16 + j * 4 + 3, ST_FLAGS))
                if j < 3: a("s_add_u32 s72, s72, %d" % (nks * 1024))
            a("s_nop 1")
        a("s_waitcnt vmcnt(0)")
    prep_batch([(56, 540, 54, 0, BF_OFF), (56, 540, 54, 1, BF_OFF), (56, 540, 54, 2, BF_OFF)], "b0")
    prep_batch([(56, 540, 54, 3, BF_OFF), (56, 540, 54, 4, BF_OFF), (60, 200, 20, 0, WOF_OFF)], "b1")
    prep_batch([(60, 200, 20, 1, WOF_OFF)], "b2")
    a("v_mov_b32 v9, 4")
    a("v_mov_b32 v10, 1")
    a("s_mov_b64 exec, 1")
    a("buffer_atomic_add v10, v9, s[52:55], 0 offen sc1")
    a("s_mov_b64 exec, -1")
    stamp_flush(a, 40, 41, 2, 26, 8)
    a.label("K1_END")
    a("s_endpgm")
    a.end_kernel(name, 256, 96)

K2_ATT = 20480
K2_EX  = 4 * K2_ATT
K2_TAB = K2_EX + 4 * 17 * 1024
K2_LDS = K2_TAB + 8192

def gen_k2(a, name, code_bytes):
    TS_CUR[0] = 0x40000
    a.begin_kernel(name)
    a("s_cmp_ge_u32 s2, 256")
    a("s_cbranch_scc1 K2_END")
    a("s_load_dwordx2 s[20:21], s[0:1], 64")
    a("s_load_dwordx2 s[24:25], s[0:1], 80")
    a("v_lshrrev_b32 v2, 6, v0")
    a("v_and_b32 v1, 63, v0")
    a("v_readfirstlane_b32 s26, v2")
    stamp(a, 0, 15)
    a("s_and_b32 s40, s2, 7")
    a("s_lshr_b32 s41, s2, 3")
    a("s_and_b32 s42, s40, 3")
    a("s_lshl_b32 s42, s42, 3")
    a("s_and_b32 s43, s41, 7")
    a("s_add_u32 s42, s42, s43")
    a("s_lshr_b32 s43, s40, 2")
    a("s_lshl_b32 s43, s43, 2")
    a("s_lshr_b32 s44, s41, 3")
    a("s_add_u32 s43, s43, s44")
    a("v_lshlrev_b32 v2, 4, v1")
    a("v_lshlrev_b32 v3, 2, v1")
    a("v_and_b32 v4, 15, v1")
    a("v_lshrrev_b32 v5, 4, v1")
    a("s_lshl_b32 s45, s42, 2")
    a("s_mul_i32 s46, s43, 5")
    a("s_waitcnt lgkmcnt(0)")
    srd(a, 36, 24, 25, WS_SIZE)
    srd(a, 28, 20, 21, S * D * 2)
    a("s_lshl_b32 s47, s45, 6")
    a("s_add_u32 s47, s47, 0x%x" % G_OFF)
    a("v_lshlrev_b32 v6, 2, v4")
    a("s_cmp_ge_u32 s26, 4")
    a("s_cbranch_scc1 K2_ATT")

    code_prefetch(a, name, "K2_END", code_bytes, 7, 8, 90, 26)
    if L2PF2:
        a("v_lshlrev_b32 v7, 7, v1")
        a("s_and_b32 s50, s40, 3")
        a("s_lshl_b32 s50, s50, 5")
        a("s_add_u32 s50, s50, s41")
        a("s_mul_i32 s50, s50, %d" % (74 * 1024))
        a("s_mul_i32 s51, s26, %d" % (148 * 128))
        a("s_add_u32 s50, s50, s51")
        if AF_OFF: a("s_add_u32 s50, s50, 0x%x" % AF_OFF)
        a("s_lshr_b32 s51, s40, 2")
        a("s_mul_i32 s52, s51, %d" % (20 * 54 * 1024))
        a("s_mul_i32 s53, s41, %d" % (270 * 128))
        a("s_add_u32 s52, s52, s53")
        a("s_mul_i32 s53, s26, %d" % (68 * 128))
        a("s_add_u32 s52, s52, s53")
        a("s_add_u32 s52, s52, 0x%x" % BF_OFF)
        a("buffer_load_dword v8, v7, s[36:39], s52 offen %s" % PF_FLAGS)
        a("v_min_u32 v9, 3, v1")
        a("v_lshlrev_b32 v9, 7, v9")
        a("buffer_load_dword v8, v9, s[36:39], s52 offen offset:0 %s" % PF_FLAGS) if False else None
        a("s_add_u32 s52, s52, 8192")
        a("buffer_load_dword v8, v9, s[36:39], s52 offen %s" % PF_FLAGS)
        a("buffer_load_dword v8, v7, s[36:39], s50 offen %s" % PF_FLAGS)
        a("s_add_u32 s50, s50, 8192")
        a("buffer_load_dword v8, v7, s[36:39], s50 offen %s" % PF_FLAGS)
        a("s_add_u32 s50, s50, 8192")
        a("v_min_u32 v9, 19, v1")
        a("v_lshlrev_b32 v9, 7, v9")
        a("buffer_load_dword v8, v9, s[36:39], s50 offen %s" % PF_FLAGS)
    ACC = 16; BUF = 96; GV = 240
    for rt in range(4):
        a("buffer_load_dword v%d, v6, s[36:39], s47 offen offset:%d" % (GV + rt, rt * 64))
    a("s_mul_i32 s48, s26, 14")
    a("s_cmp_eq_u32 s26, 3")
    a("s_cselect_b32 s49, 1, 0")
    a("s_sub_u32 s48, s48, s49")
    a("s_cmp_ge_u32 s26, 2")
    a("s_cselect_b32 s61, 13, 14")
    a("s_lshr_b32 s49, s41, 3")
    a("s_mul_i32 s49, s49, 14")
    a("s_and_b32 s50, s41, 7")
    a("s_mul_i32 s50, s50, 7")
    a("s_add_u32 s49, s49, s50")
    a("s_lshr_b32 s60, s49, 2")
    if not K2_ROT: a("s_mov_b32 s60, 0")
    a("s_cmp_ge_u32 s60, s61")
    a("s_cselect_b32 s49, s61, 0")
    a("s_sub_u32 s60, s60, s49")
    a("s_lshl_b32 s60, s60, 10")
    a("s_lshl_b32 s61, s61, 10")
    for rt in range(4):
        a("s_add_u32 s50, s45, %d" % rt)
        a("s_mul_i32 s50, s50, 74")
        a("s_add_u32 s50, s50, s48")
        a("s_lshl_b32 s50, s50, 10")
        if AF_OFF: a("s_add_u32 s50, s50, 0x%x" % AF_OFF)
        a("v_add_u32 v%d, s50, v2" % (244 + rt))
    for nt in range(5):
        a("s_add_u32 s50, s46, %d" % nt)
        a("s_mul_i32 s50, s50, 54")
        a("s_add_u32 s50, s50, s48")
        a("s_lshl_b32 s50, s50, 10")
        a("s_add_u32 s50, s50, 0x%x" % BF_OFF)
        a("v_add_u32 v%d, s50, v2" % (248 + nt))
    def loads(slot):
        b = BUF + (slot % 4) * 36
        out = []
        for nt in range(5):
            out.append("buffer_load_dwordx4 v[%d:%d], v%d, s[36:39], s60 offen" % (b + 16 + nt * 4, b + 16 + nt * 4 + 3, 248 + nt))
        for rt in range(4):
            out.append("buffer_load_dwordx4 v[%d:%d], v%d, s[36:39], s60 offen" % (b + rt * 4, b + rt * 4 + 3, 244 + rt))
        out.append("s_add_u32 s60, s60, 1024")
        out.append("s_cmp_eq_u32 s60, s61")
        out.append("s_cselect_b32 s60, 0, s60")
        return out
    def adv(): pass
    if K2_NOMLP:
        a("s_branch K2_M_DONE")
    a("s_cmp_ge_u32 s26, 2")
    a("s_cbranch_scc1 K2_M_SK0")
    for t in loads(0): a(t)
    a.label("K2_M_SK0")
    for sl in (1, 2):
        for t in loads(sl): a(t)
    for r in range(ACC, ACC + 80): a("v_mov_b32 v%d, 0" % r)
    stamp(a, 2, 15)
    for sl in range(14):
        if sl + 3 <= 13:
            for t in loads(sl + 3): a(t)
            if (sl + 3) % 4 == 3: adv()
        a("s_waitcnt vmcnt(%d)" % (9 * min(3, 13 - sl)))
        if sl == 0:
            stamp(a, 1, 15)
            a("s_cmp_ge_u32 s26, 2")
            a("s_cbranch_scc1 K2_M_SK1")
        b = BUF + (sl % 4) * 36
        for nt in range(5):
            for rt in range(4):
                c = ACC + (rt * 5 + nt) * 4
                if K2_NOMFMA: continue
                a("v_mfma_f32_16x16x32_bf16 v[%d:%d], v[%d:%d], v[%d:%d], v[%d:%d]" % (c, c + 3, b + 16 + nt * 4, b + 19 + nt * 4, b + rt * 4, b + rt * 4 + 3, c, c + 3))
        if sl == 0:
            a.label("K2_M_SK1")
    a.label("K2_M_DONE")
    stamp(a, 3, 15)
    for rt in range(4):
        a("v_sub_f32 v%d, 1.0, v%d" % (244 + 2 * rt, GV + rt))
        a("v_sub_f32 v%d, 1.0, v%d" % (245 + 2 * rt, GV + rt))
    a("v_add_u32 v7, %d, v2" % K2_EX)
    a("v_add_u32 v10, %d, v2" % (K2_EX + 2 * 17 * 1024))
    a("s_nop 4")
    for ti in range(20):
        rt = ti // 5
        c = ACC + ti * 4
        for e in (0, 2):
            a("v_pk_mul_f32 v[%d:%d], v[%d:%d], v[%d:%d]" % (c + e, c + e + 1, c + e, c + e + 1, 244 + 2 * rt, 245 + 2 * rt))
    T = BUF
    O = T + 96
    for w in range(4):
        a("s_cmp_eq_u32 s26, %d" % w)
        a("s_cbranch_scc0 K2_X%d" % w)
        for rt in range(4):
            for nt in range(5):
                c = ACC + (rt * 5 + nt) * 4
                if rt == w:
                    if nt >= 3:
                        a("ds_write_b128 v%d, v[%d:%d] offset:%d" % (7 if rt < 2 else 10, c, c + 3, ((rt % 2) * 17 + 15 + nt - 3) * 1024))
                    continue
                idx = w if w < rt else w - 1
                a("ds_write_b128 v%d, v[%d:%d] offset:%d" % (7 if rt < 2 else 10, c, c + 3, ((rt % 2) * 17 + idx * 5 + nt) * 1024))
        for x in range(12):
            a("v_mov_b32 v%d, v%d" % (O + x, ACC + w * 20 + x))
        a("s_branch K2_XD")
        a.label("K2_X%d" % w)
    a.label("K2_XD")
    a("s_mul_i32 s50, s26, %d" % (17 * 1024))
    a("v_add_u32 v7, s50, v7")
    a("s_mul_i32 s50, s26, %d" % (5 * 1024))
    a("v_add_u32 v9, s50, v2")
    a("s_add_u32 s50, s45, s26")
    a("s_mul_i32 s50, s50, %d" % (16 * 1280))
    a("s_mul_i32 s51, s46, 32")
    a("s_add_u32 s50, s50, s51")
    a("v_mul_u32_u24 v8, 1280, v4")
    a("v_lshl_add_u32 v8, v5, 3, v8")
    a("s_waitcnt lgkmcnt(0)")
    a("s_barrier")
    stamp(a, 4, 15)
    def final(nts, own):
        srcs = []
        for idx in range(3):
            for k_, nt in enumerate(nts): srcs.append((k_, "v7", (idx * 5 + nt) * 1024))
        if own is None:
            for k_, nt in enumerate(nts): srcs.append((k_, "v7", (15 + nt - 3) * 1024))
        for u in range(4):
            for k_, nt in enumerate(nts): srcs.append((k_, "v9" if u < 2 else "v10", (u % 2) * K2_ATT + nt * 1024))
        a("v_add_u32 v10, %d, v9" % (2 * K2_ATT))
        for n, (k_, ar, off) in enumerate(srcs):
            a("ds_read_b128 v[%d:%d], %s offset:%d" % (T + n * 4, T + n * 4 + 3, ar, off))
        first = [own is not None] * len(nts)
        for n, (k_, ar, off) in enumerate(srcs):
            rem = len(srcs) - 1 - n
            if n % len(nts) == 0: a("s_waitcnt lgkmcnt(%d)" % max(0, min(15, rem - (len(nts) - 1))))
            o = O + k_ * 4; r = T + n * 4
            if not first[k_]:
                for x in range(4): a("v_mov_b32 v%d, v%d" % (o + x, r + x))
                first[k_] = True
            else:
                for e in (0, 2):
                    a("v_pk_add_f32 v[%d:%d], v[%d:%d], v[%d:%d]" % (o + e, o + e + 1, o + e, o + e + 1, r + e, r + e + 1))
        stamp(a, 6, 15) if own is None else stamp(a, 5, 15)
        for k_, nt in enumerate(nts):
            o = O + k_ * 4
            a("v_cvt_pk_bf16_f32 v%d, v%d, v%d" % (o, o, o + 1))
            a("v_cvt_pk_bf16_f32 v%d, v%d, v%d" % (o + 1, o + 2, o + 3))
            a("buffer_store_dwordx2 v[%d:%d], v8, s[28:31], s50 offen offset:%d" % (o, o + 1, nt * 32))
    final([0, 1, 2], O)
    stamp_flush(a, 15, 14, 2, 26, 8)
    a("s_endpgm")
    FINAL = final

    a.label("K2_ATT")
    if K2_NOATT:
        a("s_barrier")
        stamp_flush(a, 15, 14, 2, 26, 8)
        a("s_endpgm")
    a("s_setprio %d" % ATT_PRIO)
    a("s_sub_u32 s27, s26, 4")
    RAW = 16; KVA = 120; WO = [192, 212]; DT = 232
    MF = 16
    GV = 252
    vmq = []
    def vm_issue(tag, text):
        a(text); vmq.append(tag)
    def vm_need(tag):
        idx = [i for i, t in enumerate(vmq) if t == tag]
        if not idx: return
        last = max(idx)
        a("s_waitcnt vmcnt(%d)" % min(63, len(vmq) - 1 - last))
        del vmq[:last + 1]
    a("s_mul_i32 s48, s27, 640")
    a("s_add_u32 s48, s48, 0x%x" % Z_OFF)
    a("v_lshlrev_b32 v7, 4, v5")
    for sx in range(5):
        for ab in range(2):
            r = KVA + (sx * 2 + ab) * 4
            vm_issue("Z", "buffer_load_dwordx4 v[%d:%d], v7, s[36:39], s48 offen offset:%d" % (r, r + 3, sx * 128 + ab * 64))
    for rt in range(4):
        vm_issue("G", "buffer_load_dword v%d, v6, s[36:39], s47 offen offset:%d" % (GV + rt, rt * 64))
    a("s_mul_i32 s52, s27, %d" % K2_ATT)
    a("s_mul_i32 s53, s45, 74")
    a("s_mul_i32 s54, s27, 5")
    a("s_add_u32 s53, s53, s54")
    a("s_add_u32 s53, s53, 54")
    a("s_lshl_b32 s53, s53, 10")
    if AF_OFF: a("s_add_u32 s53, s53, 0x%x" % AF_OFF)
    for rt in range(4):
        for sx in range(5):
            a("s_add_u32 s54, s53, %d" % ((rt * 74 + sx) * 1024))
            a("s_add_u32 m0, s52, %d" % ((rt * 5 + sx) * 1024))
            a("s_nop 0")
            vm_issue("PQ", "buffer_load_dwordx4 v2, s[36:39], s54 offen lds")
    a("s_mul_i32 s49, s27, %d" % (26 * 1024))
    a("s_add_u32 s49, s49, 0x%x" % KV_OFF)
    for ti in range(26):
        vm_issue("KV", "buffer_load_dwordx4 v[%d:%d], v2, s[36:39], s49 offen offset:%d" % (RAW + ti * 4, RAW + ti * 4 + 3, (ti % 4) * 1024))
        if ti % 4 == 3: a("s_add_u32 s49, s49, 4096")
    a("s_mul_i32 s50, s46, 20")
    a("s_mul_i32 s51, s27, 5")
    a("s_add_u32 s50, s50, s51")
    a("s_lshl_b32 s50, s50, 10")
    a("s_add_u32 s50, s50, 0x%x" % WOF_OFF)
    def wo_loads(nt):
        a("s_add_u32 s51, s50, %d" % (nt * 20480))
        for p in range(4):
            r = WO[nt % 2] + p * 4
            vm_issue("WO%d" % nt, "buffer_load_dwordx4 v[%d:%d], v2, s[36:39], s51 offen offset:%d" % (r, r + 3, p * 1024))
        a("s_add_u32 s51, s51, 4096")
        r = WO[nt % 2] + 16
        vm_issue("WO%d" % nt, "buffer_load_dwordx4 v[%d:%d], v2, s[36:39], s51 offen" % (r, r + 3))
    wo_loads(0); wo_loads(1)
    stamp(a, 2, 15)
    a("s_lshl_b32 s55, s27, 11")
    a("s_add_u32 s55, s55, %d" % K2_TAB)
    a("v_add_u32 v9, s52, v2")
    a("v_lshlrev_b32 v10, 5, v4")
    a("v_add_u32 v10, s55, v10")
    a("v_lshl_add_u32 v8, v5, 4, v10")
    for gb in (1, 2, 3):
        a("v_cmp_le_u32 vcc, %d, v5" % gb)
        a("s_nop 1")
        a("v_cndmask_b32 v%d, 0, 4, vcc" % (10 + gb))
        a("v_add_u32 v%d, v10, v%d" % (10 + gb, 10 + gb))
    ZF = 160
    vm_need("Z")
    for sx in range(5):
        r0 = KVA + sx * 8
        o = ZF + sx * 4
        a("v_cvt_pk_bf16_f32 v%d, v%d, v%d" % (o, r0, r0 + 1))
        a("v_cvt_pk_bf16_f32 v%d, v%d, v%d" % (o + 1, r0 + 2, r0 + 3))
        a("v_cvt_pk_bf16_f32 v%d, v%d, v%d" % (o + 2, r0 + 4, r0 + 5))
        a("v_cvt_pk_bf16_f32 v%d, v%d, v%d" % (o + 3, r0 + 6, r0 + 7))
        for ab in range(2):
            m = 0
            for l in range(64):
                if (32 * sx + 16 * ab + 4 * (l >> 4)) // 20 == (l & 15): m |= 1 << l
            a("s_mov_b32 s56, 0x%x" % (m & 0xffffffff))
            a("s_mov_b32 s57, 0x%x" % (m >> 32))
            a("v_cndmask_b32 v%d, 0, v%d, s[56:57]" % (o + 2 * ab, o + 2 * ab))
            a("v_cndmask_b32 v%d, 0, v%d, s[56:57]" % (o + 2 * ab + 1, o + 2 * ab + 1))
    PB = [120, 140]; DEN = 232; SC = 180
    vm_need("PQ")
    def pq_reads(rt, b):
        return ["ds_read_b128 v[%d:%d], v9 offset:%d" % (b + sx * 4, b + sx * 4 + 3, (rt * 5 + sx) * 1024) for sx in range(5)]
    for t in pq_reads(0, PB[0]) + pq_reads(1, PB[1]): a(t)
    for rt in range(4):
        b = PB[rt % 2]
        a("s_waitcnt lgkmcnt(%d)" % (5 if rt < 3 else 0))
        for sx in range(5):
            c = DEN + rt * 4
            a("v_mfma_f32_16x16x32_bf16 v[%d:%d], v[%d:%d], v[%d:%d], %s" % (c, c + 3, ZF + sx * 4, ZF + sx * 4 + 3, b + sx * 4, b + sx * 4 + 3, "0" if sx == 0 else "v[%d:%d]" % (c, c + 3)))
        if rt + 2 < 4:
            for t in pq_reads(rt + 2, b): a(t)
    for t in pq_reads(0, PB[0]) + pq_reads(1, PB[1]): a(t)
    vm_need("G")
    a("s_mov_b32 s56, 0x%x" % EPS6)
    for rt in range(4):
        for r in range(4): a("v_add_f32 v%d, s56, v%d" % (DEN + rt * 4 + r, DEN + rt * 4 + r))
    for rt in range(4):
        for r in range(4): a("v_rcp_f32 v%d, v%d" % (DEN + rt * 4 + r, DEN + rt * 4 + r))
    a("s_nop 0")
    for rt in range(4):
        for r in range(4): a("v_mul_f32 v%d, v%d, v%d" % (DEN + rt * 4 + r, GV + rt, DEN + rt * 4 + r))
    a("s_mov_b32 exec_lo, -1")
    a("s_mov_b32 exec_hi, 0")
    for rt in range(4):
        a("ds_write_b128 v8, v[%d:%d] offset:%d" % (DEN + rt * 4, DEN + rt * 4 + 3, rt * 512))
    a("s_mov_b64 exec, -1")
    a("s_waitcnt lgkmcnt(0)")
    def sc_reads(rt, base):
        out = []
        for sx in range(5):
            for ab in range(2):
                hs = [(32 * sx + 16 * ab + 4 * g) // 20 for g in range(4)]
                h0 = hs[0]
                gb = next((g for g in range(4) if hs[g] > h0), None)
                areg = 10 if gb is None else 10 + gb
                out.append("ds_read_b32 v%d, v%d offset:%d" % (base + sx * 2 + ab, areg, rt * 512 + h0 * 4))
        return out
    SCB = [180, 232]
    TMP = [190, 242, 244, 246]
    for t in sc_reads(0, SCB[0]) + sc_reads(1, SCB[1]): a(t)
    for rt in range(4):
        b = PB[rt % 2]; sc0 = SCB[rt % 2]
        a("s_waitcnt lgkmcnt(%d)" % (10 if rt == 0 else (15 if rt < 3 else 5)))
        if rt >= 1:
            pass
        n = 0
        for sx in range(5):
            for x in range(4):
                r = b + sx * 4 + x; sc = sc0 + sx * 2 + (x // 2)
                t = TMP[n % 4]; n += 1
                a("v_lshlrev_b32 v%d, 16, v%d" % (t, r))
                a("v_and_b32 v%d, 0xffff0000, v%d" % (t + 1, r))
                a("v_mul_f32 v%d, v%d, v%d" % (t, sc, t))
                a("v_mul_f32 v%d, v%d, v%d" % (t + 1, sc, t + 1))
                a("v_cvt_pk_bf16_f32 v%d, v%d, v%d" % (r, t, t + 1))
        for sx in range(5):
            a("ds_write_b128 v9, v[%d:%d] offset:%d" % (b + sx * 4, b + sx * 4 + 3, (rt * 5 + sx) * 1024))
        if rt + 2 < 4:
            for t in pq_reads(rt + 2, b) + sc_reads(rt + 2, sc0): a(t)
    stamp(a, 5, 15)
    vm_need("KV")
    def ktile(DTl, ET):
        par = DTl // 5
        if ET // 5 != par: return None
        key = (DTl % 5, ET % 5)
        if key not in TRI: return None
        return RAW + (par * 13 + TRI.index(key)) * 4
    frags = []
    for DTl in range(10):
        for p in range(5):
            if ktile(DTl, 2 * p) is not None or ktile(DTl, 2 * p + 1) is not None:
                frags.append((DTl, p))
    assert len(frags) == 18
    a("s_waitcnt lgkmcnt(0)")
    for fi, (DTl, p) in enumerate(frags):
        o = KVA + fi * 4
        for half in range(2):
            t = ktile(DTl, 2 * p + half)
            if t is None:
                a("v_mov_b32 v%d, 0" % (o + 2 * half)); a("v_mov_b32 v%d, 0" % (o + 2 * half + 1))
            else:
                a("v_cvt_pk_bf16_f32 v%d, v%d, v%d" % (o + 2 * half, t, t + 1))
                a("v_cvt_pk_bf16_f32 v%d, v%d, v%d" % (o + 2 * half + 1, t + 2, t + 3))
    stamp(a, 1, 15)
    dset = 0
    pend = []
    def conv(item):
        d, nt, sx = item
        o = MF + (sx * 5 + nt) * 4
        a("v_cvt_pk_bf16_f32 v%d, v%d, v%d" % (o, d, d + 1))
        a("v_cvt_pk_bf16_f32 v%d, v%d, v%d" % (o + 1, d + 2, d + 3))
        a("v_cvt_pk_bf16_f32 v%d, v%d, v%d" % (o + 2, d + 4, d + 5))
        a("v_cvt_pk_bf16_f32 v%d, v%d, v%d" % (o + 3, d + 6, d + 7))
    a("s_nop 1")
    for nt in range(5):
        vm_need("WO%d" % nt)
        for sx in range(5):
            d = DT + (dset % 3) * 8
            dset += 1
            for half in range(2):
                DTl = 2 * sx + half
                first = True
                for fi, (D_, p) in enumerate(frags):
                    if D_ != DTl: continue
                    A_ = KVA + fi * 4; B_ = WO[nt % 2] + p * 4; c = d + half * 4
                    a("v_mfma_f32_16x16x32_bf16 v[%d:%d], v[%d:%d], v[%d:%d], %s" % (c, c + 3, A_, A_ + 3, B_, B_ + 3, "0" if first else "v[%d:%d]" % (c, c + 3)))
                    first = False
            pend.append((d, nt, sx))
            if len(pend) == 3:
                a("s_nop 1")
                conv(pend.pop(0))
        if nt + 2 <= 4: wo_loads(nt + 2)
    ACC = 120; PQB = [200, 220]
    for t in pq_reads(0, PQB[0]): a(t)
    a("s_nop 7")
    while pend:
        conv(pend.pop(0))
    stamp(a, 3, 15)
    for rt in range(4):
        b = PQB[rt % 2]
        if rt < 3:
            for t in pq_reads(rt + 1, PQB[(rt + 1) % 2]): a(t)
        a("s_waitcnt lgkmcnt(%d)" % (5 if rt < 3 else 0))
        for sx in range(5):
            for nt in range(5):
                c = ACC + (rt * 5 + nt) * 4; m = MF + (sx * 5 + nt) * 4
                a("v_mfma_f32_16x16x32_bf16 v[%d:%d], v[%d:%d], v[%d:%d], %s" % (c, c + 3, m, m + 3, b + sx * 4, b + sx * 4 + 3, "0" if sx == 0 else "v[%d:%d]" % (c, c + 3)))
        if rt >= 1:
            for nt in range(5):
                c = ACC + ((rt - 1) * 5 + nt) * 4
                a("ds_write_b128 v9, v[%d:%d] offset:%d" % (c, c + 3, ((rt - 1) * 5 + nt) * 1024))
    a("s_nop 7")
    for nt in range(5):
        c = ACC + (15 + nt) * 4
        a("ds_write_b128 v9, v[%d:%d] offset:%d" % (c, c + 3, (15 + nt) * 1024))
    a("s_mul_i32 s50, s27, %d" % (17 * 1024))
    a("s_add_u32 s50, s50, %d" % K2_EX)
    a("v_add_u32 v7, s50, v2")
    a("s_mul_i32 s50, s27, %d" % (5 * 1024))
    a("v_add_u32 v9, s50, v2")
    a("s_add_u32 s50, s45, s27")
    a("s_mul_i32 s50, s50, %d" % (16 * 1280))
    a("s_mul_i32 s51, s46, 32")
    a("s_add_u32 s50, s50, s51")
    a("v_mul_u32_u24 v8, 1280, v4")
    a("v_lshl_add_u32 v8, v5, 3, v8")
    a("s_waitcnt lgkmcnt(0)")
    stamp(a, 4, 15)
    a("s_barrier")
    FINAL([3, 4], None)
    stamp_flush(a, 15, 14, 2, 26, 8)
    a.label("K2_END")
    a("s_endpgm")
    a.end_kernel(name, 256, 96)

HDR = """; Kernarg layout for this problem (88 bytes, ptrs only, base s[0:1]):
;   offset   0: d_in[0] A_x  shape=(1, 2048, 640) dtype=bfloat16 strides=(2621440, 1280, 2) contiguous=True
;   offset   8: d_in[1] A_wqkv  shape=(640, 1920) dtype=bfloat16 strides=(3840, 2) contiguous=True
;   offset  16: d_in[2] A_wo  shape=(640, 640) dtype=bfloat16 strides=(1280, 2) contiguous=True
;   offset  24: d_in[3] B_x  shape=(1, 2048, 640) dtype=bfloat16 strides=(2621440, 1280, 2) contiguous=True
;   offset  32: d_in[4] B_w_gate  shape=(640, 1728) dtype=bfloat16 strides=(3456, 2) contiguous=True
;   offset  40: d_in[5] B_w_up  shape=(640, 1728) dtype=bfloat16 strides=(3456, 2) contiguous=True
;   offset  48: d_in[6] B_w_down  shape=(1728, 640) dtype=bfloat16 strides=(1280, 2) contiguous=True
;   offset  56: d_in[7] gate_w  shape=(640,) dtype=bfloat16 strides=(2,) contiguous=True
;   k1: x @ [wqkv | w_gate | w_up] with fused epilogues (phi(q), h = sigmoid(g)*u, kv/z partial sums via atomics, gate)
;   k2: [h | phi(q)/den] @ [w_down ; blockdiag(kv) @ wo] with the gated mix
"""
if __name__ == "__main__":
    if len(sys.argv) > 1 and sys.argv[1] == "stamp": STAMP = True
    for o in sys.argv[3:]:
        k_, v_ = o.split("=")
        globals()[k_] = eval(v_)
    a = Asm()
    gen_k1(a, "k1_kernel", 32768)
    gen_k2(a, "k2_kernel", 32768)
    hdr = HDR + "; @launch kernel=k1_kernel grid=(256,1,1) block=(512,1,1) lds=%d\n" % K1_LDS
    hdr += "; @launch kernel=k2_kernel grid=(256,1,1) block=(512,1,1) lds=%d" % K2_LDS
    out = sys.argv[2] if len(sys.argv) > 2 else "k12.s"
    open(out, "w").write(a.text(hdr))
```

```python
import sys
from asmlib import Asm

S, D, F = 2048, 640, 1728
AF_OFF  = 0x0000000
BF_OFF  = 0x0A00000
WOF_OFF = 0x0D00000
KV_OFF  = 0x0E00000
Z_OFF   = KV_OFF + 4 * 26 * 1024
ZERO_BYTES = 108 * 1024
G_OFF   = 0x0E40000
JUNK_OFF = 0x0F00000
WS_SIZE = 0x10000000
LOG2E = 0x3fb8aa3b
NLOG2E = 0xbfb8aa3b
EPS6 = 0x358637bd

def head(c): return c // 20

class LdsQ:
    def __init__(self, a):
        self.a = a; self.q = []
    def issue(self, tag, text):
        self.a(text); self.q.append(tag)
    def need(self, tags):
        idx = [i for i, t in enumerate(self.q) if t in tags]
        if not idx: return
        last = max(idx)
        n = len(self.q) - 1 - last
        assert n <= 15
        self.a("s_waitcnt lgkmcnt(%d)" % n)
        self.q = self.q[last + 1:]
    def drain(self):
        self.a("s_waitcnt lgkmcnt(0)"); self.q = []

B_SLOT, A_SLOT = 24576, 16384
A_BASE = 4 * B_SLOT
GW_BASE = A_BASE + 3 * A_SLOT
K1_LDS = GW_BASE + 2048

TRI = [(dt, et) for dt in range(5) for et in range(5) if abs(dt - et) <= 1 and
       any(head(16 * dt + x) == head(16 * et + y) for x in range(16) for y in range(16))]
assert len(TRI) == 13

def kv_tile_index(par, dt, et):
    return par * 13 + TRI.index((dt, et))

def srd(a, d, lo, hi, size):
    a("s_mov_b32 s%d, s%d" % (d, lo))
    a("s_mov_b32 s%d, s%d" % (d + 1, hi))
    a("s_mov_b32 s%d, 0x%x" % (d + 2, size))
    a("s_mov_b32 s%d, 0x00020000" % (d + 3))

def code_prefetch(a, label_start, label_end, nbytes, vtmp, vdst, stmp, swave):
    a("s_getpc_b64 s[%d:%d]" % (stmp, stmp + 1))
    here = a.newlabel("PC")
    a.label(here)
    a("s_sub_u32 s%d, s%d, %s-%s" % (stmp, stmp, here, label_start))
    a("s_subb_u32 s%d, s%d, 0" % (stmp + 1, stmp + 1))
    a("v_and_b32 v%d, 63, v0" % vtmp)
    a("v_lshlrev_b32 v%d, 7, v%d" % (vtmp, vtmp))
    a("s_lshl_b32 s%d, s%d, 13" % (stmp + 2, swave))
    a("v_add_u32 v%d, s%d, v%d" % (vtmp, stmp + 2, vtmp))
    n = (nbytes + 32767) // 32768
    for i in range(n):
        a("v_min_u32 v%d, %s-%s-4, v%d" % (vdst + 1, label_end, label_start, vtmp))
        a("global_load_dword v%d, v%d, s[%d:%d]" % (vdst, vdst + 1, stmp, stmp + 1))
        if i + 1 < n:
            a("v_add_u32 v%d, 32768, v%d" % (vtmp, vtmp))

TS_OFF = 0x0F80000
STAMP = False
def stamp(a, idx, v):
    if not STAMP: return
    a("s_memrealtime s[94:95]")
    a("s_waitcnt lgkmcnt(0)")
    a("v_writelane_b32 v%d, s94, %d" % (v, idx))
def stampc(a, idx, v):
    if not STAMP: return
    a("s_memtime s[94:95]")
    a("s_waitcnt lgkmcnt(0)")
    a("v_writelane_b32 v%d, s94, %d" % (v, idx))
TS_CUR = [0]
def stamp_flush(a, v, vt, swg, swave, nw, wsrd=36):
    if not STAMP: return
    a("s_waitcnt vmcnt(0)")
    stamp(a, 7, v)
    a("s_mul_i32 s94, s%d, %d" % (swg, nw))
    a("s_add_u32 s94, s94, s%d" % swave)
    a("s_lshl_b32 s94, s94, 7")
    a("s_add_u32 s94, s94, 0x%x" % (TS_OFF + TS_CUR[0]))
    a("s_mov_b32 exec_lo, -1")
    a("s_mov_b32 exec_hi, 0")
    a("v_and_b32 v%d, 63, v0" % vt)
    a("v_lshlrev_b32 v%d, 2, v%d" % (vt, vt))
    a("buffer_store_dword v%d, v%d, s[%d:%d], s94 offen" % (v, vt, wsrd, wsrd + 3))
    a("s_waitcnt vmcnt(0)")

PF_FLAGS = ""
L2PF = True
PF_DIST = 3
TLBWARM = False
GW_QONLY = True
B_FIRST = True
TLB_IT = 3
PF_K2CODE = True
PF_START = 0
PRETOUCH = False
K2_NOATT = False
KV_MASK = True
K2_ROT = False
K2_NOMFMA = False
K2_NOMLP = False
ATT_PRIO = 3
ATT_PRIO2 = None
ST_FLAGS = "sc0 sc1"
RAMP = 3
L2PF2 = False
def gen_k1(a, name, code_bytes):
    a.begin_kernel(name)
    a("s_cmp_ge_u32 s2, 256")
    a("s_cbranch_scc1 K1_END")
    a("s_load_dwordx16 s[4:19], s[0:1], 0")
    a("s_load_dwordx4 s[20:23], s[0:1], 64")
    a("s_load_dwordx2 s[24:25], s[0:1], 80")
    a("v_lshrrev_b32 v2, 6, v0")
    a("v_and_b32 v1, 63, v0")
    a("v_readfirstlane_b32 s26, v2")
    a("s_and_b32 s40, s2, 7")
    a("s_lshr_b32 s41, s2, 3")
    a("s_and_b32 s42, s40, 1")
    a("s_lshl_b32 s42, s42, 3")
    a("s_and_b32 s43, s41, 7")
    a("s_add_u32 s42, s42, s43")
    a("s_lshr_b32 s43, s40, 1")
    a("s_lshl_b32 s43, s43, 2")
    a("s_lshr_b32 s44, s41, 3")
    a("s_add_u32 s43, s43, s44")
    def srds(sv):
        a("s_waitcnt lgkmcnt(0)")
        stamp(a, 0, sv)
        srd(a, 28, 4, 5, S * D * 2)
        srd(a, 36, 24, 25, WS_SIZE)
        srd(a, 48, 18, 19, D * 2)
        srd(a, 52, 22, 23, 256)
    a("s_cmp_eq_u32 s43, 15")
    a("s_cbranch_scc1 K1_PREP")
    a("s_cmp_lt_u32 s26, 4")
    a("s_cbranch_scc1 K1_COMPUTE")

    a.c("loader waves")
    a("s_sub_u32 s27, s26, 4")
    a("s_lshr_b32 s44, s27, 1")
    a("s_lshl_b32 s47, s27, 5")
    a("v_lshrrev_b32 v2, 3, v1")
    a("v_add_u32 v2, s47, v2")
    a("v_mul_u32_u24 v2, 1280, v2")
    a("v_lshrrev_b32 v3, 4, v1")
    a("v_and_b32 v5, 7, v1")
    a("v_xor_b32 v3, v3, v5")
    a("v_lshlrev_b32 v3, 4, v3")
    a("v_add_u32 v16, v2, v3")
    a("v_xor_b32 v3, 64, v3")
    a("v_add_u32 v17, v2, v3")
    a("v_add_u32 v17, 10240, v17")
    a("v_add_u32 v18, 20480, v16")
    a("v_add_u32 v19, 20480, v17")
    a("s_movk_i32 s45, 3456")
    a("s_mul_i32 s46, s43, 384")
    a("s_cmp_lt_u32 s43, 9")
    a("s_cbranch_scc1 K1_LD_GO")
    a("s_movk_i32 s45, 3840")
    a("s_sub_u32 s46, s43, 9")
    a("s_mul_i32 s46, s46, 320")
    a("s_mul_i32 s47, s44, 1280")
    a("s_add_u32 s46, s46, s47")
    a("s_add_u32 s46, s46, 1280")
    a("s_sub_u32 s47, s43, 13")
    a("s_lshl_b32 s47, s47, 1")
    a("s_add_u32 s47, s47, s44")
    a("s_mul_i32 s47, s47, 320")
    a("s_cmp_lt_u32 s43, 13")
    a("s_cselect_b32 s46, s46, s47")
    a("s_and_b32 s46, s46, 0xffffff80")
    a.label("K1_LD_GO")
    a("s_and_b32 s47, s27, 1")
    a("s_mul_i32 s47, s47, 384")
    a("s_mov_b32 s64, 2731")
    a("s_lshl_b32 s63, s45, 3")
    for c in range(768): assert (c * 2731) >> 16 == c // 24
    for i in range(3):
        a("v_add_u32 v2, s47, v1")
        if i: a("v_add_u32 v2, %d, v2" % (64 * i))
        a("v_mul_u32_u24 v3, s64, v2")
        a("v_lshrrev_b32 v3, 16, v3")
        a("v_mul_u32_u24 v5, 24, v3")
        a("v_sub_u32 v5, v2, v5")
        a("v_bfe_u32 v6, v3, 1, 1")
        a("v_lshrrev_b32 v7, 2, v3")
        a("v_and_or_b32 v6, v7, 2, v6")
        a("v_lshrrev_b32 v7, 1, v5")
        a("v_xor_b32 v7, v7, v6")
        a("v_lshlrev_b32 v7, 5, v7")
        a("v_and_b32 v5, 1, v5")
        a("v_lshl_add_u32 v7, v5, 4, v7")
        a("v_mul_lo_u32 v3, v3, s45")
        a("v_add_u32 v%d, v3, v7" % (10 + i))
        a("v_xor_b32 v7, 64, v7")
        a("v_add3_u32 v%d, v3, v7, s63" % (13 + i))
    a("s_mul_i32 s65, s42, %d" % (128 * 1280))
    a("s_lshl_b32 s66, s45, 5")
    a("s_mul_i32 s67, s27, 6144")
    a("s_lshl_b32 s68, s27, 12")
    a("s_add_u32 s68, s68, %d" % A_BASE)
    srds(20)
    srd(a, 32, 6, 7, D * 3 * D * 2)
    a("s_cmp_lt_u32 s43, 9")
    a("s_cbranch_scc0 K1_LD_GO2")
    a("s_cmp_eq_u32 s44, 0")
    a("s_cselect_b32 s32, s12, s14")
    a("s_cselect_b32 s33, s13, s15")
    a("s_mov_b32 s34, 0x%x" % (D * F * 2))
    a.label("K1_LD_GO2")
    issued = []
    def issueB(t):
        a("s_mul_i32 s69, s66, %d" % t)
        a("s_add_u32 s69, s69, s46")
        for i in range(6):
            a("s_add_u32 m0, s67, %d" % ((t % 4) * B_SLOT + i * 1024))
            a("s_nop 0")
            a("buffer_load_dwordx4 v%d, s[32:35], s69 offen lds" % (10 + i))
            issued.append(("B", t))
    def issueA(T):
        a("s_add_u32 s70, s65, %d" % (T * 128))
        for i in range(4):
            a("s_add_u32 m0, s68, %d" % ((T % 3) * A_SLOT + i * 1024))
            a("s_nop 0")
            a("buffer_load_dwordx4 v%d, s[28:31], s70 offen lds" % (16 + i))
            issued.append(("A", T))
    stamp(a, 2, 20)
    if GW_QONLY:
        a("s_cmp_lt_u32 s43, 13")
        a("s_cbranch_scc1 K1_LD_NGW")
    a("v_lshlrev_b32 v2, 4, v1")
    a("s_mov_b32 m0, %d" % GW_BASE)
    a("v_add_u32 v3, 1024, v2")
    a("buffer_load_dwordx4 v2, s[48:51], 0 offen lds")
    a("s_mov_b32 m0, %d" % (GW_BASE + 1024))
    a("s_nop 0")
    a("buffer_load_dwordx4 v3, s[48:51], 0 offen lds")
    a.label("K1_LD_NGW")
    stamp(a, 8, 20)
    if B_FIRST:
        issueB(0); issueA(0)
    else:
        issueA(0); issueB(0)
    stamp(a, 10, 20)
    issueB(1)
    stamp(a, 11, 20)
    nextB, nextA = 2, 1
    if RAMP == 2:
        issueA(1)
        nextA = 2
    elif RAMP == 3:
        issueA(1); issueB(2)
        nextB, nextA = 3, 2
    elif not RAMP:
        issueA(1); issueB(2); issueB(3); issueA(2)
        nextB, nextA = 4, 3
    code_prefetch(a, name, "K2_END" if PF_K2CODE else "K1_END", 65536 if PF_K2CODE else code_bytes, 3, 4, 90, 27)
    issued.append(("P", 0))
    if PF_K2CODE: issued.append(("P", 0))
    stamp(a, 3, 20)
    for t in range(21):
        if t <= 19:
            last = max(i for i, x in enumerate(issued) if x == ("B", t) or x == ("A", t // 2))
            n = len(issued) - 1 - last
            a("s_waitcnt vmcnt(%d)" % n)
        a("s_barrier")
        if t == 0: stamp(a, 1, 20)
        while nextA <= 9 and nextA - 3 <= t // 2 - 1 and nextA <= t // 2 + 2 and (nextA * 2 <= nextB + 1 or nextB > 19):
            issueA(nextA); nextA += 1
        while nextB <= 19 and nextB - 4 <= t - 1 and not (RAMP in (2, 3) and t == 0 and nextB > RAMP):
            issueB(nextB); nextB += 1
            while nextA <= 9 and nextA - 3 <= t // 2 - 1 and nextA * 2 <= nextB:
                issueA(nextA); nextA += 1
    assert nextA == 10 and nextB == 20
    if PRETOUCH:
        a("v_mov_b32 v2, 4")
        a("buffer_load_dword v3, v2, s[52:55], 0 offen sc0 sc1")
        a("s_and_b32 s71, s2, 7")
        a("s_lshr_b32 s71, s71, 2")
        a("s_waitcnt vmcnt(0)")
        a("v_readfirstlane_b32 s72, v3")
        a("s_cmp_lt_u32 s41, 24")
        a("s_cbranch_scc0 K1_LD_END")
        a("s_cmp_eq_u32 s72, 128")
        a("s_cbranch_scc0 K1_LD_END")
        a("s_lshl_b32 s73, s41, 2")
        a("s_add_u32 s73, s73, s27")
        a("v_lshlrev_b32 v2, 7, v1")
        a("s_mul_i32 s74, s71, %d" % (20 * 54 * 1024))
        a("s_mul_i32 s75, s73, %d" % (90 * 128))
        a("s_add_u32 s74, s74, s75")
        a("s_add_u32 s74, s74, 0x%x" % BF_OFF)
        a("buffer_load_dword v4, v2, s[36:39], s74 offen")
        a("v_min_u32 v3, 25, v1")
        a("v_lshlrev_b32 v3, 7, v3")
        a("s_add_u32 s74, s74, 8192")
        a("buffer_load_dword v4, v3, s[36:39], s74 offen")
        a("s_mul_i32 s74, s71, %d" % (20 * 20 * 1024))
        a("s_mul_i32 s75, s73, %d" % (34 * 128))
        a("s_min_u32 s75, s75, %d" % ((3200 - 34) * 128))
        a("s_add_u32 s74, s74, s75")
        a("s_add_u32 s74, s74, 0x%x" % WOF_OFF)
        a("v_min_u32 v3, 33, v1")
        a("v_lshlrev_b32 v3, 7, v3")
        a("buffer_load_dword v4, v3, s[36:39], s74 offen")
        a.label("K1_LD_END")
    stamp_flush(a, 20, 21, 2, 26, 8)
    a("s_endpgm")

    a.label("K1_COMPUTE")
    a("s_lshr_b32 s44, s26, 1")
    a("s_and_b32 s45, s26, 1")
    a("s_cmp_lt_u32 s43, 9")
    a("s_cbranch_scc0 K1_C_QKV")
    a("s_mul_i32 s46, s45, 6")
    a("s_mov_b32 s47, 0")
    a("s_branch K1_C_GO")
    a.label("K1_C_QKV")
    a("s_cmp_lt_u32 s43, 13")
    a("s_cbranch_scc0 K1_C_Q")
    a("s_sub_u32 s46, s43, 9")
    a("s_and_b32 s46, s46, 1")
    a("s_lshl_b32 s46, s46, 1")
    a("s_mul_i32 s47, s45, 5")
    a("s_add_u32 s46, s46, s47")
    a("s_mov_b32 s47, 0")
    a("s_branch K1_C_GO")
    a.label("K1_C_Q")
    a("s_lshl_b32 s46, s45, 1")
    a("s_mul_i32 s47, s45, 12288")
    a.label("K1_C_GO")
    VA, VB = 2, 4
    a("v_and_b32 v8, 15, v1")
    a("v_lshrrev_b32 v9, 4, v1")
    a("s_lshl_b32 s64, s44, 13")
    a("s_add_u32 s64, s64, %d" % A_BASE)
    a("v_lshrrev_b32 v10, 1, v8")
    a("v_xor_b32 v11, v9, v10")
    a("v_lshlrev_b32 v11, 4, v11")
    a("v_lshl_add_u32 v11, v8, 7, v11")
    a("v_add_u32 v2, s64, v11")
    a("v_xor_b32 v3, 64, v2")
    a("v_lshrrev_b32 v10, 2, v8")
    a("v_lshl_add_u32 v11, v9, 3, v10")
    a("v_mul_u32_u24 v11, 384, v11")
    a("v_and_b32 v12, 3, v1")
    a("v_lshl_add_u32 v11, v12, 3, v11")
    a("v_add_u32 v11, s47, v11")
    a("v_lshrrev_b32 v12, 1, v10")
    a("v_and_b32 v13, 1, v9")
    a("v_lshl_or_b32 v12, v13, 1, v12")
    for jp in range(4):
        a("s_add_u32 s64, s46, %d" % jp)
        a("s_and_b32 s65, s64, 3")
        a("s_lshr_b32 s64, s64, 2")
        a("s_lshl_b32 s64, s64, 7")
        a("v_xor_b32 v13, s65, v12")
        a("v_lshl_add_u32 v13, v13, 5, v11")
        a("v_add_u32 v%d, s64, v13" % (VB + jp))
    def pf_setup():
        a("s_and_b32 s76, s26, 1")
        a("s_movk_i32 s77, 3456")
        a("s_mul_i32 s78, s43, 384")
        srd(a, 32, 6, 7, D * 3 * D * 2)
        a("s_cmp_lt_u32 s43, 9")
        a("s_cbranch_scc0 K1_PF_QKV")
        a("s_cmp_eq_u32 s76, 0")
        a("s_cselect_b32 s32, s12, s14")
        a("s_cselect_b32 s33, s13, s15")
        a("s_mov_b32 s34, 0x%x" % (D * F * 2))
        a("s_branch K1_PF_GO")
        a.label("K1_PF_QKV")
        a("s_movk_i32 s77, 3840")
        a("s_sub_u32 s78, s43, 9")
        a("s_mul_i32 s78, s78, 320")
        a("s_mul_i32 s79, s76, 1280")
        a("s_add_u32 s78, s78, s79")
        a("s_add_u32 s78, s78, 1280")
        a("s_sub_u32 s79, s43, 13")
        a("s_lshl_b32 s79, s79, 1")
        a("s_add_u32 s79, s79, s76")
        a("s_mul_i32 s79, s79, 320")
        a("s_cmp_lt_u32 s43, 13")
        a("s_cselect_b32 s78, s78, s79")
        a("s_and_b32 s78, s78, 0xffffff80")
        a.label("K1_PF_GO")
        a("v_min_u32 v10, 23, v1")
        a("v_mul_u32_u24 v11, 0x5556, v10")
        a("v_lshrrev_b32 v11, 16, v11")
        a("v_mul_u32_u24 v12, 3, v11")
        a("v_sub_u32 v12, v10, v12")
        a("s_and_b32 s80, s41, 7")
        a("s_lshl_b32 s80, s80, 3")
        a("v_add_u32 v11, s80, v11")
        a("v_mul_lo_u32 v11, v11, s77")
        a("v_lshl_add_u32 v12, v12, 7, v11")
        a("s_lshl_b32 s79, s77, 6")
        a("s_cmp_lt_u32 s26, 2")
        a("s_cbranch_scc1 K1_PF_W")
        a("s_lshr_b32 s80, s41, 3")
        a("s_lshl_b32 s80, s80, 5")
        a("s_lshl_b32 s81, s76, 4")
        a("s_add_u32 s80, s80, s81")
        a("v_min_u32 v10, 15, v1")
        a("v_add_u32 v10, s80, v10")
        a("v_mul_u32_u24 v12, 1280, v10")
        a("s_mul_i32 s78, s42, %d" % (128 * 1280))
        a("s_movk_i32 s79, 128")
        a("s_mov_b32 s32, s4")
        a("s_mov_b32 s33, s5")
        a("s_mov_b32 s34, 0x%x" % (S * D * 2))
        a.label("K1_PF_W")
        if PF_START:
            a("s_mul_i32 s80, s79, %d" % PF_START)
            a("s_add_u32 s78, s78, s80")
        for _ in range(PF_DIST - PF_START): pf_issue()
    def pf_issue():
        a("buffer_load_dword v13, v12, s[32:35], s78 offen %s" % PF_FLAGS)
        a("s_add_u32 s78, s78, s79")
    srds(15)
    if L2PF: pf_setup()
    if TLBWARM:
        srd(a, 84, 20, 21, S * D * 2)
        a("v_min_u32 v11, 15, v1")
        a("v_lshlrev_b32 v11, 20, v11")
        a("s_cmp_eq_u32 s41, 0")
        a("s_cselect_b32 s82, 1, 0")
        a("s_cmp_eq_u32 s26, 3")
        a("s_cselect_b32 s82, s82, 0")
    for r in range(64, 256):
        a("v_mov_b32 v%d, 0" % r)
    a("s_mov_b32 s70, 0")
    a("s_mov_b32 s71, 10")
    a("s_mov_b32 s75, 49152")
    a("s_cmp_lt_u32 s43, 9")
    a("s_cbranch_scc1 K1_GU")
    a("s_cmp_lt_u32 s43, 13")
    a("s_cbranch_scc1 K1_KV")
    a("s_branch K1_Q")

    ABUF = [16, 32]
    BR = 48
    ACC = 64

    def mainloop(role):
        q = LdsQ(a)
        if role == "gu":
            frags = [(p, j) for j in range(6) for p in range(2)]
        elif role == "kv":
            frags = [(p, j) for j in range(5) for p in range(2)]
        else:
            frags = [(0, j) for j in range(10)]
        nB = len(frags)
        def accreg(fi, rt): return ACC + (fi * 4 + rt) * 4
        def readB(J, par):
            p, j = frags[J]
            slot = (par * nB + J) % 4
            out = []
            for h in range(2):
                off = (j >> 2) * 128 + h * 1536 + p * 12288 + par * B_SLOT
                r = BR + slot * 4 + h * 2
                out.append((("B", par, J), "ds_read_b64_tr_b16 v[%d:%d], v%d offset:%d" % (r, r + 1, VB + (j & 3), off)))
            return out
        def readA(par):
            out = []
            for rt in range(4):
                r = ABUF[par] + rt * 4
                out.append((("A", par, rt), "ds_read_b128 v[%d:%d], v%d offset:%d" % (r, r + 3, VA + par, rt * 2048)))
            if role == "q":
                out.append((("G", par), "ds_read_b128 v[%d:%d], v14 offset:%d" % (GW[par], GW[par] + 3, 64 * par)))
            return out
        def mfma(par, J, rt):
            slot = (par * nB + J) % 4
            b = BR + slot * 4; x = ABUF[par] + rt * 4; c = accreg(J, rt)
            if role == "kv":
                return "v_mfma_f32_16x16x32_bf16 v[%d:%d], v[%d:%d], v[%d:%d], v[%d:%d]" % (c, c + 3, x, x + 3, b, b + 3, c, c + 3)
            return "v_mfma_f32_16x16x32_bf16 v[%d:%d], v[%d:%d], v[%d:%d], v[%d:%d]" % (c, c + 3, b, b + 3, x, x + 3, c, c + 3)
        GW = [ACC + 176, ACC + 180]
        LOG = ACC + 160
        if role == "q":
            a("v_lshlrev_b32 v14, 4, v9")
            a("v_add_u32 v14, %d, v14" % GW_BASE)
        stamp(a, 2, 15)
        a("s_barrier")
        stamp(a, 1, 15)
        stampc(a, 5, 15)
        for tag, t in readA(0) + readB(0, 0) + readB(1, 0) + readB(2, 0):
            q.issue(tag, t)
        state0 = list(q.q)
        lbl = "K1_LOOP_" + role
        a.label(lbl)
        if STAMP:
            a("s_memrealtime s[94:95]")
            a("s_sub_u32 m0, 18, s71")
            a("s_waitcnt lgkmcnt(0)")
            a("v_writelane_b32 v15, s94, m0")
        if L2PF: pf_issue()
        if TLBWARM:
            a("s_cmp_eq_u32 s71, %d" % (10 - TLB_IT))
            a("s_cselect_b32 s83, s82, 0")
            a("s_cmp_eq_u32 s83, 1")
            a("s_cbranch_scc0 %s_NT" % lbl)
            a("buffer_load_dword v13, v11, s[36:39], 0 offen")
            a("buffer_load_dword v13, v11, s[84:87], 0 offen")
            a.label(lbl + "_NT")
        for par in range(2):
            for J in range(nB):
                reads = []
                pre = []
                if J + 3 <= nB - 1:
                    reads = readB(J + 3, par)
                if J == nB - 2:
                    if role == "q":
                        for rt in range(4):
                            x = ABUF[par] + rt * 4; c = LOG + rt * 4
                            a("v_mfma_f32_16x16x32_bf16 v[%d:%d], v[%d:%d], v[%d:%d], v[%d:%d]" % (c, c + 3, GW[par], GW[par] + 3, x, x + 3, c, c + 3))
                    q.drain()
                    a("s_barrier")
                    if par == 1:
                        for jp in range(4):
                            a("v_add_u32 v%d, s75, v%d" % (VB + jp, VB + jp))
                        a("s_sub_u32 s75, 0, s75")
                        a("s_add_u32 s70, s70, 16384")
                        a("s_cmp_eq_u32 s70, 49152")
                        a("s_cselect_b32 s73, s70, 0")
                        a("s_sub_u32 s70, s70, s73")
                        a("s_sub_u32 s73, 16384, s73")
                        a("v_add_u32 v2, s73, v2")
                        a("v_add_u32 v3, s73, v3")
                        if role == "q": a("v_add_u32 v14, 128, v14")
                    reads = readA(1 - par) + readB(0, 1 - par) + readB(1, 1 - par)
                if J == nB - 1:
                    reads = readB(2, 1 - par)
                q.need([("B", par, J)] + ([("A", par, 0)] if J == 0 else []))
                for rt in range(4):
                    if J == 0 and rt > 0: q.need([("A", par, rt)])
                    a(mfma(par, J, rt))
                    k = (len(reads) + (3 - rt)) // (4 - rt) if reads else 0
                    for _ in range(k):
                        tag, t = reads.pop(0); q.issue(tag, t)
                assert not reads
        a("s_sub_u32 s71, s71, 1")
        a("s_cmp_lg_u32 s71, 0")
        a("s_cbranch_scc1 %s" % lbl)
        assert q.q == state0, (q.q, state0)
        a("s_waitcnt lgkmcnt(0) vmcnt(0)")
        a("s_nop 7")
        stamp(a, 3, 15)
        stampc(a, 6, 15)
        return accreg

    a.label("K1_GU")
    accreg = mainloop("gu")
    a("s_mov_b32 s64, 0x%x" % NLOG2E); a("s_mov_b32 s65, 0x%x" % NLOG2E)
    a("s_mov_b32 s66, 1.0"); a("s_mov_b32 s67, 1.0")
    a("s_lshl_b32 s68, s42, 3")
    a("s_lshl_b32 s69, s44, 2")
    a("s_add_u32 s68, s68, s69")
    a("s_mul_i32 s68, s68, 74")
    a("s_mul_i32 s69, s43, 6")
    a("s_add_u32 s68, s68, s69")
    a("s_mul_i32 s69, s45, 3")
    a("s_add_u32 s68, s68, s69")
    a("s_lshl_b32 s68, s68, 10")
    if AF_OFF: a("s_add_u32 s68, s68, 0x%x" % AF_OFF)
    a("v_lshlrev_b32 v8, 4, v1")
    blk = 0
    for rt in range(4):
        for jp in range(3):
            T = 16 + (blk % 2) * 16
            O = T + 8
            for half in range(2):
                j = 2 * jp + half
                gq = accreg(j * 2 + 0, rt); uq = accreg(j * 2 + 1, rt)
                for e in range(0, 4, 2):
                    t = T + half * 4 + e
                    a("v_pk_mul_f32 v[%d:%d], v[%d:%d], s[64:65]" % (t, t + 1, gq + e, gq + e + 1))
            for x in range(8): a("v_exp_f32 v%d, v%d" % (T + x, T + x))
            for x in range(0, 8, 2): a("v_pk_add_f32 v[%d:%d], v[%d:%d], s[66:67]" % (T + x, T + x + 1, T + x, T + x + 1))
            for x in range(8): a("v_rcp_f32 v%d, v%d" % (T + x, T + x))
            for half in range(2):
                j = 2 * jp + half
                uq = accreg(j * 2 + 1, rt)
                for e in range(0, 4, 2):
                    t = T + half * 4 + e
                    a("v_pk_mul_f32 v[%d:%d], v[%d:%d], v[%d:%d]" % (t, t + 1, t, t + 1, uq + e, uq + e + 1))
            for x in range(4):
                a("v_cvt_pk_bf16_f32 v%d, v%d, v%d" % (O + x, T + 2 * x, T + 2 * x + 1))
            a("s_add_u32 s69, s68, %d" % ((rt * 74 + jp) * 1024))
            a("buffer_store_dwordx4 v[%d:%d], v8, s[36:39], s69 offen %s" % (O, O + 3, ST_FLAGS))
            blk += 1
    stamp_flush(a, 15, 14, 2, 26, 8)
    a("s_endpgm")

    a.label("K1_Q")
    accreg = mainloop("q")
    a("s_mov_b32 s64, 0x%x" % LOG2E); a("s_mov_b32 s65, 0x%x" % LOG2E)
    a("s_mov_b32 s66, 0x%x" % EPS6); a("s_mov_b32 s67, 0x%x" % EPS6)
    a("s_lshl_b32 s68, s42, 3")
    a("s_lshl_b32 s69, s44, 2")
    a("s_add_u32 s68, s68, s69")
    a("s_lshl_b32 s74, s68, 6")
    a("s_mul_i32 s68, s68, 74")
    a("s_sub_u32 s69, s43, 13")
    a("s_mul_i32 s69, s69, 10")
    a("s_add_u32 s68, s68, s69")
    a("s_mul_i32 s69, s45, 5")
    a("s_add_u32 s68, s68, s69")
    a("s_add_u32 s68, s68, 54")
    a("s_lshl_b32 s68, s68, 10")
    if AF_OFF: a("s_add_u32 s68, s68, 0x%x" % AF_OFF)
    a("v_lshlrev_b32 v8, 4, v1")
    def phi_pairs(srcs, T):
        n = len(srcs)
        U = T + 2 * n
        for x, s in enumerate(srcs):
            a("v_pk_mul_f32 v[%d:%d], v[%d:%d], s[64:65]" % (T + 2 * x, T + 2 * x + 1, s, s + 1))
        for x in range(2 * n):
            a("v_exp_f32 v%d, v%d clamp" % (T + x, T + x))
        for x, s in enumerate(srcs):
            a("v_max_f32 v%d, 0, v%d" % (U + 2 * x, s))
            a("v_max_f32 v%d, 0, v%d" % (U + 2 * x + 1, s + 1))
        for x in range(n):
            a("v_pk_add_f32 v[%d:%d], v[%d:%d], v[%d:%d]" % (T + 2 * x, T + 2 * x + 1, T + 2 * x, T + 2 * x + 1, U + 2 * x, U + 2 * x + 1))
        for x in range(n):
            a("v_pk_add_f32 v[%d:%d], v[%d:%d], s[66:67]" % (T + 2 * x, T + 2 * x + 1, T + 2 * x, T + 2 * x + 1))
    blk = 0
    for rt in range(4):
        for jp in range(5):
            T = 16 + (blk % 2) * 20
            O = T + 16
            srcs = [accreg(2 * jp + half, rt) + e for half in range(2) for e in (0, 2)]
            phi_pairs(srcs, T)
            for x in range(4):
                a("v_cvt_pk_bf16_f32 v%d, v%d, v%d" % (O + x, T + 2 * x, T + 2 * x + 1))
            a("s_add_u32 s69, s68, %d" % ((rt * 74 + jp) * 1024))
            a("buffer_store_dwordx4 v[%d:%d], v8, s[36:39], s69 offen %s" % (O, O + 3, ST_FLAGS))
            blk += 1
    a("s_cmp_eq_u32 s43, 13")
    a("s_cbranch_scc0 K1_Q_END")
    a("s_cmp_eq_u32 s45, 0")
    a("s_cbranch_scc0 K1_Q_END")
    a("v_cmp_gt_u32 vcc, 16, v1")
    a("s_and_saveexec_b64 s[76:77], vcc")
    a("v_lshlrev_b32 v9, 2, v1")
    a("s_mov_b32 s64, 0x%x" % NLOG2E)
    a("s_add_u32 s74, s74, 0x%x" % G_OFF)
    for rt in range(4):
        c = ACC + 160 + rt * 4
        a("v_mul_f32 v%d, s64, v%d" % (16 + rt, c))
    for rt in range(4): a("v_exp_f32 v%d, v%d" % (16 + rt, 16 + rt))
    a("s_nop 0")
    for rt in range(4): a("v_add_f32 v%d, 1.0, v%d" % (16 + rt, 16 + rt))
    for rt in range(4): a("v_rcp_f32 v%d, v%d" % (16 + rt, 16 + rt))
    a("s_nop 0")
    for rt in range(4):
        a("buffer_store_dword v%d, v9, s[36:39], s74 offen offset:%d" % (16 + rt, rt * 64))
    a.label("K1_Q_END")
    a("s_mov_b64 exec, -1")
    stamp_flush(a, 15, 14, 2, 26, 8)
    a("s_endpgm")

    a.label("K1_KV")
    accreg = mainloop("kv")
    a("v_mov_b32 v9, 0")
    a("buffer_load_dword v10, v9, s[52:55], 0 offen sc0 sc1")
    a("s_mov_b32 s64, 0x%x" % LOG2E); a("s_mov_b32 s65, 0x%x" % LOG2E)
    a("s_mov_b32 s66, 0x%x" % EPS6); a("s_mov_b32 s67, 0x%x" % EPS6)
    def fragreg(p, rp, j): return accreg(j * 2 + p, 2 * rp)
    res = [accreg(fi, 1) for fi in range(10)] + [ACC + 160 + 4 * x for x in range(8)]
    ONES = 48
    for x in range(4): a("v_mov_b32 v%d, 0x3f803f80" % (ONES + x))
    def conv_ops(rp):
        global_lines = a.lines
        a.lines = []
        blk = 0
        for j in range(5):
            T = 16 + (blk % 2) * 16
            srcs = [accreg(j * 2, 2 * rp + half) + e for half in range(2) for e in (0, 2)]
            phi_pairs(srcs, T)
            o = fragreg(0, rp, j)
            for x in range(4):
                a("v_cvt_pk_bf16_f32 v%d, v%d, v%d" % (o + x, T + 2 * x, T + 2 * x + 1))
            s0 = accreg(j * 2 + 1, 2 * rp); s1 = accreg(j * 2 + 1, 2 * rp + 1)
            a("v_cvt_pk_bf16_f32 v%d, v%d, v%d" % (s0, s0, s0 + 1))
            a("v_cvt_pk_bf16_f32 v%d, v%d, v%d" % (s0 + 1, s0 + 2, s0 + 3))
            a("v_cvt_pk_bf16_f32 v%d, v%d, v%d" % (s0 + 2, s1, s1 + 1))
            a("v_cvt_pk_bf16_f32 v%d, v%d, v%d" % (s0 + 3, s1 + 2, s1 + 3))
            blk += 1
        out = a.lines
        a.lines = global_lines
        return [l.strip() for l in out]
    def kv_mfmas(rp):
        out = []
        for ti, (dt, et) in enumerate(TRI):
            c = res[ti]
            A_ = fragreg(1, rp, et); B_ = fragreg(0, rp, dt)
            out.append("v_mfma_f32_16x16x32_bf16 v[%d:%d], v[%d:%d], v[%d:%d], %s" % (c, c + 3, A_, A_ + 3, B_, B_ + 3, "0" if rp == 0 else "v[%d:%d]" % (c, c + 3)))
        for dt in range(5):
            c = res[13 + dt]
            B_ = fragreg(0, rp, dt)
            out.append("v_mfma_f32_16x16x32_bf16 v[%d:%d], v[%d:%d], v[%d:%d], %s" % (c, c + 3, ONES, ONES + 3, B_, B_ + 3, "0" if rp == 0 else "v[%d:%d]" % (c, c + 3)))
        return out
    for t in conv_ops(0): a(t)
    a("s_nop 1")
    c1 = conv_ops(1); m0_ = kv_mfmas(0)
    per = len(c1) // len(m0_)
    for k_, m_ in enumerate(m0_):
        a(m_)
        for t in c1[k_ * per:(k_ + 1) * per]: a(t)
    for t in c1[len(m0_) * per:]: a(t)
    a("s_barrier")
    a("s_nop 0")
    for t in kv_mfmas(1): a(t)
    a("s_lshl_b32 s68, s45, 1")
    a("s_add_u32 s68, s68, s44")
    a("s_mul_i32 s68, s68, %d" % (18 * 1024))
    a("v_lshlrev_b32 v8, 4, v1")
    a("v_add_u32 v8, s68, v8")
    a.label("K1_KV_POLL")
    a("s_waitcnt vmcnt(0)")
    a("v_readfirstlane_b32 s69, v10")
    a("s_cmp_ge_u32 s69, 128")
    a("s_cbranch_scc1 K1_KV_GO")
    a("buffer_load_dword v10, v9, s[52:55], 0 offen sc0 sc1")
    a("s_branch K1_KV_POLL")
    a.label("K1_KV_GO")
    a("s_nop 3")
    for ti in range(18):
        c = res[ti]
        a("ds_write_b128 v8, v[%d:%d] offset:%d" % (c, c + 3, ti * 1024))
    a("s_mul_i32 s68, s45, %d" % (36 * 1024))
    a("v_lshlrev_b32 v8, 2, v1")
    a("v_add_u32 v9, s68, v8")
    a("v_lshl_add_u32 v10, v1, 4, s68")
    a("s_sub_u32 s68, s43, 9")
    a("s_mul_i32 s69, s68, 26")
    a("s_mul_i32 s70, s45, 13")
    a("s_add_u32 s69, s69, s70")
    a("s_lshl_b32 s69, s69, 10")
    a("s_add_u32 s69, s69, 0x%x" % KV_OFF)
    a("s_lshl_b32 s68, s68, 1")
    a("s_add_u32 s68, s68, s45")
    a("s_mul_i32 s68, s68, 320")
    a("s_add_u32 s68, s68, 0x%x" % Z_OFF)
    a("s_waitcnt lgkmcnt(0)")
    a("s_barrier")
    stamp(a, 4, 15)
    a("s_cmp_eq_u32 s44, 0")
    a("s_cbranch_scc0 K1_KV_R1")
    for rh in range(2):
        if rh == 1: a.label("K1_KV_R1")
        items = []
        tiles = list(range(0, 7)) if rh == 0 else list(range(7, 13))
        for ti in tiles:
            dt, et = TRI[ti]
            for q_ in range(4):
                m = 0
                for p in range(64):
                    if head(16 * dt + (p >> 2)) == head(16 * et + 4 * q_ + (p & 3)): m |= 1 << p
                if m: items.append(("kv", ti, q_, m))
        if rh == 1:
            for dt in range(5): items.append(("z", 13 + dt, 0, 0xffff))
        for n, (kind, ti, q_, m) in enumerate(items):
            r = 16 + 2 * n
            if kind == "kv":
                a("ds_read2st64_b32 v[%d:%d], v9 offset0:%d offset1:%d" % (r, r + 1, ti * 4 + q_, 72 + ti * 4 + q_))
            else:
                a("ds_read2st64_b32 v[%d:%d], v10 offset0:%d offset1:%d" % (r, r + 1, ti * 4, 72 + ti * 4))
        assert 16 + 2 * len(items) <= 120
        for n, (kind, ti, q_, m) in enumerate(items):
            r = 16 + 2 * n
            rem = len(items) - 1 - n
            a("s_waitcnt lgkmcnt(%d)" % min(15, rem))
            a("v_add_f32 v%d, v%d, v%d" % (r, r, r + 1))
            a("s_mov_b32 exec_lo, 0x%x" % (m & 0xffffffff))
            a("s_mov_b32 exec_hi, 0x%x" % (m >> 32))
            if kind == "kv":
                off = ti * 1024 + q_ * 256
                a("s_add_u32 s70, s69, %d" % (off & ~4095))
                a("buffer_atomic_add_f32 v%d, v8, s[36:39], s70 offen offset:%d" % (r, off & 4095))
            else:
                a("buffer_atomic_add_f32 v%d, v8, s[36:39], s68 offen offset:%d" % (r, (ti - 13) * 64))
            a("s_mov_b64 exec, -1")
        stamp_flush(a, 15, 14, 2, 26, 8)
        a("s_endpgm")

    a.label("K1_PREP")
    srds(40)
    srd(a, 56, 16, 17, F * D * 2)
    srd(a, 60, 8, 9, D * D * 2)
    a("s_lshl_b32 s44, s42, 3")
    a("s_add_u32 s44, s44, s26")
    a("v_mov_b32 v4, 0"); a("v_mov_b32 v5, 0"); a("v_mov_b32 v6, 0"); a("v_mov_b32 v7, 0")
    a("v_lshlrev_b32 v8, 4, v1")
    a("s_cmp_lt_u32 s44, %d" % (ZERO_BYTES // 1024))
    a("s_cbranch_scc0 K1_PREP_NZ")
    a("s_lshl_b32 s45, s44, 10")
    a("s_add_u32 s45, s45, 0x%x" % KV_OFF)
    a("buffer_store_dwordx4 v[4:7], v8, s[36:39], s45 offen sc0 sc1")
    a("s_waitcnt vmcnt(0)")
    a.label("K1_PREP_NZ")
    a("v_mov_b32 v9, 0")
    a("v_mov_b32 v10, 1")
    a("s_mov_b64 exec, 1")
    a("buffer_atomic_add v10, v9, s[52:55], 0 offen sc1")
    a("s_mov_b64 exec, -1")
    a("v_lshrrev_b32 v2, 3, v1")
    a("v_mul_u32_u24 v2, 1280, v2")
    a("v_and_b32 v3, 7, v1")
    a("v_lshl_add_u32 v10, v3, 4, v2")
    for i in range(1, 4): a("v_add_u32 v%d, %d, v10" % (10 + i, i * 8 * 1280))
    a("v_lshrrev_b32 v2, 4, v1")
    a("v_and_b32 v3, 15, v1")
    a("v_lshrrev_b32 v3, 2, v3")
    a("v_lshl_add_u32 v2, v2, 2, v3")
    a("v_lshlrev_b32 v2, 7, v2")
    a("v_and_b32 v3, 3, v1")
    a("v_lshl_add_u32 v14, v3, 3, v2")
    a("s_mul_i32 s46, s26, 12288")
    a("v_add_u32 v14, s46, v14")
    def prep_batch(tasks, lbl):
        skip = []
        for n, (sr, total, nks, rnd, dst) in enumerate(tasks):
            a("s_add_u32 s%d, s44, %d" % (64 + n, 128 * rnd))
            a("s_cmp_lt_u32 s%d, %d" % (64 + n, total))
            a("s_cselect_b32 s%d, s%d, 0" % (64 + n, 64 + n))
            a("s_cselect_b32 s%d, 1, 0" % (80 + n))
            a("s_mul_hi_u32 s%d, s%d, %d" % (68 + n, 64 + n, (1 << 32) // 10 + 1))
            a("s_mul_i32 s72, s%d, 10" % (68 + n))
            a("s_sub_u32 s%d, s%d, s72" % (64 + n, 64 + n))
            a("s_mul_i32 s72, s%d, %d" % (68 + n, 32 * 1280))
            a("s_lshl_b32 s73, s%d, 7" % (64 + n))
            a("s_add_u32 s72, s72, s73")
            for i in range(4):
                a("s_add_u32 m0, s46, %d" % (n * 4096 + i * 1024))
                a("s_nop 0")
                a("buffer_load_dwordx4 v%d, s[%d:%d], s72 offen lds" % (10 + i, sr, sr + 3))
        for n, (sr, total, nks, rnd, dst) in enumerate(tasks):
            a("s_waitcnt vmcnt(%d)" % (4 * (len(tasks) - 1 - n) + 4 * n))
            for j in range(4):
                for h in range(2):
                    r = 16 + j * 4 + h * 2
                    a("ds_read_b64_tr_b16 v[%d:%d], v14 offset:%d" % (r, r + 1, n * 4096 + h * 2048 + j * 32))
            a("s_lshl_b32 s72, s%d, 2" % (64 + n))
            a("s_mul_i32 s72, s72, %d" % nks)
            a("s_add_u32 s72, s72, s%d" % (68 + n))
            a("s_lshl_b32 s72, s72, 10")
            a("s_add_u32 s72, s72, 0x%x" % dst)
            a("s_cmp_eq_u32 s%d, 1" % (80 + n))
            a("s_cselect_b32 s72, s72, 0x%x" % JUNK_OFF)
            a("s_waitcnt lgkmcnt(0)")
            for j in range(4):
                a("buffer_store_dwordx4 v[%d:%d], v8, s[36:39], s72 offen %s" % (16 + j * 4, 16 + j * 4 + 3, ST_FLAGS))
                if j < 3: a("s_add_u32 s72, s72, %d" % (nks * 1024))
            a("s_nop 1")
        a("s_waitcnt vmcnt(0)")
    prep_batch([(56, 540, 54, 0, BF_OFF), (56, 540, 54, 1, BF_OFF), (56, 540, 54, 2, BF_OFF)], "b0")
    prep_batch([(56, 540, 54, 3, BF_OFF), (56, 540, 54, 4, BF_OFF), (60, 200, 20, 0, WOF_OFF)], "b1")
    prep_batch([(60, 200, 20, 1, WOF_OFF)], "b2")
    a("v_mov_b32 v9, 4")
    a("v_mov_b32 v10, 1")
    a("s_mov_b64 exec, 1")
    a("buffer_atomic_add v10, v9, s[52:55], 0 offen sc1")
    a("s_mov_b64 exec, -1")
    stamp_flush(a, 40, 41, 2, 26, 8)
    a.label("K1_END")
    a("s_endpgm")
    a.end_kernel(name, 256, 96)

K2_ATT = 20480
K2_EX  = 4 * K2_ATT
K2_TAB = K2_EX + 4 * 17 * 1024
K2_LDS = K2_TAB + 8192

def gen_k2(a, name, code_bytes):
    TS_CUR[0] = 0x40000
    a.begin_kernel(name)
    a("s_cmp_ge_u32 s2, 256")
    a("s_cbranch_scc1 K2_END")
    a("s_load_dwordx2 s[20:21], s[0:1], 64")
    a("s_load_dwordx2 s[24:25], s[0:1], 80")
    a("v_lshrrev_b32 v2, 6, v0")
    a("v_and_b32 v1, 63, v0")
    a("v_readfirstlane_b32 s26, v2")
    stamp(a, 0, 15)
    a("s_and_b32 s40, s2, 7")
    a("s_lshr_b32 s41, s2, 3")
    a("s_and_b32 s42, s40, 3")
    a("s_lshl_b32 s42, s42, 3")
    a("s_and_b32 s43, s41, 7")
    a("s_add_u32 s42, s42, s43")
    a("s_lshr_b32 s43, s40, 2")
    a("s_lshl_b32 s43, s43, 2")
    a("s_lshr_b32 s44, s41, 3")
    a("s_add_u32 s43, s43, s44")
    a("v_lshlrev_b32 v2, 4, v1")
    a("v_lshlrev_b32 v3, 2, v1")
    a("v_and_b32 v4, 15, v1")
    a("v_lshrrev_b32 v5, 4, v1")
    a("s_lshl_b32 s45, s42, 2")
    a("s_mul_i32 s46, s43, 5")
    a("s_waitcnt lgkmcnt(0)")
    srd(a, 36, 24, 25, WS_SIZE)
    srd(a, 28, 20, 21, S * D * 2)
    a("s_lshl_b32 s47, s45, 6")
    a("s_add_u32 s47, s47, 0x%x" % G_OFF)
    a("v_lshlrev_b32 v6, 2, v4")
    a("s_cmp_ge_u32 s26, 4")
    a("s_cbranch_scc1 K2_ATT")

    code_prefetch(a, name, "K2_END", code_bytes, 7, 8, 90, 26)
    if L2PF2:
        a("v_lshlrev_b32 v7, 7, v1")
        a("s_and_b32 s50, s40, 3")
        a("s_lshl_b32 s50, s50, 5")
        a("s_add_u32 s50, s50, s41")
        a("s_mul_i32 s50, s50, %d" % (74 * 1024))
        a("s_mul_i32 s51, s26, %d" % (148 * 128))
        a("s_add_u32 s50, s50, s51")
        if AF_OFF: a("s_add_u32 s50, s50, 0x%x" % AF_OFF)
        a("s_lshr_b32 s51, s40, 2")
        a("s_mul_i32 s52, s51, %d" % (20 * 54 * 1024))
        a("s_mul_i32 s53, s41, %d" % (270 * 128))
        a("s_add_u32 s52, s52, s53")
        a("s_mul_i32 s53, s26, %d" % (68 * 128))
        a("s_add_u32 s52, s52, s53")
        a("s_add_u32 s52, s52, 0x%x" % BF_OFF)
        a("buffer_load_dword v8, v7, s[36:39], s52 offen %s" % PF_FLAGS)
        a("v_min_u32 v9, 3, v1")
        a("v_lshlrev_b32 v9, 7, v9")
        a("buffer_load_dword v8, v9, s[36:39], s52 offen offset:0 %s" % PF_FLAGS) if False else None
        a("s_add_u32 s52, s52, 8192")
        a("buffer_load_dword v8, v9, s[36:39], s52 offen %s" % PF_FLAGS)
        a("buffer_load_dword v8, v7, s[36:39], s50 offen %s" % PF_FLAGS)
        a("s_add_u32 s50, s50, 8192")
        a("buffer_load_dword v8, v7, s[36:39], s50 offen %s" % PF_FLAGS)
        a("s_add_u32 s50, s50, 8192")
        a("v_min_u32 v9, 19, v1")
        a("v_lshlrev_b32 v9, 7, v9")
        a("buffer_load_dword v8, v9, s[36:39], s50 offen %s" % PF_FLAGS)
    ACC = 16; BUF = 96; GV = 240
    for rt in range(4):
        a("buffer_load_dword v%d, v6, s[36:39], s47 offen offset:%d" % (GV + rt, rt * 64))
    a("s_mul_i32 s48, s26, 14")
    a("s_cmp_eq_u32 s26, 3")
    a("s_cselect_b32 s49, 1, 0")
    a("s_sub_u32 s48, s48, s49")
    a("s_cmp_ge_u32 s26, 2")
    a("s_cselect_b32 s61, 13, 14")
    a("s_lshr_b32 s49, s41, 3")
    a("s_mul_i32 s49, s49, 14")
    a("s_and_b32 s50, s41, 7")
    a("s_mul_i32 s50, s50, 7")
    a("s_add_u32 s49, s49, s50")
    a("s_lshr_b32 s60, s49, 2")
    if not K2_ROT: a("s_mov_b32 s60, 0")
    a("s_cmp_ge_u32 s60, s61")
    a("s_cselect_b32 s49, s61, 0")
    a("s_sub_u32 s60, s60, s49")
    a("s_lshl_b32 s60, s60, 10")
    a("s_lshl_b32 s61, s61, 10")
    for rt in range(4):
        a("s_add_u32 s50, s45, %d" % rt)
        a("s_mul_i32 s50, s50, 74")
        a("s_add_u32 s50, s50, s48")
        a("s_lshl_b32 s50, s50, 10")
        if AF_OFF: a("s_add_u32 s50, s50, 0x%x" % AF_OFF)
        a("v_add_u32 v%d, s50, v2" % (244 + rt))
    for nt in range(5):
        a("s_add_u32 s50, s46, %d" % nt)
        a("s_mul_i32 s50, s50, 54")
        a("s_add_u32 s50, s50, s48")
        a("s_lshl_b32 s50, s50, 10")
        a("s_add_u32 s50, s50, 0x%x" % BF_OFF)
        a("v_add_u32 v%d, s50, v2" % (248 + nt))
    def loads(slot):
        b = BUF + (slot % 4) * 36
        out = []
        for nt in range(5):
            out.append("buffer_load_dwordx4 v[%d:%d], v%d, s[36:39], s60 offen" % (b + 16 + nt * 4, b + 16 + nt * 4 + 3, 248 + nt))
        for rt in range(4):
            out.append("buffer_load_dwordx4 v[%d:%d], v%d, s[36:39], s60 offen" % (b + rt * 4, b + rt * 4 + 3, 244 + rt))
        out.append("s_add_u32 s60, s60, 1024")
        out.append("s_cmp_eq_u32 s60, s61")
        out.append("s_cselect_b32 s60, 0, s60")
        return out
    def adv(): pass
    if K2_NOMLP:
        a("s_branch K2_M_DONE")
    a("s_cmp_ge_u32 s26, 2")
    a("s_cbranch_scc1 K2_M_SK0")
    for t in loads(0): a(t)
    a.label("K2_M_SK0")
    for sl in (1, 2):
        for t in loads(sl): a(t)
    for r in range(ACC, ACC + 80): a("v_mov_b32 v%d, 0" % r)
    stamp(a, 2, 15)
    for sl in range(14):
        if sl + 3 <= 13:
            for t in loads(sl + 3): a(t)
            if (sl + 3) % 4 == 3: adv()
        a("s_waitcnt vmcnt(%d)" % (9 * min(3, 13 - sl)))
        if sl == 0:
            stamp(a, 1, 15)
            a("s_cmp_ge_u32 s26, 2")
            a("s_cbranch_scc1 K2_M_SK1")
        b = BUF + (sl % 4) * 36
        for nt in range(5):
            for rt in range(4):
                c = ACC + (rt * 5 + nt) * 4
                if K2_NOMFMA: continue
                a("v_mfma_f32_16x16x32_bf16 v[%d:%d], v[%d:%d], v[%d:%d], v[%d:%d]" % (c, c + 3, b + 16 + nt * 4, b + 19 + nt * 4, b + rt * 4, b + rt * 4 + 3, c, c + 3))
        if sl == 0:
            a.label("K2_M_SK1")
    a.label("K2_M_DONE")
    stamp(a, 3, 15)
    for rt in range(4):
        a("v_sub_f32 v%d, 1.0, v%d" % (244 + 2 * rt, GV + rt))
        a("v_sub_f32 v%d, 1.0, v%d" % (245 + 2 * rt, GV + rt))
    a("v_add_u32 v7, %d, v2" % K2_EX)
    a("v_add_u32 v10, %d, v2" % (K2_EX + 2 * 17 * 1024))
    a("s_nop 4")
    for ti in range(20):
        rt = ti // 5
        c = ACC + ti * 4
        for e in (0, 2):
            a("v_pk_mul_f32 v[%d:%d], v[%d:%d], v[%d:%d]" % (c + e, c + e + 1, c + e, c + e + 1, 244 + 2 * rt, 245 + 2 * rt))
    T = BUF
    O = T + 96
    for w in range(4):
        a("s_cmp_eq_u32 s26, %d" % w)
        a("s_cbranch_scc0 K2_X%d" % w)
        for rt in range(4):
            for nt in range(5):
                c = ACC + (rt * 5 + nt) * 4
                if rt == w:
                    if nt >= 3:
                        a("ds_write_b128 v%d, v[%d:%d] offset:%d" % (7 if rt < 2 else 10, c, c + 3, ((rt % 2) * 17 + 15 + nt - 3) * 1024))
                    continue
                idx = w if w < rt else w - 1
                a("ds_write_b128 v%d, v[%d:%d] offset:%d" % (7 if rt < 2 else 10, c, c + 3, ((rt % 2) * 17 + idx * 5 + nt) * 1024))
        for x in range(12):
            a("v_mov_b32 v%d, v%d" % (O + x, ACC + w * 20 + x))
        a("s_branch K2_XD")
        a.label("K2_X%d" % w)
    a.label("K2_XD")
    a("s_mul_i32 s50, s26, %d" % (17 * 1024))
    a("v_add_u32 v7, s50, v7")
    a("s_mul_i32 s50, s26, %d" % (5 * 1024))
    a("v_add_u32 v9, s50, v2")
    a("s_add_u32 s50, s45, s26")
    a("s_mul_i32 s50, s50, %d" % (16 * 1280))
    a("s_mul_i32 s51, s46, 32")
    a("s_add_u32 s50, s50, s51")
    a("v_mul_u32_u24 v8, 1280, v4")
    a("v_lshl_add_u32 v8, v5, 3, v8")
    a("s_waitcnt lgkmcnt(0)")
    a("s_barrier")
    stamp(a, 4, 15)
    def final(nts, own):
        srcs = []
        for idx in range(3):
            for k_, nt in enumerate(nts): srcs.append((k_, "v7", (idx * 5 + nt) * 1024))
        if own is None:
            for k_, nt in enumerate(nts): srcs.append((k_, "v7", (15 + nt - 3) * 1024))
        for u in range(4):
            for k_, nt in enumerate(nts): srcs.append((k_, "v9" if u < 2 else "v10", (u % 2) * K2_ATT + nt * 1024))
        a("v_add_u32 v10, %d, v9" % (2 * K2_ATT))
        for n, (k_, ar, off) in enumerate(srcs):
            a("ds_read_b128 v[%d:%d], %s offset:%d" % (T + n * 4, T + n * 4 + 3, ar, off))
        first = [own is not None] * len(nts)
        for n, (k_, ar, off) in enumerate(srcs):
            rem = len(srcs) - 1 - n
            if n % len(nts) == 0: a("s_waitcnt lgkmcnt(%d)" % max(0, min(15, rem - (len(nts) - 1))))
            o = O + k_ * 4; r = T + n * 4
            if not first[k_]:
                for x in range(4): a("v_mov_b32 v%d, v%d" % (o + x, r + x))
                first[k_] = True
            else:
                for e in (0, 2):
                    a("v_pk_add_f32 v[%d:%d], v[%d:%d], v[%d:%d]" % (o + e, o + e + 1, o + e, o + e + 1, r + e, r + e + 1))
        stamp(a, 6, 15) if own is None else stamp(a, 5, 15)
        for k_, nt in enumerate(nts):
            o = O + k_ * 4
            a("v_cvt_pk_bf16_f32 v%d, v%d, v%d" % (o, o, o + 1))
            a("v_cvt_pk_bf16_f32 v%d, v%d, v%d" % (o + 1, o + 2, o + 3))
            a("buffer_store_dwordx2 v[%d:%d], v8, s[28:31], s50 offen offset:%d" % (o, o + 1, nt * 32))
    final([0, 1, 2], O)
    stamp_flush(a, 15, 14, 2, 26, 8)
    a("s_endpgm")
    FINAL = final

    a.label("K2_ATT")
    if K2_NOATT:
        a("s_barrier")
        stamp_flush(a, 15, 14, 2, 26, 8)
        a("s_endpgm")
    a("s_setprio %d" % ATT_PRIO)
    a("s_sub_u32 s27, s26, 4")
    RAW = 16; KVA = 120; WO = [192, 212]; DT = 232
    MF = 16
    GV = 252
    vmq = []
    def vm_issue(tag, text):
        a(text); vmq.append(tag)
    def vm_need(tag):
        idx = [i for i, t in enumerate(vmq) if t == tag]
        if not idx: return
        last = max(idx)
        a("s_waitcnt vmcnt(%d)" % min(63, len(vmq) - 1 - last))
        del vmq[:last + 1]
    if KV_MASK:
        KVZERO = True
    a("s_mul_i32 s48, s27, 640")
    a("s_add_u32 s48, s48, 0x%x" % Z_OFF)
    a("v_lshlrev_b32 v7, 4, v5")
    for sx in range(5):
        for ab in range(2):
            r = KVA + (sx * 2 + ab) * 4
            vm_issue("Z", "buffer_load_dwordx4 v[%d:%d], v7, s[36:39], s48 offen offset:%d" % (r, r + 3, sx * 128 + ab * 64))
    for rt in range(4):
        vm_issue("G", "buffer_load_dword v%d, v6, s[36:39], s47 offen offset:%d" % (GV + rt, rt * 64))
    a("s_mul_i32 s52, s27, %d" % K2_ATT)
    a("s_mul_i32 s53, s45, 74")
    a("s_mul_i32 s54, s27, 5")
    a("s_add_u32 s53, s53, s54")
    a("s_add_u32 s53, s53, 54")
    a("s_lshl_b32 s53, s53, 10")
    if AF_OFF: a("s_add_u32 s53, s53, 0x%x" % AF_OFF)
    for rt in range(4):
        for sx in range(5):
            a("s_add_u32 s54, s53, %d" % ((rt * 74 + sx) * 1024))
            a("s_add_u32 m0, s52, %d" % ((rt * 5 + sx) * 1024))
            a("s_nop 0")
            vm_issue("PQ", "buffer_load_dwordx4 v2, s[36:39], s54 offen lds")
    if ATT_PRIO2 is not None: a("s_setprio %d" % ATT_PRIO2)
    if KV_MASK:
        for ti in range(26):
            dt, et = TRI[ti % 13]
            if dt != et or True:
                for r in range(4): a("v_mov_b32 v%d, 0" % (RAW + ti * 4 + r))
    a("s_mul_i32 s49, s27, %d" % (26 * 1024))
    a("s_add_u32 s49, s49, 0x%x" % KV_OFF)
    for ti in range(26):
        dt, et = TRI[ti % 13]
        m = 0
        for l in range(64):
            if head(16 * dt + (l & 15)) == head(16 * et + 4 * (l >> 4)): m |= 1 << l
        full = (m == (1 << 64) - 1) or not KV_MASK
        if not full:
            a("s_mov_b32 exec_lo, 0x%x" % (m & 0xffffffff))
            a("s_mov_b32 exec_hi, 0x%x" % (m >> 32))
        vm_issue("KV", "buffer_load_dwordx4 v[%d:%d], v2, s[36:39], s49 offen offset:%d" % (RAW + ti * 4, RAW + ti * 4 + 3, (ti % 4) * 1024))
        if not full: a("s_mov_b64 exec, -1")
        if ti % 4 == 3: a("s_add_u32 s49, s49, 4096")
    a("s_mul_i32 s50, s46, 20")
    a("s_mul_i32 s51, s27, 5")
    a("s_add_u32 s50, s50, s51")
    a("s_lshl_b32 s50, s50, 10")
    a("s_add_u32 s50, s50, 0x%x" % WOF_OFF)
    def wo_loads(nt):
        a("s_add_u32 s51, s50, %d" % (nt * 20480))
        for p in range(4):
            r = WO[nt % 2] + p * 4
            vm_issue("WO%d" % nt, "buffer_load_dwordx4 v[%d:%d], v2, s[36:39], s51 offen offset:%d" % (r, r + 3, p * 1024))
        a("s_add_u32 s51, s51, 4096")
        r = WO[nt % 2] + 16
        vm_issue("WO%d" % nt, "buffer_load_dwordx4 v[%d:%d], v2, s[36:39], s51 offen" % (r, r + 3))
    wo_loads(0); wo_loads(1)
    if ATT_PRIO2 is not None: a("s_setprio %d" % ATT_PRIO)
    stamp(a, 2, 15)
    a("s_lshl_b32 s55, s27, 11")
    a("s_add_u32 s55, s55, %d" % K2_TAB)
    a("v_add_u32 v9, s52, v2")
    a("v_lshlrev_b32 v10, 5, v4")
    a("v_add_u32 v10, s55, v10")
    a("v_lshl_add_u32 v8, v5, 4, v10")
    for gb in (1, 2, 3):
        a("v_cmp_le_u32 vcc, %d, v5" % gb)
        a("s_nop 1")
        a("v_cndmask_b32 v%d, 0, 4, vcc" % (10 + gb))
        a("v_add_u32 v%d, v10, v%d" % (10 + gb, 10 + gb))
    ZF = 160
    vm_need("Z")
    for sx in range(5):
        r0 = KVA + sx * 8
        o = ZF + sx * 4
        a("v_cvt_pk_bf16_f32 v%d, v%d, v%d" % (o, r0, r0 + 1))
        a("v_cvt_pk_bf16_f32 v%d, v%d, v%d" % (o + 1, r0 + 2, r0 + 3))
        a("v_cvt_pk_bf16_f32 v%d, v%d, v%d" % (o + 2, r0 + 4, r0 + 5))
        a("v_cvt_pk_bf16_f32 v%d, v%d, v%d" % (o + 3, r0 + 6, r0 + 7))
        for ab in range(2):
            m = 0
            for l in range(64):
                if (32 * sx + 16 * ab + 4 * (l >> 4)) // 20 == (l & 15): m |= 1 << l
            a("s_mov_b32 s56, 0x%x" % (m & 0xffffffff))
            a("s_mov_b32 s57, 0x%x" % (m >> 32))
            a("v_cndmask_b32 v%d, 0, v%d, s[56:57]" % (o + 2 * ab, o + 2 * ab))
            a("v_cndmask_b32 v%d, 0, v%d, s[56:57]" % (o + 2 * ab + 1, o + 2 * ab + 1))
    PB = [120, 140]; DEN = 232; SC = 180
    vm_need("PQ")
    def pq_reads(rt, b):
        return ["ds_read_b128 v[%d:%d], v9 offset:%d" % (b + sx * 4, b + sx * 4 + 3, (rt * 5 + sx) * 1024) for sx in range(5)]
    for t in pq_reads(0, PB[0]) + pq_reads(1, PB[1]): a(t)
    for rt in range(4):
        b = PB[rt % 2]
        a("s_waitcnt lgkmcnt(%d)" % (5 if rt < 3 else 0))
        for sx in range(5):
            c = DEN + rt * 4
            a("v_mfma_f32_16x16x32_bf16 v[%d:%d], v[%d:%d], v[%d:%d], %s" % (c, c + 3, ZF + sx * 4, ZF + sx * 4 + 3, b + sx * 4, b + sx * 4 + 3, "0" if sx == 0 else "v[%d:%d]" % (c, c + 3)))
        if rt + 2 < 4:
            for t in pq_reads(rt + 2, b): a(t)
    for t in pq_reads(0, PB[0]) + pq_reads(1, PB[1]): a(t)
    vm_need("G")
    a("s_mov_b32 s56, 0x%x" % EPS6)
    for rt in range(4):
        for r in range(4): a("v_add_f32 v%d, s56, v%d" % (DEN + rt * 4 + r, DEN + rt * 4 + r))
    for rt in range(4):
        for r in range(4): a("v_rcp_f32 v%d, v%d" % (DEN + rt * 4 + r, DEN + rt * 4 + r))
    a("s_nop 0")
    for rt in range(4):
        for r in range(4): a("v_mul_f32 v%d, v%d, v%d" % (DEN + rt * 4 + r, GV + rt, DEN + rt * 4 + r))
    a("s_mov_b32 exec_lo, -1")
    a("s_mov_b32 exec_hi, 0")
    for rt in range(4):
        a("ds_write_b128 v8, v[%d:%d] offset:%d" % (DEN + rt * 4, DEN + rt * 4 + 3, rt * 512))
    a("s_mov_b64 exec, -1")
    a("s_waitcnt lgkmcnt(0)")
    def sc_reads(rt, base):
        out = []
        for sx in range(5):
            for ab in range(2):
                hs = [(32 * sx + 16 * ab + 4 * g) // 20 for g in range(4)]
                h0 = hs[0]
                gb = next((g for g in range(4) if hs[g] > h0), None)
                areg = 10 if gb is None else 10 + gb
                out.append("ds_read_b32 v%d, v%d offset:%d" % (base + sx * 2 + ab, areg, rt * 512 + h0 * 4))
        return out
    SCB = [180, 232]
    TMP = [190, 242, 244, 246]
    for t in sc_reads(0, SCB[0]) + sc_reads(1, SCB[1]): a(t)
    for rt in range(4):
        b = PB[rt % 2]; sc0 = SCB[rt % 2]
        a("s_waitcnt lgkmcnt(%d)" % (10 if rt == 0 else (15 if rt < 3 else 5)))
        if rt >= 1:
            pass
        n = 0
        for sx in range(5):
            for x in range(4):
                r = b + sx * 4 + x; sc = sc0 + sx * 2 + (x // 2)
                t = TMP[n % 4]; n += 1
                a("v_lshlrev_b32 v%d, 16, v%d" % (t, r))
                a("v_and_b32 v%d, 0xffff0000, v%d" % (t + 1, r))
                a("v_mul_f32 v%d, v%d, v%d" % (t, sc, t))
                a("v_mul_f32 v%d, v%d, v%d" % (t + 1, sc, t + 1))
                a("v_cvt_pk_bf16_f32 v%d, v%d, v%d" % (r, t, t + 1))
        for sx in range(5):
            a("ds_write_b128 v9, v[%d:%d] offset:%d" % (b + sx * 4, b + sx * 4 + 3, (rt * 5 + sx) * 1024))
        if rt + 2 < 4:
            for t in pq_reads(rt + 2, b) + sc_reads(rt + 2, sc0): a(t)
    stamp(a, 5, 15)
    vm_need("KV")
    def ktile(DTl, ET):
        par = DTl // 5
        if ET // 5 != par: return None
        key = (DTl % 5, ET % 5)
        if key not in TRI: return None
        return RAW + (par * 13 + TRI.index(key)) * 4
    frags = []
    for DTl in range(10):
        for p in range(5):
            if ktile(DTl, 2 * p) is not None or ktile(DTl, 2 * p + 1) is not None:
                frags.append((DTl, p))
    assert len(frags) == 18
    a("s_waitcnt lgkmcnt(0)")
    for fi, (DTl, p) in enumerate(frags):
        o = KVA + fi * 4
        for half in range(2):
            t = ktile(DTl, 2 * p + half)
            if t is None:
                a("v_mov_b32 v%d, 0" % (o + 2 * half)); a("v_mov_b32 v%d, 0" % (o + 2 * half + 1))
            else:
                a("v_cvt_pk_bf16_f32 v%d, v%d, v%d" % (o + 2 * half, t, t + 1))
                a("v_cvt_pk_bf16_f32 v%d, v%d, v%d" % (o + 2 * half + 1, t + 2, t + 3))
    stamp(a, 1, 15)
    dset = 0
    pend = []
    def conv(item):
        d, nt, sx = item
        o = MF + (sx * 5 + nt) * 4
        a("v_cvt_pk_bf16_f32 v%d, v%d, v%d" % (o, d, d + 1))
        a("v_cvt_pk_bf16_f32 v%d, v%d, v%d" % (o + 1, d + 2, d + 3))
        a("v_cvt_pk_bf16_f32 v%d, v%d, v%d" % (o + 2, d + 4, d + 5))
        a("v_cvt_pk_bf16_f32 v%d, v%d, v%d" % (o + 3, d + 6, d + 7))
    a("s_nop 1")
    for nt in range(5):
        vm_need("WO%d" % nt)
        for sx in range(5):
            d = DT + (dset % 3) * 8
            dset += 1
            for half in range(2):
                DTl = 2 * sx + half
                first = True
                for fi, (D_, p) in enumerate(frags):
                    if D_ != DTl: continue
                    A_ = KVA + fi * 4; B_ = WO[nt % 2] + p * 4; c = d + half * 4
                    a("v_mfma_f32_16x16x32_bf16 v[%d:%d], v[%d:%d], v[%d:%d], %s" % (c, c + 3, A_, A_ + 3, B_, B_ + 3, "0" if first else "v[%d:%d]" % (c, c + 3)))
                    first = False
            pend.append((d, nt, sx))
            if len(pend) == 3:
                a("s_nop 1")
                conv(pend.pop(0))
        if nt + 2 <= 4: wo_loads(nt + 2)
    ACC = 120; PQB = [200, 220]
    for t in pq_reads(0, PQB[0]): a(t)
    a("s_nop 7")
    while pend:
        conv(pend.pop(0))
    stamp(a, 3, 15)
    for rt in range(4):
        b = PQB[rt % 2]
        if rt < 3:
            for t in pq_reads(rt + 1, PQB[(rt + 1) % 2]): a(t)
        a("s_waitcnt lgkmcnt(%d)" % (5 if rt < 3 else 0))
        for sx in range(5):
            for nt in range(5):
                c = ACC + (rt * 5 + nt) * 4; m = MF + (sx * 5 + nt) * 4
                a("v_mfma_f32_16x16x32_bf16 v[%d:%d], v[%d:%d], v[%d:%d], %s" % (c, c + 3, m, m + 3, b + sx * 4, b + sx * 4 + 3, "0" if sx == 0 else "v[%d:%d]" % (c, c + 3)))
        if rt >= 1:
            for nt in range(5):
                c = ACC + ((rt - 1) * 5 + nt) * 4
                a("ds_write_b128 v9, v[%d:%d] offset:%d" % (c, c + 3, ((rt - 1) * 5 + nt) * 1024))
    a("s_nop 7")
    for nt in range(5):
        c = ACC + (15 + nt) * 4
        a("ds_write_b128 v9, v[%d:%d] offset:%d" % (c, c + 3, (15 + nt) * 1024))
    a("s_mul_i32 s50, s27, %d" % (17 * 1024))
    a("s_add_u32 s50, s50, %d" % K2_EX)
    a("v_add_u32 v7, s50, v2")
    a("s_mul_i32 s50, s27, %d" % (5 * 1024))
    a("v_add_u32 v9, s50, v2")
    a("s_add_u32 s50, s45, s27")
    a("s_mul_i32 s50, s50, %d" % (16 * 1280))
    a("s_mul_i32 s51, s46, 32")
    a("s_add_u32 s50, s50, s51")
    a("v_mul_u32_u24 v8, 1280, v4")
    a("v_lshl_add_u32 v8, v5, 3, v8")
    a("s_waitcnt lgkmcnt(0)")
    stamp(a, 4, 15)
    a("s_barrier")
    FINAL([3, 4], None)
    stamp_flush(a, 15, 14, 2, 26, 8)
    a.label("K2_END")
    a("s_endpgm")
    a.end_kernel(name, 256, 96)

HDR = """; Kernarg layout for this problem (88 bytes, ptrs only, base s[0:1]):
;   offset   0: d_in[0] A_x  shape=(1, 2048, 640) dtype=bfloat16 strides=(2621440, 1280, 2) contiguous=True
;   offset   8: d_in[1] A_wqkv  shape=(640, 1920) dtype=bfloat16 strides=(3840, 2) contiguous=True
;   offset  16: d_in[2] A_wo  shape=(640, 640) dtype=bfloat16 strides=(1280, 2) contiguous=True
;   offset  24: d_in[3] B_x  shape=(1, 2048, 640) dtype=bfloat16 strides=(2621440, 1280, 2) contiguous=True
;   offset  32: d_in[4] B_w_gate  shape=(640, 1728) dtype=bfloat16 strides=(3456, 2) contiguous=True
;   offset  40: d_in[5] B_w_up  shape=(640, 1728) dtype=bfloat16 strides=(3456, 2) contiguous=True
;   offset  48: d_in[6] B_w_down  shape=(1728, 640) dtype=bfloat16 strides=(1280, 2) contiguous=True
;   offset  56: d_in[7] gate_w  shape=(640,) dtype=bfloat16 strides=(2,) contiguous=True
;   k1: x @ [wqkv | w_gate | w_up] with fused epilogues (phi(q), h = sigmoid(g)*u, kv/z partial sums via atomics, gate)
;   k2: [h | phi(q)/den] @ [w_down ; blockdiag(kv) @ wo] with the gated mix
"""
if __name__ == "__main__":
    if len(sys.argv) > 1 and sys.argv[1] == "stamp": STAMP = True
    for o in sys.argv[3:]:
        k_, v_ = o.split("=")
        globals()[k_] = eval(v_)
    a = Asm()
    gen_k1(a, "k1_kernel", 32768)
    gen_k2(a, "k2_kernel", 32768)
    hdr = HDR + "; @launch kernel=k1_kernel grid=(256,1,1) block=(512,1,1) lds=%d\n" % K1_LDS
    hdr += "; @launch kernel=k2_kernel grid=(256,1,1) block=(512,1,1) lds=%d" % K2_LDS
    out = sys.argv[2] if len(sys.argv) > 2 else "k12.s"
    open(out, "w").write(a.text(hdr))
```

```python
import sys
from asmlib import Asm

S, D, F = 2048, 640, 1728
AF_OFF  = 0x0000000
BF_OFF  = 0x0A00000
WOF_OFF = 0x0D00000
KV_OFF  = 0x0E00000
Z_OFF   = KV_OFF + 4 * 26 * 1024
ZERO_BYTES = 108 * 1024
G_OFF   = 0x0E40000
JUNK_OFF = 0x0F00000
WS_SIZE = 0x10000000
LOG2E = 0x3fb8aa3b
NLOG2E = 0xbfb8aa3b
EPS6 = 0x358637bd

def head(c): return c // 20

class LdsQ:
    def __init__(self, a):
        self.a = a; self.q = []
    def issue(self, tag, text):
        self.a(text); self.q.append(tag)
    def need(self, tags):
        idx = [i for i, t in enumerate(self.q) if t in tags]
        if not idx: return
        last = max(idx)
        n = len(self.q) - 1 - last
        assert n <= 15
        self.a("s_waitcnt lgkmcnt(%d)" % n)
        self.q = self.q[last + 1:]
    def drain(self):
        self.a("s_waitcnt lgkmcnt(0)"); self.q = []

B_SLOT, A_SLOT = 24576, 16384
A_BASE = 4 * B_SLOT
GW_BASE = A_BASE + 3 * A_SLOT
K1_LDS = GW_BASE + 2048

TRI = [(dt, et) for dt in range(5) for et in range(5) if abs(dt - et) <= 1 and
       any(head(16 * dt + x) == head(16 * et + y) for x in range(16) for y in range(16))]
assert len(TRI) == 13

def kv_tile_index(par, dt, et):
    return par * 13 + TRI.index((dt, et))

def srd(a, d, lo, hi, size):
    a("s_mov_b32 s%d, s%d" % (d, lo))
    a("s_mov_b32 s%d, s%d" % (d + 1, hi))
    a("s_mov_b32 s%d, 0x%x" % (d + 2, size))
    a("s_mov_b32 s%d, 0x00020000" % (d + 3))

def code_prefetch(a, label_start, label_end, nbytes, vtmp, vdst, stmp, swave):
    a("s_getpc_b64 s[%d:%d]" % (stmp, stmp + 1))
    here = a.newlabel("PC")
    a.label(here)
    a("s_sub_u32 s%d, s%d, %s-%s" % (stmp, stmp, here, label_start))
    a("s_subb_u32 s%d, s%d, 0" % (stmp + 1, stmp + 1))
    a("v_and_b32 v%d, 63, v0" % vtmp)
    a("v_lshlrev_b32 v%d, 7, v%d" % (vtmp, vtmp))
    a("s_lshl_b32 s%d, s%d, 13" % (stmp + 2, swave))
    a("v_add_u32 v%d, s%d, v%d" % (vtmp, stmp + 2, vtmp))
    n = (nbytes + 32767) // 32768
    for i in range(n):
        a("v_min_u32 v%d, %s-%s-4, v%d" % (vdst + 1, label_end, label_start, vtmp))
        a("global_load_dword v%d, v%d, s[%d:%d]" % (vdst, vdst + 1, stmp, stmp + 1))
        if i + 1 < n:
            a("v_add_u32 v%d, 32768, v%d" % (vtmp, vtmp))

TS_OFF = 0x0F80000
STAMP = False
def stamp(a, idx, v):
    if not STAMP: return
    a("s_memrealtime s[94:95]")
    a("s_waitcnt lgkmcnt(0)")
    a("v_writelane_b32 v%d, s94, %d" % (v, idx))
def stampc(a, idx, v):
    if not STAMP: return
    a("s_memtime s[94:95]")
    a("s_waitcnt lgkmcnt(0)")
    a("v_writelane_b32 v%d, s94, %d" % (v, idx))
TS_CUR = [0]
def stamp_flush(a, v, vt, swg, swave, nw, wsrd=36):
    if not STAMP: return
    a("s_waitcnt vmcnt(0)")
    stamp(a, 7, v)
    a("s_mul_i32 s94, s%d, %d" % (swg, nw))
    a("s_add_u32 s94, s94, s%d" % swave)
    a("s_lshl_b32 s94, s94, 7")
    a("s_add_u32 s94, s94, 0x%x" % (TS_OFF + TS_CUR[0]))
    a("s_mov_b32 exec_lo, -1")
    a("s_mov_b32 exec_hi, 0")
    a("v_and_b32 v%d, 63, v0" % vt)
    a("v_lshlrev_b32 v%d, 2, v%d" % (vt, vt))
    a("buffer_store_dword v%d, v%d, s[%d:%d], s94 offen" % (v, vt, wsrd, wsrd + 3))
    a("s_waitcnt vmcnt(0)")

PF_FLAGS = ""
L2PF = True
PF_DIST = 2
WARMK = False
OUT_FLAGS = ""
TLBWARM = False
GW_QONLY = True
B_FIRST = True
TLB_IT = 3
PF_K2CODE = True
PF_START = 0
PRETOUCH = False
K2_NOATT = False
KV_MASK = True
K2_ROT = False
K2_NOMFMA = False
K2_NOMLP = False
ATT_PRIO = 3
ATT_PRIO2 = None
ST_FLAGS = "sc0 sc1"
RAMP = 3
L2PF2 = False
def gen_k1(a, name, code_bytes):
    a.begin_kernel(name)
    a("s_cmp_ge_u32 s2, 256")
    a("s_cbranch_scc1 K1_END")
    a("s_load_dwordx16 s[4:19], s[0:1], 0")
    a("s_load_dwordx4 s[20:23], s[0:1], 64")
    a("s_load_dwordx2 s[24:25], s[0:1], 80")
    a("v_lshrrev_b32 v2, 6, v0")
    a("v_and_b32 v1, 63, v0")
    a("v_readfirstlane_b32 s26, v2")
    a("s_and_b32 s40, s2, 7")
    a("s_lshr_b32 s41, s2, 3")
    a("s_and_b32 s42, s40, 1")
    a("s_lshl_b32 s42, s42, 3")
    a("s_and_b32 s43, s41, 7")
    a("s_add_u32 s42, s42, s43")
    a("s_lshr_b32 s43, s40, 1")
    a("s_lshl_b32 s43, s43, 2")
    a("s_lshr_b32 s44, s41, 3")
    a("s_add_u32 s43, s43, s44")
    def srds(sv):
        a("s_waitcnt lgkmcnt(0)")
        stamp(a, 0, sv)
        srd(a, 28, 4, 5, S * D * 2)
        srd(a, 36, 24, 25, WS_SIZE)
        srd(a, 48, 18, 19, D * 2)
        srd(a, 52, 22, 23, 256)
    a("s_cmp_eq_u32 s43, 15")
    a("s_cbranch_scc1 K1_PREP")
    a("s_cmp_lt_u32 s26, 4")
    a("s_cbranch_scc1 K1_COMPUTE")

    a.c("loader waves")
    a("s_sub_u32 s27, s26, 4")
    a("s_lshr_b32 s44, s27, 1")
    a("s_lshl_b32 s47, s27, 5")
    a("v_lshrrev_b32 v2, 3, v1")
    a("v_add_u32 v2, s47, v2")
    a("v_mul_u32_u24 v2, 1280, v2")
    a("v_lshrrev_b32 v3, 4, v1")
    a("v_and_b32 v5, 7, v1")
    a("v_xor_b32 v3, v3, v5")
    a("v_lshlrev_b32 v3, 4, v3")
    a("v_add_u32 v16, v2, v3")
    a("v_xor_b32 v3, 64, v3")
    a("v_add_u32 v17, v2, v3")
    a("v_add_u32 v17, 10240, v17")
    a("v_add_u32 v18, 20480, v16")
    a("v_add_u32 v19, 20480, v17")
    a("s_movk_i32 s45, 3456")
    a("s_mul_i32 s46, s43, 384")
    a("s_cmp_lt_u32 s43, 9")
    a("s_cbranch_scc1 K1_LD_GO")
    a("s_movk_i32 s45, 3840")
    a("s_sub_u32 s46, s43, 9")
    a("s_mul_i32 s46, s46, 320")
    a("s_mul_i32 s47, s44, 1280")
    a("s_add_u32 s46, s46, s47")
    a("s_add_u32 s46, s46, 1280")
    a("s_sub_u32 s47, s43, 13")
    a("s_lshl_b32 s47, s47, 1")
    a("s_add_u32 s47, s47, s44")
    a("s_mul_i32 s47, s47, 320")
    a("s_cmp_lt_u32 s43, 13")
    a("s_cselect_b32 s46, s46, s47")
    a("s_and_b32 s46, s46, 0xffffff80")
    a.label("K1_LD_GO")
    a("s_and_b32 s47, s27, 1")
    a("s_mul_i32 s47, s47, 384")
    a("s_mov_b32 s64, 2731")
    a("s_lshl_b32 s63, s45, 3")
    for c in range(768): assert (c * 2731) >> 16 == c // 24
    for i in range(3):
        a("v_add_u32 v2, s47, v1")
        if i: a("v_add_u32 v2, %d, v2" % (64 * i))
        a("v_mul_u32_u24 v3, s64, v2")
        a("v_lshrrev_b32 v3, 16, v3")
        a("v_mul_u32_u24 v5, 24, v3")
        a("v_sub_u32 v5, v2, v5")
        a("v_bfe_u32 v6, v3, 1, 1")
        a("v_lshrrev_b32 v7, 2, v3")
        a("v_and_or_b32 v6, v7, 2, v6")
        a("v_lshrrev_b32 v7, 1, v5")
        a("v_xor_b32 v7, v7, v6")
        a("v_lshlrev_b32 v7, 5, v7")
        a("v_and_b32 v5, 1, v5")
        a("v_lshl_add_u32 v7, v5, 4, v7")
        a("v_mul_lo_u32 v3, v3, s45")
        a("v_add_u32 v%d, v3, v7" % (10 + i))
        a("v_xor_b32 v7, 64, v7")
        a("v_add3_u32 v%d, v3, v7, s63" % (13 + i))
    a("s_mul_i32 s65, s42, %d" % (128 * 1280))
    a("s_lshl_b32 s66, s45, 5")
    a("s_mul_i32 s67, s27, 6144")
    a("s_lshl_b32 s68, s27, 12")
    a("s_add_u32 s68, s68, %d" % A_BASE)
    srds(20)
    srd(a, 32, 6, 7, D * 3 * D * 2)
    a("s_cmp_lt_u32 s43, 9")
    a("s_cbranch_scc0 K1_LD_GO2")
    a("s_cmp_eq_u32 s44, 0")
    a("s_cselect_b32 s32, s12, s14")
    a("s_cselect_b32 s33, s13, s15")
    a("s_mov_b32 s34, 0x%x" % (D * F * 2))
    a.label("K1_LD_GO2")
    issued = []
    def issueB(t):
        a("s_mul_i32 s69, s66, %d" % t)
        a("s_add_u32 s69, s69, s46")
        for i in range(6):
            a("s_add_u32 m0, s67, %d" % ((t % 4) * B_SLOT + i * 1024))
            a("s_nop 0")
            a("buffer_load_dwordx4 v%d, s[32:35], s69 offen lds" % (10 + i))
            issued.append(("B", t))
    def issueA(T):
        a("s_add_u32 s70, s65, %d" % (T * 128))
        for i in range(4):
            a("s_add_u32 m0, s68, %d" % ((T % 3) * A_SLOT + i * 1024))
            a("s_nop 0")
            a("buffer_load_dwordx4 v%d, s[28:31], s70 offen lds" % (16 + i))
            issued.append(("A", T))
    stamp(a, 2, 20)
    if GW_QONLY:
        a("s_cmp_lt_u32 s43, 13")
        a("s_cbranch_scc1 K1_LD_NGW")
    a("v_lshlrev_b32 v2, 4, v1")
    a("s_mov_b32 m0, %d" % GW_BASE)
    a("v_add_u32 v3, 1024, v2")
    a("buffer_load_dwordx4 v2, s[48:51], 0 offen lds")
    a("s_mov_b32 m0, %d" % (GW_BASE + 1024))
    a("s_nop 0")
    a("buffer_load_dwordx4 v3, s[48:51], 0 offen lds")
    a.label("K1_LD_NGW")
    stamp(a, 8, 20)
    if B_FIRST:
        issueB(0); issueA(0)
    else:
        issueA(0); issueB(0)
    stamp(a, 10, 20)
    issueB(1)
    stamp(a, 11, 20)
    nextB, nextA = 2, 1
    if RAMP == 2:
        issueA(1)
        nextA = 2
    elif RAMP == 3:
        issueA(1); issueB(2)
        nextB, nextA = 3, 2
    elif not RAMP:
        issueA(1); issueB(2); issueB(3); issueA(2)
        nextB, nextA = 4, 3
    code_prefetch(a, name, "K2_END" if PF_K2CODE else "K1_END", 65536 if PF_K2CODE else code_bytes, 3, 4, 90, 27)
    issued.append(("P", 0))
    if PF_K2CODE: issued.append(("P", 0))
    stamp(a, 3, 20)
    for t in range(21):
        if t <= 19:
            last = max(i for i, x in enumerate(issued) if x == ("B", t) or x == ("A", t // 2))
            n = len(issued) - 1 - last
            a("s_waitcnt vmcnt(%d)" % n)
        a("s_barrier")
        if t == 0: stamp(a, 1, 20)
        while nextA <= 9 and nextA - 3 <= t // 2 - 1 and nextA <= t // 2 + 2 and (nextA * 2 <= nextB + 1 or nextB > 19):
            issueA(nextA); nextA += 1
        while nextB <= 19 and nextB - 4 <= t - 1 and not (RAMP in (2, 3) and t == 0 and nextB > RAMP):
            issueB(nextB); nextB += 1
            while nextA <= 9 and nextA - 3 <= t // 2 - 1 and nextA * 2 <= nextB:
                issueA(nextA); nextA += 1
    assert nextA == 10 and nextB == 20
    if PRETOUCH:
        a("v_mov_b32 v2, 4")
        a("buffer_load_dword v3, v2, s[52:55], 0 offen sc0 sc1")
        a("s_and_b32 s71, s2, 7")
        a("s_lshr_b32 s71, s71, 2")
        a("s_waitcnt vmcnt(0)")
        a("v_readfirstlane_b32 s72, v3")
        a("s_cmp_lt_u32 s41, 24")
        a("s_cbranch_scc0 K1_LD_END")
        a("s_cmp_eq_u32 s72, 128")
        a("s_cbranch_scc0 K1_LD_END")
        a("s_lshl_b32 s73, s41, 2")
        a("s_add_u32 s73, s73, s27")
        a("v_lshlrev_b32 v2, 7, v1")
        a("s_mul_i32 s74, s71, %d" % (20 * 54 * 1024))
        a("s_mul_i32 s75, s73, %d" % (90 * 128))
        a("s_add_u32 s74, s74, s75")
        a("s_add_u32 s74, s74, 0x%x" % BF_OFF)
        a("buffer_load_dword v4, v2, s[36:39], s74 offen")
        a("v_min_u32 v3, 25, v1")
        a("v_lshlrev_b32 v3, 7, v3")
        a("s_add_u32 s74, s74, 8192")
        a("buffer_load_dword v4, v3, s[36:39], s74 offen")
        a("s_mul_i32 s74, s71, %d" % (20 * 20 * 1024))
        a("s_mul_i32 s75, s73, %d" % (34 * 128))
        a("s_min_u32 s75, s75, %d" % ((3200 - 34) * 128))
        a("s_add_u32 s74, s74, s75")
        a("s_add_u32 s74, s74, 0x%x" % WOF_OFF)
        a("v_min_u32 v3, 33, v1")
        a("v_lshlrev_b32 v3, 7, v3")
        a("buffer_load_dword v4, v3, s[36:39], s74 offen")
        a.label("K1_LD_END")
    stamp_flush(a, 20, 21, 2, 26, 8)
    a("s_endpgm")

    a.label("K1_COMPUTE")
    a("s_lshr_b32 s44, s26, 1")
    a("s_and_b32 s45, s26, 1")
    a("s_cmp_lt_u32 s43, 9")
    a("s_cbranch_scc0 K1_C_QKV")
    a("s_mul_i32 s46, s45, 6")
    a("s_mov_b32 s47, 0")
    a("s_branch K1_C_GO")
    a.label("K1_C_QKV")
    a("s_cmp_lt_u32 s43, 13")
    a("s_cbranch_scc0 K1_C_Q")
    a("s_sub_u32 s46, s43, 9")
    a("s_and_b32 s46, s46, 1")
    a("s_lshl_b32 s46, s46, 1")
    a("s_mul_i32 s47, s45, 5")
    a("s_add_u32 s46, s46, s47")
    a("s_mov_b32 s47, 0")
    a("s_branch K1_C_GO")
    a.label("K1_C_Q")
    a("s_lshl_b32 s46, s45, 1")
    a("s_mul_i32 s47, s45, 12288")
    a.label("K1_C_GO")
    VA, VB = 2, 4
    a("v_and_b32 v8, 15, v1")
    a("v_lshrrev_b32 v9, 4, v1")
    a("s_lshl_b32 s64, s44, 13")
    a("s_add_u32 s64, s64, %d" % A_BASE)
    a("v_lshrrev_b32 v10, 1, v8")
    a("v_xor_b32 v11, v9, v10")
    a("v_lshlrev_b32 v11, 4, v11")
    a("v_lshl_add_u32 v11, v8, 7, v11")
    a("v_add_u32 v2, s64, v11")
    a("v_xor_b32 v3, 64, v2")
    a("v_lshrrev_b32 v10, 2, v8")
    a("v_lshl_add_u32 v11, v9, 3, v10")
    a("v_mul_u32_u24 v11, 384, v11")
    a("v_and_b32 v12, 3, v1")
    a("v_lshl_add_u32 v11, v12, 3, v11")
    a("v_add_u32 v11, s47, v11")
    a("v_lshrrev_b32 v12, 1, v10")
    a("v_and_b32 v13, 1, v9")
    a("v_lshl_or_b32 v12, v13, 1, v12")
    for jp in range(4):
        a("s_add_u32 s64, s46, %d" % jp)
        a("s_and_b32 s65, s64, 3")
        a("s_lshr_b32 s64, s64, 2")
        a("s_lshl_b32 s64, s64, 7")
        a("v_xor_b32 v13, s65, v12")
        a("v_lshl_add_u32 v13, v13, 5, v11")
        a("v_add_u32 v%d, s64, v13" % (VB + jp))
    def pf_setup():
        a("s_and_b32 s76, s26, 1")
        a("s_movk_i32 s77, 3456")
        a("s_mul_i32 s78, s43, 384")
        srd(a, 32, 6, 7, D * 3 * D * 2)
        a("s_cmp_lt_u32 s43, 9")
        a("s_cbranch_scc0 K1_PF_QKV")
        a("s_cmp_eq_u32 s76, 0")
        a("s_cselect_b32 s32, s12, s14")
        a("s_cselect_b32 s33, s13, s15")
        a("s_mov_b32 s34, 0x%x" % (D * F * 2))
        a("s_branch K1_PF_GO")
        a.label("K1_PF_QKV")
        a("s_movk_i32 s77, 3840")
        a("s_sub_u32 s78, s43, 9")
        a("s_mul_i32 s78, s78, 320")
        a("s_mul_i32 s79, s76, 1280")
        a("s_add_u32 s78, s78, s79")
        a("s_add_u32 s78, s78, 1280")
        a("s_sub_u32 s79, s43, 13")
        a("s_lshl_b32 s79, s79, 1")
        a("s_add_u32 s79, s79, s76")
        a("s_mul_i32 s79, s79, 320")
        a("s_cmp_lt_u32 s43, 13")
        a("s_cselect_b32 s78, s78, s79")
        a("s_and_b32 s78, s78, 0xffffff80")
        a.label("K1_PF_GO")
        a("v_min_u32 v10, 23, v1")
        a("v_mul_u32_u24 v11, 0x5556, v10")
        a("v_lshrrev_b32 v11, 16, v11")
        a("v_mul_u32_u24 v12, 3, v11")
        a("v_sub_u32 v12, v10, v12")
        a("s_and_b32 s80, s41, 7")
        a("s_lshl_b32 s80, s80, 3")
        a("v_add_u32 v11, s80, v11")
        a("v_mul_lo_u32 v11, v11, s77")
        a("v_lshl_add_u32 v12, v12, 7, v11")
        a("s_lshl_b32 s79, s77, 6")
        a("s_cmp_lt_u32 s26, 2")
        a("s_cbranch_scc1 K1_PF_W")
        a("s_lshr_b32 s80, s41, 3")
        a("s_lshl_b32 s80, s80, 5")
        a("s_lshl_b32 s81, s76, 4")
        a("s_add_u32 s80, s80, s81")
        a("v_min_u32 v10, 15, v1")
        a("v_add_u32 v10, s80, v10")
        a("v_mul_u32_u24 v12, 1280, v10")
        a("s_mul_i32 s78, s42, %d" % (128 * 1280))
        a("s_movk_i32 s79, 128")
        a("s_mov_b32 s32, s4")
        a("s_mov_b32 s33, s5")
        a("s_mov_b32 s34, 0x%x" % (S * D * 2))
        a.label("K1_PF_W")
        if PF_START:
            a("s_mul_i32 s80, s79, %d" % PF_START)
            a("s_add_u32 s78, s78, s80")
        for _ in range(PF_DIST - PF_START): pf_issue()
    def pf_issue():
        a("buffer_load_dword v13, v12, s[32:35], s78 offen %s" % PF_FLAGS)
        a("s_add_u32 s78, s78, s79")
    srds(15)
    if L2PF: pf_setup()
    if TLBWARM:
        srd(a, 84, 20, 21, S * D * 2)
        a("v_min_u32 v11, 15, v1")
        a("v_lshlrev_b32 v11, 20, v11")
        a("s_cmp_eq_u32 s41, 0")
        a("s_cselect_b32 s82, 1, 0")
        a("s_cmp_eq_u32 s26, 3")
        a("s_cselect_b32 s82, s82, 0")
    for r in range(64, 256):
        a("v_mov_b32 v%d, 0" % r)
    a("s_mov_b32 s70, 0")
    a("s_mov_b32 s71, 10")
    a("s_mov_b32 s75, 49152")
    a("s_cmp_lt_u32 s43, 9")
    a("s_cbranch_scc1 K1_GU")
    a("s_cmp_lt_u32 s43, 13")
    a("s_cbranch_scc1 K1_KV")
    a("s_branch K1_Q")

    ABUF = [16, 32]
    BR = 48
    ACC = 64

    def mainloop(role):
        q = LdsQ(a)
        if role == "gu":
            frags = [(p, j) for j in range(6) for p in range(2)]
        elif role == "kv":
            frags = [(p, j) for j in range(5) for p in range(2)]
        else:
            frags = [(0, j) for j in range(10)]
        nB = len(frags)
        def accreg(fi, rt): return ACC + (fi * 4 + rt) * 4
        def readB(J, par):
            p, j = frags[J]
            slot = (par * nB + J) % 4
            out = []
            for h in range(2):
                off = (j >> 2) * 128 + h * 1536 + p * 12288 + par * B_SLOT
                r = BR + slot * 4 + h * 2
                out.append((("B", par, J), "ds_read_b64_tr_b16 v[%d:%d], v%d offset:%d" % (r, r + 1, VB + (j & 3), off)))
            return out
        def readA(par):
            out = []
            for rt in range(4):
                r = ABUF[par] + rt * 4
                out.append((("A", par, rt), "ds_read_b128 v[%d:%d], v%d offset:%d" % (r, r + 3, VA + par, rt * 2048)))
            if role == "q":
                out.append((("G", par), "ds_read_b128 v[%d:%d], v14 offset:%d" % (GW[par], GW[par] + 3, 64 * par)))
            return out
        def mfma(par, J, rt):
            slot = (par * nB + J) % 4
            b = BR + slot * 4; x = ABUF[par] + rt * 4; c = accreg(J, rt)
            if role == "kv":
                return "v_mfma_f32_16x16x32_bf16 v[%d:%d], v[%d:%d], v[%d:%d], v[%d:%d]" % (c, c + 3, x, x + 3, b, b + 3, c, c + 3)
            return "v_mfma_f32_16x16x32_bf16 v[%d:%d], v[%d:%d], v[%d:%d], v[%d:%d]" % (c, c + 3, b, b + 3, x, x + 3, c, c + 3)
        GW = [ACC + 176, ACC + 180]
        LOG = ACC + 160
        if role == "q":
            a("v_lshlrev_b32 v14, 4, v9")
            a("v_add_u32 v14, %d, v14" % GW_BASE)
        stamp(a, 2, 15)
        a("s_barrier")
        stamp(a, 1, 15)
        stampc(a, 5, 15)
        for tag, t in readA(0) + readB(0, 0) + readB(1, 0) + readB(2, 0):
            q.issue(tag, t)
        state0 = list(q.q)
        lbl = "K1_LOOP_" + role
        a.label(lbl)
        if STAMP:
            a("s_memrealtime s[94:95]")
            a("s_sub_u32 m0, 18, s71")
            a("s_waitcnt lgkmcnt(0)")
            a("v_writelane_b32 v15, s94, m0")
        if L2PF: pf_issue()
        if TLBWARM:
            a("s_cmp_eq_u32 s71, %d" % (10 - TLB_IT))
            a("s_cselect_b32 s83, s82, 0")
            a("s_cmp_eq_u32 s83, 1")
            a("s_cbranch_scc0 %s_NT" % lbl)
            a("buffer_load_dword v13, v11, s[36:39], 0 offen")
            a("buffer_load_dword v13, v11, s[84:87], 0 offen")
            a.label(lbl + "_NT")
        for par in range(2):
            for J in range(nB):
                reads = []
                pre = []
                if J + 3 <= nB - 1:
                    reads = readB(J + 3, par)
                if J == nB - 2:
                    if role == "q":
                        for rt in range(4):
                            x = ABUF[par] + rt * 4; c = LOG + rt * 4
                            a("v_mfma_f32_16x16x32_bf16 v[%d:%d], v[%d:%d], v[%d:%d], v[%d:%d]" % (c, c + 3, GW[par], GW[par] + 3, x, x + 3, c, c + 3))
                    q.drain()
                    a("s_barrier")
                    if par == 1:
                        for jp in range(4):
                            a("v_add_u32 v%d, s75, v%d" % (VB + jp, VB + jp))
                        a("s_sub_u32 s75, 0, s75")
                        a("s_add_u32 s70, s70, 16384")
                        a("s_cmp_eq_u32 s70, 49152")
                        a("s_cselect_b32 s73, s70, 0")
                        a("s_sub_u32 s70, s70, s73")
                        a("s_sub_u32 s73, 16384, s73")
                        a("v_add_u32 v2, s73, v2")
                        a("v_add_u32 v3, s73, v3")
                        if role == "q": a("v_add_u32 v14, 128, v14")
                    reads = readA(1 - par) + readB(0, 1 - par) + readB(1, 1 - par)
                if J == nB - 1:
                    reads = readB(2, 1 - par)
                q.need([("B", par, J)] + ([("A", par, 0)] if J == 0 else []))
                for rt in range(4):
                    if J == 0 and rt > 0: q.need([("A", par, rt)])
                    a(mfma(par, J, rt))
                    k = (len(reads) + (3 - rt)) // (4 - rt) if reads else 0
                    for _ in range(k):
                        tag, t = reads.pop(0); q.issue(tag, t)
                assert not reads
        a("s_sub_u32 s71, s71, 1")
        a("s_cmp_lg_u32 s71, 0")
        a("s_cbranch_scc1 %s" % lbl)
        assert q.q == state0, (q.q, state0)
        a("s_waitcnt lgkmcnt(0) vmcnt(0)")
        a("s_nop 7")
        stamp(a, 3, 15)
        stampc(a, 6, 15)
        return accreg

    a.label("K1_GU")
    accreg = mainloop("gu")
    a("s_mov_b32 s64, 0x%x" % NLOG2E); a("s_mov_b32 s65, 0x%x" % NLOG2E)
    a("s_mov_b32 s66, 1.0"); a("s_mov_b32 s67, 1.0")
    a("s_lshl_b32 s68, s42, 3")
    a("s_lshl_b32 s69, s44, 2")
    a("s_add_u32 s68, s68, s69")
    a("s_mul_i32 s68, s68, 74")
    a("s_mul_i32 s69, s43, 6")
    a("s_add_u32 s68, s68, s69")
    a("s_mul_i32 s69, s45, 3")
    a("s_add_u32 s68, s68, s69")
    a("s_lshl_b32 s68, s68, 10")
    if AF_OFF: a("s_add_u32 s68, s68, 0x%x" % AF_OFF)
    a("v_lshlrev_b32 v8, 4, v1")
    blk = 0
    for rt in range(4):
        for jp in range(3):
            T = 16 + (blk % 2) * 16
            O = T + 8
            for half in range(2):
                j = 2 * jp + half
                gq = accreg(j * 2 + 0, rt); uq = accreg(j * 2 + 1, rt)
                for e in range(0, 4, 2):
                    t = T + half * 4 + e
                    a("v_pk_mul_f32 v[%d:%d], v[%d:%d], s[64:65]" % (t, t + 1, gq + e, gq + e + 1))
            for x in range(8): a("v_exp_f32 v%d, v%d" % (T + x, T + x))
            for x in range(0, 8, 2): a("v_pk_add_f32 v[%d:%d], v[%d:%d], s[66:67]" % (T + x, T + x + 1, T + x, T + x + 1))
            for x in range(8): a("v_rcp_f32 v%d, v%d" % (T + x, T + x))
            for half in range(2):
                j = 2 * jp + half
                uq = accreg(j * 2 + 1, rt)
                for e in range(0, 4, 2):
                    t = T + half * 4 + e
                    a("v_pk_mul_f32 v[%d:%d], v[%d:%d], v[%d:%d]" % (t, t + 1, t, t + 1, uq + e, uq + e + 1))
            for x in range(4):
                a("v_cvt_pk_bf16_f32 v%d, v%d, v%d" % (O + x, T + 2 * x, T + 2 * x + 1))
            a("s_add_u32 s69, s68, %d" % ((rt * 74 + jp) * 1024))
            a("buffer_store_dwordx4 v[%d:%d], v8, s[36:39], s69 offen %s" % (O, O + 3, ST_FLAGS))
            blk += 1
    stamp_flush(a, 15, 14, 2, 26, 8)
    a("s_endpgm")

    a.label("K1_Q")
    accreg = mainloop("q")
    a("s_mov_b32 s64, 0x%x" % LOG2E); a("s_mov_b32 s65, 0x%x" % LOG2E)
    a("s_mov_b32 s66, 0x%x" % EPS6); a("s_mov_b32 s67, 0x%x" % EPS6)
    a("s_lshl_b32 s68, s42, 3")
    a("s_lshl_b32 s69, s44, 2")
    a("s_add_u32 s68, s68, s69")
    a("s_lshl_b32 s74, s68, 6")
    a("s_mul_i32 s68, s68, 74")
    a("s_sub_u32 s69, s43, 13")
    a("s_mul_i32 s69, s69, 10")
    a("s_add_u32 s68, s68, s69")
    a("s_mul_i32 s69, s45, 5")
    a("s_add_u32 s68, s68, s69")
    a("s_add_u32 s68, s68, 54")
    a("s_lshl_b32 s68, s68, 10")
    if AF_OFF: a("s_add_u32 s68, s68, 0x%x" % AF_OFF)
    a("v_lshlrev_b32 v8, 4, v1")
    def phi_pairs(srcs, T):
        n = len(srcs)
        U = T + 2 * n
        for x, s in enumerate(srcs):
            a("v_pk_mul_f32 v[%d:%d], v[%d:%d], s[64:65]" % (T + 2 * x, T + 2 * x + 1, s, s + 1))
        for x in range(2 * n):
            a("v_exp_f32 v%d, v%d clamp" % (T + x, T + x))
        for x, s in enumerate(srcs):
            a("v_max_f32 v%d, 0, v%d" % (U + 2 * x, s))
            a("v_max_f32 v%d, 0, v%d" % (U + 2 * x + 1, s + 1))
        for x in range(n):
            a("v_pk_add_f32 v[%d:%d], v[%d:%d], v[%d:%d]" % (T + 2 * x, T + 2 * x + 1, T + 2 * x, T + 2 * x + 1, U + 2 * x, U + 2 * x + 1))
        for x in range(n):
            a("v_pk_add_f32 v[%d:%d], v[%d:%d], s[66:67]" % (T + 2 * x, T + 2 * x + 1, T + 2 * x, T + 2 * x + 1))
    blk = 0
    for rt in range(4):
        for jp in range(5):
            T = 16 + (blk % 2) * 20
            O = T + 16
            srcs = [accreg(2 * jp + half, rt) + e for half in range(2) for e in (0, 2)]
            phi_pairs(srcs, T)
            for x in range(4):
                a("v_cvt_pk_bf16_f32 v%d, v%d, v%d" % (O + x, T + 2 * x, T + 2 * x + 1))
            a("s_add_u32 s69, s68, %d" % ((rt * 74 + jp) * 1024))
            a("buffer_store_dwordx4 v[%d:%d], v8, s[36:39], s69 offen %s" % (O, O + 3, ST_FLAGS))
            blk += 1
    a("s_cmp_eq_u32 s43, 13")
    a("s_cbranch_scc0 K1_Q_END")
    a("s_cmp_eq_u32 s45, 0")
    a("s_cbranch_scc0 K1_Q_END")
    a("v_cmp_gt_u32 vcc, 16, v1")
    a("s_and_saveexec_b64 s[76:77], vcc")
    a("v_lshlrev_b32 v9, 2, v1")
    a("s_mov_b32 s64, 0x%x" % NLOG2E)
    a("s_add_u32 s74, s74, 0x%x" % G_OFF)
    for rt in range(4):
        c = ACC + 160 + rt * 4
        a("v_mul_f32 v%d, s64, v%d" % (16 + rt, c))
    for rt in range(4): a("v_exp_f32 v%d, v%d" % (16 + rt, 16 + rt))
    a("s_nop 0")
    for rt in range(4): a("v_add_f32 v%d, 1.0, v%d" % (16 + rt, 16 + rt))
    for rt in range(4): a("v_rcp_f32 v%d, v%d" % (16 + rt, 16 + rt))
    a("s_nop 0")
    for rt in range(4):
        a("buffer_store_dword v%d, v9, s[36:39], s74 offen offset:%d %s" % (16 + rt, rt * 64, ST_FLAGS))
    a.label("K1_Q_END")
    a("s_mov_b64 exec, -1")
    stamp_flush(a, 15, 14, 2, 26, 8)
    a("s_endpgm")

    a.label("K1_KV")
    accreg = mainloop("kv")
    a("v_mov_b32 v9, 0")
    a("buffer_load_dword v10, v9, s[52:55], 0 offen sc0 sc1")
    a("s_mov_b32 s64, 0x%x" % LOG2E); a("s_mov_b32 s65, 0x%x" % LOG2E)
    a("s_mov_b32 s66, 0x%x" % EPS6); a("s_mov_b32 s67, 0x%x" % EPS6)
    def fragreg(p, rp, j): return accreg(j * 2 + p, 2 * rp)
    res = [accreg(fi, 1) for fi in range(10)] + [ACC + 160 + 4 * x for x in range(8)]
    ONES = 48
    for x in range(4): a("v_mov_b32 v%d, 0x3f803f80" % (ONES + x))
    def conv_ops(rp):
        global_lines = a.lines
        a.lines = []
        blk = 0
        for j in range(5):
            T = 16 + (blk % 2) * 16
            srcs = [accreg(j * 2, 2 * rp + half) + e for half in range(2) for e in (0, 2)]
            phi_pairs(srcs, T)
            o = fragreg(0, rp, j)
            for x in range(4):
                a("v_cvt_pk_bf16_f32 v%d, v%d, v%d" % (o + x, T + 2 * x, T + 2 * x + 1))
            s0 = accreg(j * 2 + 1, 2 * rp); s1 = accreg(j * 2 + 1, 2 * rp + 1)
            a("v_cvt_pk_bf16_f32 v%d, v%d, v%d" % (s0, s0, s0 + 1))
            a("v_cvt_pk_bf16_f32 v%d, v%d, v%d" % (s0 + 1, s0 + 2, s0 + 3))
            a("v_cvt_pk_bf16_f32 v%d, v%d, v%d" % (s0 + 2, s1, s1 + 1))
            a("v_cvt_pk_bf16_f32 v%d, v%d, v%d" % (s0 + 3, s1 + 2, s1 + 3))
            blk += 1
        out = a.lines
        a.lines = global_lines
        return [l.strip() for l in out]
    def kv_mfmas(rp):
        out = []
        for ti, (dt, et) in enumerate(TRI):
            c = res[ti]
            A_ = fragreg(1, rp, et); B_ = fragreg(0, rp, dt)
            out.append("v_mfma_f32_16x16x32_bf16 v[%d:%d], v[%d:%d], v[%d:%d], %s" % (c, c + 3, A_, A_ + 3, B_, B_ + 3, "0" if rp == 0 else "v[%d:%d]" % (c, c + 3)))
        for dt in range(5):
            c = res[13 + dt]
            B_ = fragreg(0, rp, dt)
            out.append("v_mfma_f32_16x16x32_bf16 v[%d:%d], v[%d:%d], v[%d:%d], %s" % (c, c + 3, ONES, ONES + 3, B_, B_ + 3, "0" if rp == 0 else "v[%d:%d]" % (c, c + 3)))
        return out
    for t in conv_ops(0): a(t)
    a("s_nop 1")
    c1 = conv_ops(1); m0_ = kv_mfmas(0)
    per = len(c1) // len(m0_)
    for k_, m_ in enumerate(m0_):
        a(m_)
        for t in c1[k_ * per:(k_ + 1) * per]: a(t)
    for t in c1[len(m0_) * per:]: a(t)
    a("s_barrier")
    a("s_nop 0")
    for t in kv_mfmas(1): a(t)
    a("s_lshl_b32 s68, s45, 1")
    a("s_add_u32 s68, s68, s44")
    a("s_mul_i32 s68, s68, %d" % (18 * 1024))
    a("v_lshlrev_b32 v8, 4, v1")
    a("v_add_u32 v8, s68, v8")
    a.label("K1_KV_POLL")
    a("s_waitcnt vmcnt(0)")
    a("v_readfirstlane_b32 s69, v10")
    a("s_cmp_ge_u32 s69, 128")
    a("s_cbranch_scc1 K1_KV_GO")
    a("buffer_load_dword v10, v9, s[52:55], 0 offen sc0 sc1")
    a("s_branch K1_KV_POLL")
    a.label("K1_KV_GO")
    a("s_nop 3")
    for ti in range(18):
        c = res[ti]
        a("ds_write_b128 v8, v[%d:%d] offset:%d" % (c, c + 3, ti * 1024))
    a("s_mul_i32 s68, s45, %d" % (36 * 1024))
    a("v_lshlrev_b32 v8, 2, v1")
    a("v_add_u32 v9, s68, v8")
    a("v_lshl_add_u32 v10, v1, 4, s68")
    a("s_sub_u32 s68, s43, 9")
    a("s_mul_i32 s69, s68, 26")
    a("s_mul_i32 s70, s45, 13")
    a("s_add_u32 s69, s69, s70")
    a("s_lshl_b32 s69, s69, 10")
    a("s_add_u32 s69, s69, 0x%x" % KV_OFF)
    a("s_lshl_b32 s68, s68, 1")
    a("s_add_u32 s68, s68, s45")
    a("s_mul_i32 s68, s68, 320")
    a("s_add_u32 s68, s68, 0x%x" % Z_OFF)
    a("s_waitcnt lgkmcnt(0)")
    a("s_barrier")
    stamp(a, 4, 15)
    a("s_cmp_eq_u32 s44, 0")
    a("s_cbranch_scc0 K1_KV_R1")
    for rh in range(2):
        if rh == 1: a.label("K1_KV_R1")
        items = []
        tiles = list(range(0, 7)) if rh == 0 else list(range(7, 13))
        for ti in tiles:
            dt, et = TRI[ti]
            for q_ in range(4):
                m = 0
                for p in range(64):
                    if head(16 * dt + (p >> 2)) == head(16 * et + 4 * q_ + (p & 3)): m |= 1 << p
                if m: items.append(("kv", ti, q_, m))
        if rh == 1:
            for dt in range(5): items.append(("z", 13 + dt, 0, 0xffff))
        for n, (kind, ti, q_, m) in enumerate(items):
            r = 16 + 2 * n
            if kind == "kv":
                a("ds_read2st64_b32 v[%d:%d], v9 offset0:%d offset1:%d" % (r, r + 1, ti * 4 + q_, 72 + ti * 4 + q_))
            else:
                a("ds_read2st64_b32 v[%d:%d], v10 offset0:%d offset1:%d" % (r, r + 1, ti * 4, 72 + ti * 4))
        assert 16 + 2 * len(items) <= 120
        for n, (kind, ti, q_, m) in enumerate(items):
            r = 16 + 2 * n
            rem = len(items) - 1 - n
            a("s_waitcnt lgkmcnt(%d)" % min(15, rem))
            a("v_add_f32 v%d, v%d, v%d" % (r, r, r + 1))
            a("s_mov_b32 exec_lo, 0x%x" % (m & 0xffffffff))
            a("s_mov_b32 exec_hi, 0x%x" % (m >> 32))
            if kind == "kv":
                off = ti * 1024 + q_ * 256
                a("s_add_u32 s70, s69, %d" % (off & ~4095))
                a("buffer_atomic_add_f32 v%d, v8, s[36:39], s70 offen offset:%d" % (r, off & 4095))
            else:
                a("buffer_atomic_add_f32 v%d, v8, s[36:39], s68 offen offset:%d" % (r, (ti - 13) * 64))
            a("s_mov_b64 exec, -1")
        stamp_flush(a, 15, 14, 2, 26, 8)
        a("s_endpgm")

    a.label("K1_PREP")
    srds(40)
    srd(a, 56, 16, 17, F * D * 2)
    srd(a, 60, 8, 9, D * D * 2)
    a("s_lshl_b32 s44, s42, 3")
    a("s_add_u32 s44, s44, s26")
    a("v_mov_b32 v4, 0"); a("v_mov_b32 v5, 0"); a("v_mov_b32 v6, 0"); a("v_mov_b32 v7, 0")
    a("v_lshlrev_b32 v8, 4, v1")
    a("s_cmp_lt_u32 s44, %d" % (ZERO_BYTES // 1024))
    a("s_cbranch_scc0 K1_PREP_NZ")
    a("s_lshl_b32 s45, s44, 10")
    a("s_add_u32 s45, s45, 0x%x" % KV_OFF)
    a("buffer_store_dwordx4 v[4:7], v8, s[36:39], s45 offen sc0 sc1")
    a("s_waitcnt vmcnt(0)")
    a.label("K1_PREP_NZ")
    a("v_mov_b32 v9, 0")
    a("v_mov_b32 v10, 1")
    a("s_mov_b64 exec, 1")
    a("buffer_atomic_add v10, v9, s[52:55], 0 offen sc1")
    a("s_mov_b64 exec, -1")
    a("v_lshrrev_b32 v2, 3, v1")
    a("v_mul_u32_u24 v2, 1280, v2")
    a("v_and_b32 v3, 7, v1")
    a("v_lshl_add_u32 v10, v3, 4, v2")
    for i in range(1, 4): a("v_add_u32 v%d, %d, v10" % (10 + i, i * 8 * 1280))
    a("v_lshrrev_b32 v2, 4, v1")
    a("v_and_b32 v3, 15, v1")
    a("v_lshrrev_b32 v3, 2, v3")
    a("v_lshl_add_u32 v2, v2, 2, v3")
    a("v_lshlrev_b32 v2, 7, v2")
    a("v_and_b32 v3, 3, v1")
    a("v_lshl_add_u32 v14, v3, 3, v2")
    a("s_mul_i32 s46, s26, 12288")
    a("v_add_u32 v14, s46, v14")
    def prep_batch(tasks, lbl):
        skip = []
        for n, (sr, total, nks, rnd, dst) in enumerate(tasks):
            a("s_add_u32 s%d, s44, %d" % (64 + n, 128 * rnd))
            a("s_cmp_lt_u32 s%d, %d" % (64 + n, total))
            a("s_cselect_b32 s%d, s%d, 0" % (64 + n, 64 + n))
            a("s_cselect_b32 s%d, 1, 0" % (80 + n))
            a("s_mul_hi_u32 s%d, s%d, %d" % (68 + n, 64 + n, (1 << 32) // 10 + 1))
            a("s_mul_i32 s72, s%d, 10" % (68 + n))
            a("s_sub_u32 s%d, s%d, s72" % (64 + n, 64 + n))
            a("s_mul_i32 s72, s%d, %d" % (68 + n, 32 * 1280))
            a("s_lshl_b32 s73, s%d, 7" % (64 + n))
            a("s_add_u32 s72, s72, s73")
            for i in range(4):
                a("s_add_u32 m0, s46, %d" % (n * 4096 + i * 1024))
                a("s_nop 0")
                a("buffer_load_dwordx4 v%d, s[%d:%d], s72 offen lds" % (10 + i, sr, sr + 3))
        for n, (sr, total, nks, rnd, dst) in enumerate(tasks):
            a("s_waitcnt vmcnt(%d)" % (4 * (len(tasks) - 1 - n) + 4 * n))
            for j in range(4):
                for h in range(2):
                    r = 16 + j * 4 + h * 2
                    a("ds_read_b64_tr_b16 v[%d:%d], v14 offset:%d" % (r, r + 1, n * 4096 + h * 2048 + j * 32))
            a("s_lshl_b32 s72, s%d, 2" % (64 + n))
            a("s_mul_i32 s72, s72, %d" % nks)
            a("s_add_u32 s72, s72, s%d" % (68 + n))
            a("s_lshl_b32 s72, s72, 10")
            a("s_add_u32 s72, s72, 0x%x" % dst)
            a("s_cmp_eq_u32 s%d, 1" % (80 + n))
            a("s_cselect_b32 s72, s72, 0x%x" % JUNK_OFF)
            a("s_waitcnt lgkmcnt(0)")
            for j in range(4):
                a("buffer_store_dwordx4 v[%d:%d], v8, s[36:39], s72 offen %s" % (16 + j * 4, 16 + j * 4 + 3, ST_FLAGS))
                if j < 3: a("s_add_u32 s72, s72, %d" % (nks * 1024))
            a("s_nop 1")
        a("s_waitcnt vmcnt(0)")
    prep_batch([(56, 540, 54, 0, BF_OFF), (56, 540, 54, 1, BF_OFF), (56, 540, 54, 2, BF_OFF)], "b0")
    prep_batch([(56, 540, 54, 3, BF_OFF), (56, 540, 54, 4, BF_OFF), (60, 200, 20, 0, WOF_OFF)], "b1")
    prep_batch([(60, 200, 20, 1, WOF_OFF)], "b2")
    a("v_mov_b32 v9, 4")
    a("v_mov_b32 v10, 1")
    a("s_mov_b64 exec, 1")
    a("buffer_atomic_add v10, v9, s[52:55], 0 offen sc1")
    a("s_mov_b64 exec, -1")
    stamp_flush(a, 40, 41, 2, 26, 8)
    a.label("K1_END")
    a("s_endpgm")
    a.end_kernel(name, 256, 96)

K2_ATT = 20480
K2_EX  = 4 * K2_ATT
K2_TAB = K2_EX + 4 * 17 * 1024
K2_LDS = K2_TAB + 8192

def gen_k2(a, name, code_bytes):
    TS_CUR[0] = 0x40000
    a.begin_kernel(name)
    a("s_cmp_ge_u32 s2, 256")
    a("s_cbranch_scc1 K2_END")
    a("s_load_dwordx2 s[20:21], s[0:1], 64")
    a("s_load_dwordx2 s[24:25], s[0:1], 80")
    a("v_lshrrev_b32 v2, 6, v0")
    a("v_and_b32 v1, 63, v0")
    a("v_readfirstlane_b32 s26, v2")
    stamp(a, 0, 15)
    a("s_and_b32 s40, s2, 7")
    a("s_lshr_b32 s41, s2, 3")
    a("s_and_b32 s42, s40, 3")
    a("s_lshl_b32 s42, s42, 3")
    a("s_and_b32 s43, s41, 7")
    a("s_add_u32 s42, s42, s43")
    a("s_lshr_b32 s43, s40, 2")
    a("s_lshl_b32 s43, s43, 2")
    a("s_lshr_b32 s44, s41, 3")
    a("s_add_u32 s43, s43, s44")
    a("v_lshlrev_b32 v2, 4, v1")
    a("v_lshlrev_b32 v3, 2, v1")
    a("v_and_b32 v4, 15, v1")
    a("v_lshrrev_b32 v5, 4, v1")
    a("s_lshl_b32 s45, s42, 2")
    a("s_mul_i32 s46, s43, 5")
    a("s_waitcnt lgkmcnt(0)")
    srd(a, 36, 24, 25, WS_SIZE)
    srd(a, 28, 20, 21, S * D * 2)
    a("s_lshl_b32 s47, s45, 6")
    a("s_add_u32 s47, s47, 0x%x" % G_OFF)
    a("v_lshlrev_b32 v6, 2, v4")
    a("s_cmp_ge_u32 s26, 4")
    a("s_cbranch_scc1 K2_ATT")

    code_prefetch(a, name, "K2_END", code_bytes, 7, 8, 90, 26)
    if L2PF2:
        a("v_lshlrev_b32 v7, 7, v1")
        a("s_and_b32 s50, s40, 3")
        a("s_lshl_b32 s50, s50, 5")
        a("s_add_u32 s50, s50, s41")
        a("s_mul_i32 s50, s50, %d" % (74 * 1024))
        a("s_mul_i32 s51, s26, %d" % (148 * 128))
        a("s_add_u32 s50, s50, s51")
        if AF_OFF: a("s_add_u32 s50, s50, 0x%x" % AF_OFF)
        a("s_lshr_b32 s51, s40, 2")
        a("s_mul_i32 s52, s51, %d" % (20 * 54 * 1024))
        a("s_mul_i32 s53, s41, %d" % (270 * 128))
        a("s_add_u32 s52, s52, s53")
        a("s_mul_i32 s53, s26, %d" % (68 * 128))
        a("s_add_u32 s52, s52, s53")
        a("s_add_u32 s52, s52, 0x%x" % BF_OFF)
        a("buffer_load_dword v8, v7, s[36:39], s52 offen %s" % PF_FLAGS)
        a("v_min_u32 v9, 3, v1")
        a("v_lshlrev_b32 v9, 7, v9")
        a("buffer_load_dword v8, v9, s[36:39], s52 offen offset:0 %s" % PF_FLAGS) if False else None
        a("s_add_u32 s52, s52, 8192")
        a("buffer_load_dword v8, v9, s[36:39], s52 offen %s" % PF_FLAGS)
        a("buffer_load_dword v8, v7, s[36:39], s50 offen %s" % PF_FLAGS)
        a("s_add_u32 s50, s50, 8192")
        a("buffer_load_dword v8, v7, s[36:39], s50 offen %s" % PF_FLAGS)
        a("s_add_u32 s50, s50, 8192")
        a("v_min_u32 v9, 19, v1")
        a("v_lshlrev_b32 v9, 7, v9")
        a("buffer_load_dword v8, v9, s[36:39], s50 offen %s" % PF_FLAGS)
    ACC = 16; BUF = 96; GV = 240
    for rt in range(4):
        a("buffer_load_dword v%d, v6, s[36:39], s47 offen offset:%d" % (GV + rt, rt * 64))
    a("s_mul_i32 s48, s26, 14")
    a("s_cmp_eq_u32 s26, 3")
    a("s_cselect_b32 s49, 1, 0")
    a("s_sub_u32 s48, s48, s49")
    a("s_cmp_ge_u32 s26, 2")
    a("s_cselect_b32 s61, 13, 14")
    a("s_lshr_b32 s49, s41, 3")
    a("s_mul_i32 s49, s49, 14")
    a("s_and_b32 s50, s41, 7")
    a("s_mul_i32 s50, s50, 7")
    a("s_add_u32 s49, s49, s50")
    a("s_lshr_b32 s60, s49, 2")
    if not K2_ROT: a("s_mov_b32 s60, 0")
    a("s_cmp_ge_u32 s60, s61")
    a("s_cselect_b32 s49, s61, 0")
    a("s_sub_u32 s60, s60, s49")
    a("s_lshl_b32 s60, s60, 10")
    a("s_lshl_b32 s61, s61, 10")
    for rt in range(4):
        a("s_add_u32 s50, s45, %d" % rt)
        a("s_mul_i32 s50, s50, 74")
        a("s_add_u32 s50, s50, s48")
        a("s_lshl_b32 s50, s50, 10")
        if AF_OFF: a("s_add_u32 s50, s50, 0x%x" % AF_OFF)
        a("v_add_u32 v%d, s50, v2" % (244 + rt))
    for nt in range(5):
        a("s_add_u32 s50, s46, %d" % nt)
        a("s_mul_i32 s50, s50, 54")
        a("s_add_u32 s50, s50, s48")
        a("s_lshl_b32 s50, s50, 10")
        a("s_add_u32 s50, s50, 0x%x" % BF_OFF)
        a("v_add_u32 v%d, s50, v2" % (248 + nt))
    def loads(slot):
        b = BUF + (slot % 4) * 36
        out = []
        for nt in range(5):
            out.append("buffer_load_dwordx4 v[%d:%d], v%d, s[36:39], s60 offen" % (b + 16 + nt * 4, b + 16 + nt * 4 + 3, 248 + nt))
        for rt in range(4):
            out.append("buffer_load_dwordx4 v[%d:%d], v%d, s[36:39], s60 offen" % (b + rt * 4, b + rt * 4 + 3, 244 + rt))
        out.append("s_add_u32 s60, s60, 1024")
        out.append("s_cmp_eq_u32 s60, s61")
        out.append("s_cselect_b32 s60, 0, s60")
        return out
    def adv(): pass
    if K2_NOMLP:
        a("s_branch K2_M_DONE")
    a("s_cmp_ge_u32 s26, 2")
    a("s_cbranch_scc1 K2_M_SK0")
    for t in loads(0): a(t)
    a.label("K2_M_SK0")
    for sl in (1, 2):
        for t in loads(sl): a(t)
    for r in range(ACC, ACC + 80): a("v_mov_b32 v%d, 0" % r)
    stamp(a, 2, 15)
    for sl in range(14):
        if sl + 3 <= 13:
            for t in loads(sl + 3): a(t)
            if (sl + 3) % 4 == 3: adv()
        a("s_waitcnt vmcnt(%d)" % (9 * min(3, 13 - sl)))
        if sl == 0:
            stamp(a, 1, 15)
            a("s_cmp_ge_u32 s26, 2")
            a("s_cbranch_scc1 K2_M_SK1")
        b = BUF + (sl % 4) * 36
        for nt in range(5):
            for rt in range(4):
                c = ACC + (rt * 5 + nt) * 4
                if K2_NOMFMA: continue
                a("v_mfma_f32_16x16x32_bf16 v[%d:%d], v[%d:%d], v[%d:%d], v[%d:%d]" % (c, c + 3, b + 16 + nt * 4, b + 19 + nt * 4, b + rt * 4, b + rt * 4 + 3, c, c + 3))
        if sl == 0:
            a.label("K2_M_SK1")
    a.label("K2_M_DONE")
    stamp(a, 3, 15)
    for rt in range(4):
        a("v_sub_f32 v%d, 1.0, v%d" % (244 + 2 * rt, GV + rt))
        a("v_sub_f32 v%d, 1.0, v%d" % (245 + 2 * rt, GV + rt))
    a("v_add_u32 v7, %d, v2" % K2_EX)
    a("v_add_u32 v10, %d, v2" % (K2_EX + 2 * 17 * 1024))
    a("s_nop 4")
    for ti in range(20):
        rt = ti // 5
        c = ACC + ti * 4
        for e in (0, 2):
            a("v_pk_mul_f32 v[%d:%d], v[%d:%d], v[%d:%d]" % (c + e, c + e + 1, c + e, c + e + 1, 244 + 2 * rt, 245 + 2 * rt))
    T = BUF
    O = T + 96
    for w in range(4):
        a("s_cmp_eq_u32 s26, %d" % w)
        a("s_cbranch_scc0 K2_X%d" % w)
        for rt in range(4):
            for nt in range(5):
                c = ACC + (rt * 5 + nt) * 4
                if rt == w:
                    if nt >= 3:
                        a("ds_write_b128 v%d, v[%d:%d] offset:%d" % (7 if rt < 2 else 10, c, c + 3, ((rt % 2) * 17 + 15 + nt - 3) * 1024))
                    continue
                idx = w if w < rt else w - 1
                a("ds_write_b128 v%d, v[%d:%d] offset:%d" % (7 if rt < 2 else 10, c, c + 3, ((rt % 2) * 17 + idx * 5 + nt) * 1024))
        for x in range(12):
            a("v_mov_b32 v%d, v%d" % (O + x, ACC + w * 20 + x))
        a("s_branch K2_XD")
        a.label("K2_X%d" % w)
    a.label("K2_XD")
    a("s_mul_i32 s50, s26, %d" % (17 * 1024))
    a("v_add_u32 v7, s50, v7")
    a("s_mul_i32 s50, s26, %d" % (5 * 1024))
    a("v_add_u32 v9, s50, v2")
    a("s_add_u32 s50, s45, s26")
    a("s_mul_i32 s50, s50, %d" % (16 * 1280))
    a("s_mul_i32 s51, s46, 32")
    a("s_add_u32 s50, s50, s51")
    a("v_mul_u32_u24 v8, 1280, v4")
    a("v_lshl_add_u32 v8, v5, 3, v8")
    a("s_waitcnt lgkmcnt(0)")
    a("s_barrier")
    stamp(a, 4, 15)
    def final(nts, own):
        srcs = []
        for idx in range(3):
            for k_, nt in enumerate(nts): srcs.append((k_, "v7", (idx * 5 + nt) * 1024))
        if own is None:
            for k_, nt in enumerate(nts): srcs.append((k_, "v7", (15 + nt - 3) * 1024))
        for u in range(4):
            for k_, nt in enumerate(nts): srcs.append((k_, "v9" if u < 2 else "v10", (u % 2) * K2_ATT + nt * 1024))
        a("v_add_u32 v10, %d, v9" % (2 * K2_ATT))
        for n, (k_, ar, off) in enumerate(srcs):
            a("ds_read_b128 v[%d:%d], %s offset:%d" % (T + n * 4, T + n * 4 + 3, ar, off))
        first = [own is not None] * len(nts)
        for n, (k_, ar, off) in enumerate(srcs):
            rem = len(srcs) - 1 - n
            if n % len(nts) == 0: a("s_waitcnt lgkmcnt(%d)" % max(0, min(15, rem - (len(nts) - 1))))
            o = O + k_ * 4; r = T + n * 4
            if not first[k_]:
                for x in range(4): a("v_mov_b32 v%d, v%d" % (o + x, r + x))
                first[k_] = True
            else:
                for e in (0, 2):
                    a("v_pk_add_f32 v[%d:%d], v[%d:%d], v[%d:%d]" % (o + e, o + e + 1, o + e, o + e + 1, r + e, r + e + 1))
        stamp(a, 6, 15) if own is None else stamp(a, 5, 15)
        for k_, nt in enumerate(nts):
            o = O + k_ * 4
            a("v_cvt_pk_bf16_f32 v%d, v%d, v%d" % (o, o, o + 1))
            a("v_cvt_pk_bf16_f32 v%d, v%d, v%d" % (o + 1, o + 2, o + 3))
            a("buffer_store_dwordx2 v[%d:%d], v8, s[28:31], s50 offen offset:%d %s" % (o, o + 1, nt * 32, OUT_FLAGS))
    final([0, 1, 2], O)
    stamp_flush(a, 15, 14, 2, 26, 8)
    a("s_endpgm")
    FINAL = final

    a.label("K2_ATT")
    if K2_NOATT:
        a("s_barrier")
        stamp_flush(a, 15, 14, 2, 26, 8)
        a("s_endpgm")
    a("s_setprio %d" % ATT_PRIO)
    a("s_sub_u32 s27, s26, 4")
    RAW = 16; KVA = 120; WO = [192, 212]; DT = 232
    MF = 16
    GV = 252
    vmq = []
    def vm_issue(tag, text):
        a(text); vmq.append(tag)
    def vm_need(tag):
        idx = [i for i, t in enumerate(vmq) if t == tag]
        if not idx: return
        last = max(idx)
        a("s_waitcnt vmcnt(%d)" % min(63, len(vmq) - 1 - last))
        del vmq[:last + 1]
    if KV_MASK:
        KVZERO = True
    a("s_mul_i32 s48, s27, 640")
    a("s_add_u32 s48, s48, 0x%x" % Z_OFF)
    a("v_lshlrev_b32 v7, 4, v5")
    for sx in range(5):
        for ab in range(2):
            r = KVA + (sx * 2 + ab) * 4
            vm_issue("Z", "buffer_load_dwordx4 v[%d:%d], v7, s[36:39], s48 offen offset:%d" % (r, r + 3, sx * 128 + ab * 64))
    for rt in range(4):
        vm_issue("G", "buffer_load_dword v%d, v6, s[36:39], s47 offen offset:%d" % (GV + rt, rt * 64))
    a("s_mul_i32 s52, s27, %d" % K2_ATT)
    a("s_mul_i32 s53, s45, 74")
    a("s_mul_i32 s54, s27, 5")
    a("s_add_u32 s53, s53, s54")
    a("s_add_u32 s53, s53, 54")
    a("s_lshl_b32 s53, s53, 10")
    if AF_OFF: a("s_add_u32 s53, s53, 0x%x" % AF_OFF)
    for rt in range(4):
        for sx in range(5):
            a("s_add_u32 s54, s53, %d" % ((rt * 74 + sx) * 1024))
            a("s_add_u32 m0, s52, %d" % ((rt * 5 + sx) * 1024))
            a("s_nop 0")
            vm_issue("PQ", "buffer_load_dwordx4 v2, s[36:39], s54 offen lds")
    if ATT_PRIO2 is not None: a("s_setprio %d" % ATT_PRIO2)
    if KV_MASK:
        for ti in range(26):
            dt, et = TRI[ti % 13]
            if dt != et or True:
                for r in range(4): a("v_mov_b32 v%d, 0" % (RAW + ti * 4 + r))
    a("s_mul_i32 s49, s27, %d" % (26 * 1024))
    a("s_add_u32 s49, s49, 0x%x" % KV_OFF)
    for ti in range(26):
        dt, et = TRI[ti % 13]
        m = 0
        for l in range(64):
            if head(16 * dt + (l & 15)) == head(16 * et + 4 * (l >> 4)): m |= 1 << l
        full = (m == (1 << 64) - 1) or not KV_MASK
        if not full:
            a("s_mov_b32 exec_lo, 0x%x" % (m & 0xffffffff))
            a("s_mov_b32 exec_hi, 0x%x" % (m >> 32))
        vm_issue("KV", "buffer_load_dwordx4 v[%d:%d], v2, s[36:39], s49 offen offset:%d" % (RAW + ti * 4, RAW + ti * 4 + 3, (ti % 4) * 1024))
        if not full: a("s_mov_b64 exec, -1")
        if ti % 4 == 3: a("s_add_u32 s49, s49, 4096")
    a("s_mul_i32 s50, s46, 20")
    a("s_mul_i32 s51, s27, 5")
    a("s_add_u32 s50, s50, s51")
    a("s_lshl_b32 s50, s50, 10")
    a("s_add_u32 s50, s50, 0x%x" % WOF_OFF)
    def wo_loads(nt):
        a("s_add_u32 s51, s50, %d" % (nt * 20480))
        for p in range(4):
            r = WO[nt % 2] + p * 4
            vm_issue("WO%d" % nt, "buffer_load_dwordx4 v[%d:%d], v2, s[36:39], s51 offen offset:%d" % (r, r + 3, p * 1024))
        a("s_add_u32 s51, s51, 4096")
        r = WO[nt % 2] + 16
        vm_issue("WO%d" % nt, "buffer_load_dwordx4 v[%d:%d], v2, s[36:39], s51 offen" % (r, r + 3))
    wo_loads(0); wo_loads(1)
    if ATT_PRIO2 is not None: a("s_setprio %d" % ATT_PRIO)
    stamp(a, 2, 15)
    a("s_lshl_b32 s55, s27, 11")
    a("s_add_u32 s55, s55, %d" % K2_TAB)
    a("v_add_u32 v9, s52, v2")
    a("v_lshlrev_b32 v10, 5, v4")
    a("v_add_u32 v10, s55, v10")
    a("v_lshl_add_u32 v8, v5, 4, v10")
    for gb in (1, 2, 3):
        a("v_cmp_le_u32 vcc, %d, v5" % gb)
        a("s_nop 1")
        a("v_cndmask_b32 v%d, 0, 4, vcc" % (10 + gb))
        a("v_add_u32 v%d, v10, v%d" % (10 + gb, 10 + gb))
    ZF = 160
    vm_need("Z")
    for sx in range(5):
        r0 = KVA + sx * 8
        o = ZF + sx * 4
        a("v_cvt_pk_bf16_f32 v%d, v%d, v%d" % (o, r0, r0 + 1))
        a("v_cvt_pk_bf16_f32 v%d, v%d, v%d" % (o + 1, r0 + 2, r0 + 3))
        a("v_cvt_pk_bf16_f32 v%d, v%d, v%d" % (o + 2, r0 + 4, r0 + 5))
        a("v_cvt_pk_bf16_f32 v%d, v%d, v%d" % (o + 3, r0 + 6, r0 + 7))
        for ab in range(2):
            m = 0
            for l in range(64):
                if (32 * sx + 16 * ab + 4 * (l >> 4)) // 20 == (l & 15): m |= 1 << l
            a("s_mov_b32 s56, 0x%x" % (m & 0xffffffff))
            a("s_mov_b32 s57, 0x%x" % (m >> 32))
            a("v_cndmask_b32 v%d, 0, v%d, s[56:57]" % (o + 2 * ab, o + 2 * ab))
            a("v_cndmask_b32 v%d, 0, v%d, s[56:57]" % (o + 2 * ab + 1, o + 2 * ab + 1))
    PB = [120, 140]; DEN = 232; SC = 180
    vm_need("PQ")
    def pq_reads(rt, b):
        return ["ds_read_b128 v[%d:%d], v9 offset:%d" % (b + sx * 4, b + sx * 4 + 3, (rt * 5 + sx) * 1024) for sx in range(5)]
    for t in pq_reads(0, PB[0]) + pq_reads(1, PB[1]): a(t)
    for rt in range(4):
        b = PB[rt % 2]
        a("s_waitcnt lgkmcnt(%d)" % (5 if rt < 3 else 0))
        for sx in range(5):
            c = DEN + rt * 4
            a("v_mfma_f32_16x16x32_bf16 v[%d:%d], v[%d:%d], v[%d:%d], %s" % (c, c + 3, ZF + sx * 4, ZF + sx * 4 + 3, b + sx * 4, b + sx * 4 + 3, "0" if sx == 0 else "v[%d:%d]" % (c, c + 3)))
        if rt + 2 < 4:
            for t in pq_reads(rt + 2, b): a(t)
    for t in pq_reads(0, PB[0]) + pq_reads(1, PB[1]): a(t)
    vm_need("G")
    a("s_mov_b32 s56, 0x%x" % EPS6)
    for rt in range(4):
        for r in range(4): a("v_add_f32 v%d, s56, v%d" % (DEN + rt * 4 + r, DEN + rt * 4 + r))
    for rt in range(4):
        for r in range(4): a("v_rcp_f32 v%d, v%d" % (DEN + rt * 4 + r, DEN + rt * 4 + r))
    a("s_nop 0")
    for rt in range(4):
        for r in range(4): a("v_mul_f32 v%d, v%d, v%d" % (DEN + rt * 4 + r, GV + rt, DEN + rt * 4 + r))
    a("s_mov_b32 exec_lo, -1")
    a("s_mov_b32 exec_hi, 0")
    for rt in range(4):
        a("ds_write_b128 v8, v[%d:%d] offset:%d" % (DEN + rt * 4, DEN + rt * 4 + 3, rt * 512))
    a("s_mov_b64 exec, -1")
    a("s_waitcnt lgkmcnt(0)")
    def sc_reads(rt, base):
        out = []
        for sx in range(5):
            for ab in range(2):
                hs = [(32 * sx + 16 * ab + 4 * g) // 20 for g in range(4)]
                h0 = hs[0]
                gb = next((g for g in range(4) if hs[g] > h0), None)
                areg = 10 if gb is None else 10 + gb
                out.append("ds_read_b32 v%d, v%d offset:%d" % (base + sx * 2 + ab, areg, rt * 512 + h0 * 4))
        return out
    SCB = [180, 232]
    TMP = [190, 242, 244, 246]
    for t in sc_reads(0, SCB[0]) + sc_reads(1, SCB[1]): a(t)
    for rt in range(4):
        b = PB[rt % 2]; sc0 = SCB[rt % 2]
        a("s_waitcnt lgkmcnt(%d)" % (10 if rt == 0 else (15 if rt < 3 else 5)))
        if rt >= 1:
            pass
        n = 0
        for sx in range(5):
            for x in range(4):
                r = b + sx * 4 + x; sc = sc0 + sx * 2 + (x // 2)
                t = TMP[n % 4]; n += 1
                a("v_lshlrev_b32 v%d, 16, v%d" % (t, r))
                a("v_and_b32 v%d, 0xffff0000, v%d" % (t + 1, r))
                a("v_mul_f32 v%d, v%d, v%d" % (t, sc, t))
                a("v_mul_f32 v%d, v%d, v%d" % (t + 1, sc, t + 1))
                a("v_cvt_pk_bf16_f32 v%d, v%d, v%d" % (r, t, t + 1))
        for sx in range(5):
            a("ds_write_b128 v9, v[%d:%d] offset:%d" % (b + sx * 4, b + sx * 4 + 3, (rt * 5 + sx) * 1024))
        if rt + 2 < 4:
            for t in pq_reads(rt + 2, b) + sc_reads(rt + 2, sc0): a(t)
    stamp(a, 5, 15)
    vm_need("KV")
    def ktile(DTl, ET):
        par = DTl // 5
        if ET // 5 != par: return None
        key = (DTl % 5, ET % 5)
        if key not in TRI: return None
        return RAW + (par * 13 + TRI.index(key)) * 4
    frags = []
    for DTl in range(10):
        for p in range(5):
            if ktile(DTl, 2 * p) is not None or ktile(DTl, 2 * p + 1) is not None:
                frags.append((DTl, p))
    assert len(frags) == 18
    a("s_waitcnt lgkmcnt(0)")
    for fi, (DTl, p) in enumerate(frags):
        o = KVA + fi * 4
        for half in range(2):
            t = ktile(DTl, 2 * p + half)
            if t is None:
                a("v_mov_b32 v%d, 0" % (o + 2 * half)); a("v_mov_b32 v%d, 0" % (o + 2 * half + 1))
            else:
                a("v_cvt_pk_bf16_f32 v%d, v%d, v%d" % (o + 2 * half, t, t + 1))
                a("v_cvt_pk_bf16_f32 v%d, v%d, v%d" % (o + 2 * half + 1, t + 2, t + 3))
    stamp(a, 1, 15)
    dset = 0
    pend = []
    def conv(item):
        d, nt, sx = item
        o = MF + (sx * 5 + nt) * 4
        a("v_cvt_pk_bf16_f32 v%d, v%d, v%d" % (o, d, d + 1))
        a("v_cvt_pk_bf16_f32 v%d, v%d, v%d" % (o + 1, d + 2, d + 3))
        a("v_cvt_pk_bf16_f32 v%d, v%d, v%d" % (o + 2, d + 4, d + 5))
        a("v_cvt_pk_bf16_f32 v%d, v%d, v%d" % (o + 3, d + 6, d + 7))
    a("s_nop 1")
    for nt in range(5):
        vm_need("WO%d" % nt)
        for sx in range(5):
            d = DT + (dset % 3) * 8
            dset += 1
            for half in range(2):
                DTl = 2 * sx + half
                first = True
                for fi, (D_, p) in enumerate(frags):
                    if D_ != DTl: continue
                    A_ = KVA + fi * 4; B_ = WO[nt % 2] + p * 4; c = d + half * 4
                    a("v_mfma_f32_16x16x32_bf16 v[%d:%d], v[%d:%d], v[%d:%d], %s" % (c, c + 3, A_, A_ + 3, B_, B_ + 3, "0" if first else "v[%d:%d]" % (c, c + 3)))
                    first = False
            pend.append((d, nt, sx))
            if len(pend) == 3:
                a("s_nop 1")
                conv(pend.pop(0))
        if nt + 2 <= 4: wo_loads(nt + 2)
    ACC = 120; PQB = [200, 220]
    for t in pq_reads(0, PQB[0]): a(t)
    a("s_nop 7")
    while pend:
        conv(pend.pop(0))
    stamp(a, 3, 15)
    for rt in range(4):
        b = PQB[rt % 2]
        if rt < 3:
            for t in pq_reads(rt + 1, PQB[(rt + 1) % 2]): a(t)
        a("s_waitcnt lgkmcnt(%d)" % (5 if rt < 3 else 0))
        for sx in range(5):
            for nt in range(5):
                c = ACC + (rt * 5 + nt) * 4; m = MF + (sx * 5 + nt) * 4
                a("v_mfma_f32_16x16x32_bf16 v[%d:%d], v[%d:%d], v[%d:%d], %s" % (c, c + 3, m, m + 3, b + sx * 4, b + sx * 4 + 3, "0" if sx == 0 else "v[%d:%d]" % (c, c + 3)))
        if rt >= 1:
            for nt in range(5):
                c = ACC + ((rt - 1) * 5 + nt) * 4
                a("ds_write_b128 v9, v[%d:%d] offset:%d" % (c, c + 3, ((rt - 1) * 5 + nt) * 1024))
    a("s_nop 7")
    for nt in range(5):
        c = ACC + (15 + nt) * 4
        a("ds_write_b128 v9, v[%d:%d] offset:%d" % (c, c + 3, (15 + nt) * 1024))
    a("s_mul_i32 s50, s27, %d" % (17 * 1024))
    a("s_add_u32 s50, s50, %d" % K2_EX)
    a("v_add_u32 v7, s50, v2")
    a("s_mul_i32 s50, s27, %d" % (5 * 1024))
    a("v_add_u32 v9, s50, v2")
    a("s_add_u32 s50, s45, s27")
    a("s_mul_i32 s50, s50, %d" % (16 * 1280))
    a("s_mul_i32 s51, s46, 32")
    a("s_add_u32 s50, s50, s51")
    a("v_mul_u32_u24 v8, 1280, v4")
    a("v_lshl_add_u32 v8, v5, 3, v8")
    a("s_waitcnt lgkmcnt(0)")
    stamp(a, 4, 15)
    a("s_barrier")
    FINAL([3, 4], None)
    stamp_flush(a, 15, 14, 2, 26, 8)
    a.label("K2_END")
    a("s_endpgm")
    a.end_kernel(name, 256, 96)

def gen_k0(a, name):
    a.begin_kernel(name)
    a("s_cmp_ge_u32 s2, 8")
    a("s_cbranch_scc1 K0_END")
    a("s_load_dwordx16 s[4:19], s[0:1], 0")
    a("s_load_dwordx4 s[20:23], s[0:1], 64")
    a("s_load_dwordx2 s[24:25], s[0:1], 80")
    a("s_getpc_b64 s[90:91]")
    a.label("K0_PC")
    a("s_sub_u32 s90, s90, K0_PC-k1_kernel")
    a("s_subb_u32 s91, s91, 0")
    a("v_lshlrev_b32 v3, 7, v0")
    for i in range(6):
        a("v_min_u32 v5, K2_END-k1_kernel-4, v3")
        a("global_load_dword v4, v5, s[90:91]")
        a("v_add_u32 v3, 8192, v3")
    a("v_min_u32 v10, 15, v0")
    a("v_lshlrev_b32 v10, 20, v10")
    a("s_waitcnt lgkmcnt(0)")
    for (lo, size) in ((4, S * D * 2), (6, D * 3 * D * 2), (8, D * D * 2), (12, D * F * 2), (14, D * F * 2), (16, F * D * 2), (18, D * 2), (20, S * D * 2), (22, 256), (24, WS_SIZE)):
        srd(a, 28, lo, lo + 1, size)
        a("buffer_load_dword v4, v10, s[28:31], 0 offen")
    a("s_waitcnt vmcnt(0)")
    a.label("K0_END")
    a("s_endpgm")
    a.end_kernel(name, 16, 96)

HDR = """; Kernarg layout for this problem (88 bytes, ptrs only, base s[0:1]):
;   offset   0: d_in[0] A_x  shape=(1, 2048, 640) dtype=bfloat16 strides=(2621440, 1280, 2) contiguous=True
;   offset   8: d_in[1] A_wqkv  shape=(640, 1920) dtype=bfloat16 strides=(3840, 2) contiguous=True
;   offset  16: d_in[2] A_wo  shape=(640, 640) dtype=bfloat16 strides=(1280, 2) contiguous=True
;   offset  24: d_in[3] B_x  shape=(1, 2048, 640) dtype=bfloat16 strides=(2621440, 1280, 2) contiguous=True
;   offset  32: d_in[4] B_w_gate  shape=(640, 1728) dtype=bfloat16 strides=(3456, 2) contiguous=True
;   offset  40: d_in[5] B_w_up  shape=(640, 1728) dtype=bfloat16 strides=(3456, 2) contiguous=True
;   offset  48: d_in[6] B_w_down  shape=(1728, 640) dtype=bfloat16 strides=(1280, 2) contiguous=True
;   offset  56: d_in[7] gate_w  shape=(640,) dtype=bfloat16 strides=(2,) contiguous=True
;   k1: x @ [wqkv | w_gate | w_up] with fused epilogues (phi(q), h = sigmoid(g)*u, kv/z partial sums via atomics, gate)
;   k2: [h | phi(q)/den] @ [w_down ; blockdiag(kv) @ wo] with the gated mix
"""
if __name__ == "__main__":
    if len(sys.argv) > 1 and sys.argv[1] == "stamp": STAMP = True
    for o in sys.argv[3:]:
        k_, v_ = o.split("=")
        globals()[k_] = eval(v_)
    a = Asm()
    gen_k1(a, "k1_kernel", 32768)
    gen_k2(a, "k2_kernel", 32768)
    if WARMK: gen_k0(a, "k0_kernel")
    hdr = HDR + ("; @launch kernel=k0_kernel grid=(8,1,1) block=(64,1,1) lds=0\n" if WARMK else "") + "; @launch kernel=k1_kernel grid=(256,1,1) block=(512,1,1) lds=%d\n" % K1_LDS
    hdr += "; @launch kernel=k2_kernel grid=(256,1,1) block=(512,1,1) lds=%d" % K2_LDS
    out = sys.argv[2] if len(sys.argv) > 2 else "k12.s"
    open(out, "w").write(a.text(hdr))
```

```python
import sys
from asmlib import Asm

S, D, F = 2048, 640, 1728
AF_OFF  = 0x0000000
BF_OFF  = 0x0A00000
WOF_OFF = 0x0D00000
KV_OFF  = 0x0E00000
Z_OFF   = KV_OFF + 4 * 26 * 1024
ZERO_BYTES = 109 * 1024
FL_OFF  = KV_OFF + 107 * 1024
G_OFF   = 0x0E40000
JUNK_OFF = 0x0F00000
WS_SIZE = 0x10000000
LOG2E = 0x3fb8aa3b
NLOG2E = 0xbfb8aa3b
EPS6 = 0x358637bd

def head(c): return c // 20

class LdsQ:
    def __init__(self, a):
        self.a = a; self.q = []
    def issue(self, tag, text):
        self.a(text); self.q.append(tag)
    def need(self, tags):
        idx = [i for i, t in enumerate(self.q) if t in tags]
        if not idx: return
        last = max(idx)
        n = len(self.q) - 1 - last
        assert n <= 15
        self.a("s_waitcnt lgkmcnt(%d)" % n)
        self.q = self.q[last + 1:]
    def drain(self):
        self.a("s_waitcnt lgkmcnt(0)"); self.q = []

B_SLOT, A_SLOT = 24576, 16384
A_BASE = 4 * B_SLOT
GW_BASE = A_BASE + 3 * A_SLOT
K1_LDS = GW_BASE + 2048

TRI = [(dt, et) for dt in range(5) for et in range(5) if abs(dt - et) <= 1 and
       any(head(16 * dt + x) == head(16 * et + y) for x in range(16) for y in range(16))]
assert len(TRI) == 13

def kv_tile_index(par, dt, et):
    return par * 13 + TRI.index((dt, et))

def srd(a, d, lo, hi, size):
    a("s_mov_b32 s%d, s%d" % (d, lo))
    a("s_mov_b32 s%d, s%d" % (d + 1, hi))
    a("s_mov_b32 s%d, 0x%x" % (d + 2, size))
    a("s_mov_b32 s%d, 0x00020000" % (d + 3))

def code_prefetch(a, label_start, label_end, nbytes, vtmp, vdst, stmp, swave):
    a("s_getpc_b64 s[%d:%d]" % (stmp, stmp + 1))
    here = a.newlabel("PC")
    a.label(here)
    a("s_sub_u32 s%d, s%d, %s-%s" % (stmp, stmp, here, label_start))
    a("s_subb_u32 s%d, s%d, 0" % (stmp + 1, stmp + 1))
    a("v_and_b32 v%d, 63, v0" % vtmp)
    a("v_lshlrev_b32 v%d, 7, v%d" % (vtmp, vtmp))
    a("s_lshl_b32 s%d, s%d, 13" % (stmp + 2, swave))
    a("v_add_u32 v%d, s%d, v%d" % (vtmp, stmp + 2, vtmp))
    n = (nbytes + 32767) // 32768
    for i in range(n):
        a("v_min_u32 v%d, %s-%s-4, v%d" % (vdst + 1, label_end, label_start, vtmp))
        a("global_load_dword v%d, v%d, s[%d:%d]" % (vdst, vdst + 1, stmp, stmp + 1))
        if i + 1 < n:
            a("v_add_u32 v%d, 32768, v%d" % (vtmp, vtmp))

TS_OFF = 0x0F80000
STAMP = False
def stamp(a, idx, v):
    if not STAMP: return
    a("s_memrealtime s[94:95]")
    a("s_waitcnt lgkmcnt(0)")
    a("v_writelane_b32 v%d, s94, %d" % (v, idx))
def stampc(a, idx, v):
    if not STAMP: return
    a("s_memtime s[94:95]")
    a("s_waitcnt lgkmcnt(0)")
    a("v_writelane_b32 v%d, s94, %d" % (v, idx))
TS_CUR = [0]
def stamp_flush(a, v, vt, swg, swave, nw, wsrd=36):
    if not STAMP: return
    a("s_waitcnt vmcnt(0)")
    stamp(a, 7, v)
    a("s_mul_i32 s94, s%d, %d" % (swg, nw))
    a("s_add_u32 s94, s94, s%d" % swave)
    a("s_lshl_b32 s94, s94, 7")
    a("s_add_u32 s94, s94, 0x%x" % (TS_OFF + TS_CUR[0]))
    a("s_mov_b32 exec_lo, -1")
    a("s_mov_b32 exec_hi, 0")
    a("v_and_b32 v%d, 63, v0" % vt)
    a("v_lshlrev_b32 v%d, 2, v%d" % (vt, vt))
    a("buffer_store_dword v%d, v%d, s[%d:%d], s94 offen" % (v, vt, wsrd, wsrd + 3))
    a("s_waitcnt vmcnt(0)")
    a("s_mov_b64 exec, -1")

def zero_check(a, lbl, vflag, vaddr):
    a("s_movk_i32 s85, 20000")
    a.label(lbl)
    a("s_waitcnt vmcnt(0)")
    a("v_readfirstlane_b32 s69, v%d" % vflag)
    a("s_cmp_ge_u32 s69, 128")
    a("s_cbranch_scc1 %s_OK" % lbl)
    a("s_sub_u32 s85, s85, 1")
    a("s_cmp_eq_u32 s85, 0")
    a("s_cbranch_scc1 %s_OK" % lbl)
    a("buffer_load_dword v%d, v%d, s[52:55], 0 offen sc0 sc1" % (vflag, vaddr))
    a("s_branch %s" % lbl)
    a.label(lbl + "_OK")

def set_flag(a, soff, lbl):
    a("s_cmp_eq_u32 s26, 0")
    a("s_cbranch_scc0 %s" % lbl)
    a("v_mov_b32 v9, 0")
    a("v_mov_b32 v10, 1")
    a("s_mov_b64 exec, 1")
    a("buffer_store_dword v10, v9, s[36:39], s%d offen sc0 sc1" % soff)
    a("s_mov_b64 exec, -1")
    a.label(lbl)

def poll_flags(a, lbl, voff, vdst, mask):
    a("s_mov_b32 s88, 0x%x" % (mask & 0xffffffff))
    a("s_mov_b32 s89, 0x%x" % (mask >> 32))
    a("s_movk_i32 s85, 20000")
    a.label(lbl)
    a("buffer_load_dword v%d, v%d, s[36:39], 0 offen sc0 sc1" % (vdst, voff))
    a("s_waitcnt vmcnt(0)")
    a("v_cmp_eq_u32 vcc, 1, v%d" % vdst)
    a("s_nop 3")
    a("s_and_b64 s[86:87], vcc, s[88:89]")
    a("s_cmp_eq_u64 s[86:87], s[88:89]")
    a("s_cbranch_scc1 %s_OK" % lbl)
    a("s_sub_u32 s85, s85, 1")
    a("s_cmp_eq_u32 s85, 0")
    a("s_cbranch_scc1 %s_OK" % lbl)
    a("s_sleep 2")
    a("s_branch %s" % lbl)
    a.label(lbl + "_OK")

PF_FLAGS = ""
L2PF = True
PF_DIST = 2
PRE_WO = True
FUSED = False
WARMK = False
OUT_FLAGS = ""
TLBWARM = False
GW_QONLY = True
B_FIRST = True
TLB_IT = 3
PF_K2CODE = True
PF_START = 0
PRETOUCH = False
K2_NOATT = False
KV_MASK = True
K2_ROT = False
K2_NOMFMA = False
K2_NOMLP = False
ATT_PRIO = 3
ATT_PRIO2 = None
ST_FLAGS = "sc0 sc1"
RAMP = 3
L2PF2 = False
def gen_k1(a, name, code_bytes):
    a.begin_kernel(name)
    a("s_cmp_ge_u32 s2, 256")
    a("s_cbranch_scc1 %s" % ("K2_END" if FUSED else "K1_END"))
    a("s_load_dwordx16 s[4:19], s[0:1], 0")
    a("s_load_dwordx4 s[20:23], s[0:1], 64")
    a("s_load_dwordx2 s[24:25], s[0:1], 80")
    a("v_lshrrev_b32 v2, 6, v0")
    a("v_and_b32 v1, 63, v0")
    a("v_readfirstlane_b32 s26, v2")
    a("s_and_b32 s40, s2, 7")
    a("s_lshr_b32 s41, s2, 3")
    a("s_and_b32 s42, s40, 1")
    a("s_lshl_b32 s42, s42, 3")
    a("s_and_b32 s43, s41, 7")
    a("s_add_u32 s42, s42, s43")
    a("s_lshr_b32 s43, s40, 1")
    a("s_lshl_b32 s43, s43, 2")
    a("s_lshr_b32 s44, s41, 3")
    a("s_add_u32 s43, s43, s44")
    def srds(sv):
        a("s_waitcnt lgkmcnt(0)")
        stamp(a, 0, sv)
        srd(a, 28, 4, 5, S * D * 2)
        srd(a, 36, 24, 25, WS_SIZE)
        srd(a, 48, 18, 19, D * 2)
        srd(a, 52, 22, 23, 256)
    a("s_cmp_eq_u32 s43, 15")
    a("s_cbranch_scc1 K1_PREP")
    a("s_cmp_lt_u32 s26, 4")
    a("s_cbranch_scc1 K1_COMPUTE")

    a.c("loader waves")
    a("s_sub_u32 s27, s26, 4")
    a("s_lshr_b32 s44, s27, 1")
    a("s_lshl_b32 s47, s27, 5")
    a("v_lshrrev_b32 v2, 3, v1")
    a("v_add_u32 v2, s47, v2")
    a("v_mul_u32_u24 v2, 1280, v2")
    a("v_lshrrev_b32 v3, 4, v1")
    a("v_and_b32 v5, 7, v1")
    a("v_xor_b32 v3, v3, v5")
    a("v_lshlrev_b32 v3, 4, v3")
    a("v_add_u32 v16, v2, v3")
    a("v_xor_b32 v3, 64, v3")
    a("v_add_u32 v17, v2, v3")
    a("v_add_u32 v17, 10240, v17")
    a("v_add_u32 v18, 20480, v16")
    a("v_add_u32 v19, 20480, v17")
    a("s_movk_i32 s45, 3456")
    a("s_mul_i32 s46, s43, 384")
    a("s_cmp_lt_u32 s43, 9")
    a("s_cbranch_scc1 K1_LD_GO")
    a("s_movk_i32 s45, 3840")
    a("s_sub_u32 s46, s43, 9")
    a("s_mul_i32 s46, s46, 320")
    a("s_mul_i32 s47, s44, 1280")
    a("s_add_u32 s46, s46, s47")
    a("s_add_u32 s46, s46, 1280")
    a("s_sub_u32 s47, s43, 13")
    a("s_lshl_b32 s47, s47, 1")
    a("s_add_u32 s47, s47, s44")
    a("s_mul_i32 s47, s47, 320")
    a("s_cmp_lt_u32 s43, 13")
    a("s_cselect_b32 s46, s46, s47")
    a("s_and_b32 s46, s46, 0xffffff80")
    a.label("K1_LD_GO")
    a("s_and_b32 s47, s27, 1")
    a("s_mul_i32 s47, s47, 384")
    a("s_mov_b32 s64, 2731")
    a("s_lshl_b32 s63, s45, 3")
    for c in range(768): assert (c * 2731) >> 16 == c // 24
    for i in range(3):
        a("v_add_u32 v2, s47, v1")
        if i: a("v_add_u32 v2, %d, v2" % (64 * i))
        a("v_mul_u32_u24 v3, s64, v2")
        a("v_lshrrev_b32 v3, 16, v3")
        a("v_mul_u32_u24 v5, 24, v3")
        a("v_sub_u32 v5, v2, v5")
        a("v_bfe_u32 v6, v3, 1, 1")
        a("v_lshrrev_b32 v7, 2, v3")
        a("v_and_or_b32 v6, v7, 2, v6")
        a("v_lshrrev_b32 v7, 1, v5")
        a("v_xor_b32 v7, v7, v6")
        a("v_lshlrev_b32 v7, 5, v7")
        a("v_and_b32 v5, 1, v5")
        a("v_lshl_add_u32 v7, v5, 4, v7")
        a("v_mul_lo_u32 v3, v3, s45")
        a("v_add_u32 v%d, v3, v7" % (10 + i))
        a("v_xor_b32 v7, 64, v7")
        a("v_add3_u32 v%d, v3, v7, s63" % (13 + i))
    a("s_mul_i32 s65, s42, %d" % (128 * 1280))
    a("s_lshl_b32 s66, s45, 5")
    a("s_mul_i32 s67, s27, 6144")
    a("s_lshl_b32 s68, s27, 12")
    a("s_add_u32 s68, s68, %d" % A_BASE)
    srds(20)
    srd(a, 32, 6, 7, D * 3 * D * 2)
    a("s_cmp_lt_u32 s43, 9")
    a("s_cbranch_scc0 K1_LD_GO2")
    a("s_cmp_eq_u32 s44, 0")
    a("s_cselect_b32 s32, s12, s14")
    a("s_cselect_b32 s33, s13, s15")
    a("s_mov_b32 s34, 0x%x" % (D * F * 2))
    a.label("K1_LD_GO2")
    issued = []
    def issueB(t):
        a("s_mul_i32 s69, s66, %d" % t)
        a("s_add_u32 s69, s69, s46")
        for i in range(6):
            a("s_add_u32 m0, s67, %d" % ((t % 4) * B_SLOT + i * 1024))
            a("s_nop 0")
            a("buffer_load_dwordx4 v%d, s[32:35], s69 offen lds" % (10 + i))
            issued.append(("B", t))
    def issueA(T):
        a("s_add_u32 s70, s65, %d" % (T * 128))
        for i in range(4):
            a("s_add_u32 m0, s68, %d" % ((T % 3) * A_SLOT + i * 1024))
            a("s_nop 0")
            a("buffer_load_dwordx4 v%d, s[28:31], s70 offen lds" % (16 + i))
            issued.append(("A", T))
    stamp(a, 2, 20)
    if GW_QONLY:
        a("s_cmp_lt_u32 s43, 13")
        a("s_cbranch_scc1 K1_LD_NGW")
    a("v_lshlrev_b32 v2, 4, v1")
    a("s_mov_b32 m0, %d" % GW_BASE)
    a("v_add_u32 v3, 1024, v2")
    a("buffer_load_dwordx4 v2, s[48:51], 0 offen lds")
    a("s_mov_b32 m0, %d" % (GW_BASE + 1024))
    a("s_nop 0")
    a("buffer_load_dwordx4 v3, s[48:51], 0 offen lds")
    a.label("K1_LD_NGW")
    stamp(a, 8, 20)
    if B_FIRST:
        issueB(0); issueA(0)
    else:
        issueA(0); issueB(0)
    stamp(a, 10, 20)
    issueB(1)
    stamp(a, 11, 20)
    nextB, nextA = 2, 1
    if RAMP == 2:
        issueA(1)
        nextA = 2
    elif RAMP == 3:
        issueA(1); issueB(2)
        nextB, nextA = 3, 2
    elif not RAMP:
        issueA(1); issueB(2); issueB(3); issueA(2)
        nextB, nextA = 4, 3
    code_prefetch(a, name, "K2_END" if (PF_K2CODE or FUSED) else "K1_END", 65536 if (PF_K2CODE or FUSED) else code_bytes, 3, 4, 90, 27)
    issued.append(("P", 0))
    if PF_K2CODE or FUSED: issued.append(("P", 0))
    stamp(a, 3, 20)
    for t in range(21):
        if t <= 19:
            last = max(i for i, x in enumerate(issued) if x == ("B", t) or x == ("A", t // 2))
            n = len(issued) - 1 - last
            a("s_waitcnt vmcnt(%d)" % n)
        a("s_barrier")
        if t == 0: stamp(a, 1, 20)
        while nextA <= 9 and nextA - 3 <= t // 2 - 1 and nextA <= t // 2 + 2 and (nextA * 2 <= nextB + 1 or nextB > 19):
            issueA(nextA); nextA += 1
        while nextB <= 19 and nextB - 4 <= t - 1 and not (RAMP in (2, 3) and t == 0 and nextB > RAMP):
            issueB(nextB); nextB += 1
            while nextA <= 9 and nextA - 3 <= t // 2 - 1 and nextA * 2 <= nextB:
                issueA(nextA); nextA += 1
    assert nextA == 10 and nextB == 20
    if PRETOUCH:
        a("v_mov_b32 v2, 4")
        a("buffer_load_dword v3, v2, s[52:55], 0 offen sc0 sc1")
        a("s_and_b32 s71, s2, 7")
        a("s_lshr_b32 s71, s71, 2")
        a("s_waitcnt vmcnt(0)")
        a("v_readfirstlane_b32 s72, v3")
        a("s_cmp_lt_u32 s41, 24")
        a("s_cbranch_scc0 K1_LD_END")
        a("s_cmp_eq_u32 s72, 128")
        a("s_cbranch_scc0 K1_LD_END")
        a("s_lshl_b32 s73, s41, 2")
        a("s_add_u32 s73, s73, s27")
        a("v_lshlrev_b32 v2, 7, v1")
        a("s_mul_i32 s74, s71, %d" % (20 * 54 * 1024))
        a("s_mul_i32 s75, s73, %d" % (90 * 128))
        a("s_add_u32 s74, s74, s75")
        a("s_add_u32 s74, s74, 0x%x" % BF_OFF)
        a("buffer_load_dword v4, v2, s[36:39], s74 offen")
        a("v_min_u32 v3, 25, v1")
        a("v_lshlrev_b32 v3, 7, v3")
        a("s_add_u32 s74, s74, 8192")
        a("buffer_load_dword v4, v3, s[36:39], s74 offen")
        a("s_mul_i32 s74, s71, %d" % (20 * 20 * 1024))
        a("s_mul_i32 s75, s73, %d" % (34 * 128))
        a("s_min_u32 s75, s75, %d" % ((3200 - 34) * 128))
        a("s_add_u32 s74, s74, s75")
        a("s_add_u32 s74, s74, 0x%x" % WOF_OFF)
        a("v_min_u32 v3, 33, v1")
        a("v_lshlrev_b32 v3, 7, v3")
        a("buffer_load_dword v4, v3, s[36:39], s74 offen")
        a.label("K1_LD_END")
    stamp_flush(a, 20, 21, 2, 26, 8)
    if FUSED:
        a("s_mov_b32 s83, 1")
        a("s_cmp_lt_u32 s43, 9")
        a("s_cbranch_scc1 P2_ENTRY")
        a("s_cmp_lt_u32 s43, 13")
        a("s_cbranch_scc0 P2_ENTRY")
        a("s_barrier")
        a("s_barrier")
        a("s_branch P2_ENTRY")
    else:
        a("s_endpgm")

    a.label("K1_COMPUTE")
    a("s_lshr_b32 s44, s26, 1")
    a("s_and_b32 s45, s26, 1")
    a("s_cmp_lt_u32 s43, 9")
    a("s_cbranch_scc0 K1_C_QKV")
    a("s_mul_i32 s46, s45, 6")
    a("s_mov_b32 s47, 0")
    a("s_branch K1_C_GO")
    a.label("K1_C_QKV")
    a("s_cmp_lt_u32 s43, 13")
    a("s_cbranch_scc0 K1_C_Q")
    a("s_sub_u32 s46, s43, 9")
    a("s_and_b32 s46, s46, 1")
    a("s_lshl_b32 s46, s46, 1")
    a("s_mul_i32 s47, s45, 5")
    a("s_add_u32 s46, s46, s47")
    a("s_mov_b32 s47, 0")
    a("s_branch K1_C_GO")
    a.label("K1_C_Q")
    a("s_lshl_b32 s46, s45, 1")
    a("s_mul_i32 s47, s45, 12288")
    a.label("K1_C_GO")
    VA, VB = 2, 4
    a("v_and_b32 v8, 15, v1")
    a("v_lshrrev_b32 v9, 4, v1")
    a("s_lshl_b32 s64, s44, 13")
    a("s_add_u32 s64, s64, %d" % A_BASE)
    a("v_lshrrev_b32 v10, 1, v8")
    a("v_xor_b32 v11, v9, v10")
    a("v_lshlrev_b32 v11, 4, v11")
    a("v_lshl_add_u32 v11, v8, 7, v11")
    a("v_add_u32 v2, s64, v11")
    a("v_xor_b32 v3, 64, v2")
    a("v_lshrrev_b32 v10, 2, v8")
    a("v_lshl_add_u32 v11, v9, 3, v10")
    a("v_mul_u32_u24 v11, 384, v11")
    a("v_and_b32 v12, 3, v1")
    a("v_lshl_add_u32 v11, v12, 3, v11")
    a("v_add_u32 v11, s47, v11")
    a("v_lshrrev_b32 v12, 1, v10")
    a("v_and_b32 v13, 1, v9")
    a("v_lshl_or_b32 v12, v13, 1, v12")
    for jp in range(4):
        a("s_add_u32 s64, s46, %d" % jp)
        a("s_and_b32 s65, s64, 3")
        a("s_lshr_b32 s64, s64, 2")
        a("s_lshl_b32 s64, s64, 7")
        a("v_xor_b32 v13, s65, v12")
        a("v_lshl_add_u32 v13, v13, 5, v11")
        a("v_add_u32 v%d, s64, v13" % (VB + jp))
    def pf_setup():
        a("s_and_b32 s76, s26, 1")
        a("s_movk_i32 s77, 3456")
        a("s_mul_i32 s78, s43, 384")
        srd(a, 32, 6, 7, D * 3 * D * 2)
        a("s_cmp_lt_u32 s43, 9")
        a("s_cbranch_scc0 K1_PF_QKV")
        a("s_cmp_eq_u32 s76, 0")
        a("s_cselect_b32 s32, s12, s14")
        a("s_cselect_b32 s33, s13, s15")
        a("s_mov_b32 s34, 0x%x" % (D * F * 2))
        a("s_branch K1_PF_GO")
        a.label("K1_PF_QKV")
        a("s_movk_i32 s77, 3840")
        a("s_sub_u32 s78, s43, 9")
        a("s_mul_i32 s78, s78, 320")
        a("s_mul_i32 s79, s76, 1280")
        a("s_add_u32 s78, s78, s79")
        a("s_add_u32 s78, s78, 1280")
        a("s_sub_u32 s79, s43, 13")
        a("s_lshl_b32 s79, s79, 1")
        a("s_add_u32 s79, s79, s76")
        a("s_mul_i32 s79, s79, 320")
        a("s_cmp_lt_u32 s43, 13")
        a("s_cselect_b32 s78, s78, s79")
        a("s_and_b32 s78, s78, 0xffffff80")
        a.label("K1_PF_GO")
        a("v_min_u32 v10, 23, v1")
        a("v_mul_u32_u24 v11, 0x5556, v10")
        a("v_lshrrev_b32 v11, 16, v11")
        a("v_mul_u32_u24 v12, 3, v11")
        a("v_sub_u32 v12, v10, v12")
        a("s_and_b32 s80, s41, 7")
        a("s_lshl_b32 s80, s80, 3")
        a("v_add_u32 v11, s80, v11")
        a("v_mul_lo_u32 v11, v11, s77")
        a("v_lshl_add_u32 v12, v12, 7, v11")
        a("s_lshl_b32 s79, s77, 6")
        a("s_cmp_lt_u32 s26, 2")
        a("s_cbranch_scc1 K1_PF_W")
        a("s_lshr_b32 s80, s41, 3")
        a("s_lshl_b32 s80, s80, 5")
        a("s_lshl_b32 s81, s76, 4")
        a("s_add_u32 s80, s80, s81")
        a("v_min_u32 v10, 15, v1")
        a("v_add_u32 v10, s80, v10")
        a("v_mul_u32_u24 v12, 1280, v10")
        a("s_mul_i32 s78, s42, %d" % (128 * 1280))
        a("s_movk_i32 s79, 128")
        a("s_mov_b32 s32, s4")
        a("s_mov_b32 s33, s5")
        a("s_mov_b32 s34, 0x%x" % (S * D * 2))
        a.label("K1_PF_W")
        if PF_START:
            a("s_mul_i32 s80, s79, %d" % PF_START)
            a("s_add_u32 s78, s78, s80")
        for _ in range(PF_DIST - PF_START): pf_issue()
    def pf_issue():
        a("buffer_load_dword v13, v12, s[32:35], s78 offen %s" % PF_FLAGS)
        a("s_add_u32 s78, s78, s79")
    srds(15)
    if L2PF: pf_setup()
    if TLBWARM:
        srd(a, 84, 20, 21, S * D * 2)
        a("v_min_u32 v11, 15, v1")
        a("v_lshlrev_b32 v11, 20, v11")
        a("s_cmp_eq_u32 s41, 0")
        a("s_cselect_b32 s82, 1, 0")
        a("s_cmp_eq_u32 s26, 3")
        a("s_cselect_b32 s82, s82, 0")
    for r in range(64, 256):
        a("v_mov_b32 v%d, 0" % r)
    a("s_mov_b32 s70, 0")
    a("s_mov_b32 s71, 10")
    a("s_mov_b32 s75, 49152")
    a("s_cmp_lt_u32 s43, 9")
    a("s_cbranch_scc1 K1_GU")
    a("s_cmp_lt_u32 s43, 13")
    a("s_cbranch_scc1 K1_KV")
    a("s_branch K1_Q")

    ABUF = [16, 32]
    BR = 48
    ACC = 64

    def mainloop(role):
        q = LdsQ(a)
        if role == "gu":
            frags = [(p, j) for j in range(6) for p in range(2)]
        elif role == "kv":
            frags = [(p, j) for j in range(5) for p in range(2)]
        else:
            frags = [(0, j) for j in range(10)]
        nB = len(frags)
        def accreg(fi, rt): return ACC + (fi * 4 + rt) * 4
        def readB(J, par):
            p, j = frags[J]
            slot = (par * nB + J) % 4
            out = []
            for h in range(2):
                off = (j >> 2) * 128 + h * 1536 + p * 12288 + par * B_SLOT
                r = BR + slot * 4 + h * 2
                out.append((("B", par, J), "ds_read_b64_tr_b16 v[%d:%d], v%d offset:%d" % (r, r + 1, VB + (j & 3), off)))
            return out
        def readA(par):
            out = []
            for rt in range(4):
                r = ABUF[par] + rt * 4
                out.append((("A", par, rt), "ds_read_b128 v[%d:%d], v%d offset:%d" % (r, r + 3, VA + par, rt * 2048)))
            if role == "q":
                out.append((("G", par), "ds_read_b128 v[%d:%d], v14 offset:%d" % (GW[par], GW[par] + 3, 64 * par)))
            return out
        def mfma(par, J, rt):
            slot = (par * nB + J) % 4
            b = BR + slot * 4; x = ABUF[par] + rt * 4; c = accreg(J, rt)
            if role == "kv":
                return "v_mfma_f32_16x16x32_bf16 v[%d:%d], v[%d:%d], v[%d:%d], v[%d:%d]" % (c, c + 3, x, x + 3, b, b + 3, c, c + 3)
            return "v_mfma_f32_16x16x32_bf16 v[%d:%d], v[%d:%d], v[%d:%d], v[%d:%d]" % (c, c + 3, b, b + 3, x, x + 3, c, c + 3)
        GW = [ACC + 176, ACC + 180]
        LOG = ACC + 160
        if role == "q":
            a("v_lshlrev_b32 v14, 4, v9")
            a("v_add_u32 v14, %d, v14" % GW_BASE)
        stamp(a, 2, 15)
        a("s_barrier")
        stamp(a, 1, 15)
        stampc(a, 5, 15)
        for tag, t in readA(0) + readB(0, 0) + readB(1, 0) + readB(2, 0):
            q.issue(tag, t)
        state0 = list(q.q)
        lbl = "K1_LOOP_" + role
        a.label(lbl)
        if STAMP:
            a("s_memrealtime s[94:95]")
            a("s_sub_u32 m0, 18, s71")
            a("s_waitcnt lgkmcnt(0)")
            a("v_writelane_b32 v15, s94, m0")
        if L2PF: pf_issue()
        if TLBWARM:
            a("s_cmp_eq_u32 s71, %d" % (10 - TLB_IT))
            a("s_cselect_b32 s83, s82, 0")
            a("s_cmp_eq_u32 s83, 1")
            a("s_cbranch_scc0 %s_NT" % lbl)
            a("buffer_load_dword v13, v11, s[36:39], 0 offen")
            a("buffer_load_dword v13, v11, s[84:87], 0 offen")
            a.label(lbl + "_NT")
        for par in range(2):
            for J in range(nB):
                reads = []
                pre = []
                if J + 3 <= nB - 1:
                    reads = readB(J + 3, par)
                if J == nB - 2:
                    if role == "q":
                        for rt in range(4):
                            x = ABUF[par] + rt * 4; c = LOG + rt * 4
                            a("v_mfma_f32_16x16x32_bf16 v[%d:%d], v[%d:%d], v[%d:%d], v[%d:%d]" % (c, c + 3, GW[par], GW[par] + 3, x, x + 3, c, c + 3))
                    q.drain()
                    a("s_barrier")
                    if par == 1:
                        for jp in range(4):
                            a("v_add_u32 v%d, s75, v%d" % (VB + jp, VB + jp))
                        a("s_sub_u32 s75, 0, s75")
                        a("s_add_u32 s70, s70, 16384")
                        a("s_cmp_eq_u32 s70, 49152")
                        a("s_cselect_b32 s73, s70, 0")
                        a("s_sub_u32 s70, s70, s73")
                        a("s_sub_u32 s73, 16384, s73")
                        a("v_add_u32 v2, s73, v2")
                        a("v_add_u32 v3, s73, v3")
                        if role == "q": a("v_add_u32 v14, 128, v14")
                    reads = readA(1 - par) + readB(0, 1 - par) + readB(1, 1 - par)
                if J == nB - 1:
                    reads = readB(2, 1 - par)
                q.need([("B", par, J)] + ([("A", par, 0)] if J == 0 else []))
                for rt in range(4):
                    if J == 0 and rt > 0: q.need([("A", par, rt)])
                    a(mfma(par, J, rt))
                    k = (len(reads) + (3 - rt)) // (4 - rt) if reads else 0
                    for _ in range(k):
                        tag, t = reads.pop(0); q.issue(tag, t)
                assert not reads
        a("s_sub_u32 s71, s71, 1")
        a("s_cmp_lg_u32 s71, 0")
        a("s_cbranch_scc1 %s" % lbl)
        assert q.q == state0, (q.q, state0)
        a("s_waitcnt lgkmcnt(0) vmcnt(0)")
        a("s_nop 7")
        stamp(a, 3, 15)
        stampc(a, 6, 15)
        return accreg

    a.label("K1_GU")
    accreg = mainloop("gu")
    if FUSED:
        a("v_mov_b32 v9, 0")
        a("buffer_load_dword v10, v9, s[52:55], 0 offen sc0 sc1")
    a("s_mov_b32 s64, 0x%x" % NLOG2E); a("s_mov_b32 s65, 0x%x" % NLOG2E)
    a("s_mov_b32 s66, 1.0"); a("s_mov_b32 s67, 1.0")
    a("s_lshl_b32 s68, s42, 3")
    a("s_lshl_b32 s69, s44, 2")
    a("s_add_u32 s68, s68, s69")
    a("s_mul_i32 s68, s68, 74")
    a("s_mul_i32 s69, s43, 6")
    a("s_add_u32 s68, s68, s69")
    a("s_mul_i32 s69, s45, 3")
    a("s_add_u32 s68, s68, s69")
    a("s_lshl_b32 s68, s68, 10")
    if AF_OFF: a("s_add_u32 s68, s68, 0x%x" % AF_OFF)
    a("v_lshlrev_b32 v8, 4, v1")
    blk = 0
    for rt in range(4):
        for jp in range(3):
            T = 16 + (blk % 2) * 16
            O = T + 8
            for half in range(2):
                j = 2 * jp + half
                gq = accreg(j * 2 + 0, rt); uq = accreg(j * 2 + 1, rt)
                for e in range(0, 4, 2):
                    t = T + half * 4 + e
                    a("v_pk_mul_f32 v[%d:%d], v[%d:%d], s[64:65]" % (t, t + 1, gq + e, gq + e + 1))
            for x in range(8): a("v_exp_f32 v%d, v%d" % (T + x, T + x))
            for x in range(0, 8, 2): a("v_pk_add_f32 v[%d:%d], v[%d:%d], s[66:67]" % (T + x, T + x + 1, T + x, T + x + 1))
            for x in range(8): a("v_rcp_f32 v%d, v%d" % (T + x, T + x))
            for half in range(2):
                j = 2 * jp + half
                uq = accreg(j * 2 + 1, rt)
                for e in range(0, 4, 2):
                    t = T + half * 4 + e
                    a("v_pk_mul_f32 v[%d:%d], v[%d:%d], v[%d:%d]" % (t, t + 1, t, t + 1, uq + e, uq + e + 1))
            for x in range(4):
                a("v_cvt_pk_bf16_f32 v%d, v%d, v%d" % (O + x, T + 2 * x, T + 2 * x + 1))
            a("s_add_u32 s69, s68, %d" % ((rt * 74 + jp) * 1024))
            a("buffer_store_dwordx4 v[%d:%d], v8, s[36:39], s69 offen %s" % (O, O + 3, ST_FLAGS))
            blk += 1
    stamp_flush(a, 15, 14, 2, 26, 8)
    if FUSED:
        zero_check(a, "K1_GU_ZC", 10, 9)
        a("s_barrier")
        a("s_lshl_b32 s68, s42, 6")
        a("s_lshl_b32 s69, s43, 2")
        a("s_add_u32 s68, s68, s69")
        a("s_add_u32 s68, s68, 0x%x" % FL_OFF)
        set_flag(a, 68, "K1_GU_F")
        a("s_mov_b32 s83, 0")
        a("s_mov_b32 s82, 0")
        a("s_branch P2_ENTRY")
    else:
        a("s_endpgm")

    a.label("K1_Q")
    accreg = mainloop("q")
    if FUSED:
        a("v_mov_b32 v12, 0")
        a("buffer_load_dword v13, v12, s[52:55], 0 offen sc0 sc1")
    a("s_mov_b32 s64, 0x%x" % LOG2E); a("s_mov_b32 s65, 0x%x" % LOG2E)
    a("s_mov_b32 s66, 0x%x" % EPS6); a("s_mov_b32 s67, 0x%x" % EPS6)
    a("s_lshl_b32 s68, s42, 3")
    a("s_lshl_b32 s69, s44, 2")
    a("s_add_u32 s68, s68, s69")
    a("s_lshl_b32 s74, s68, 6")
    a("s_mul_i32 s68, s68, 74")
    a("s_sub_u32 s69, s43, 13")
    a("s_mul_i32 s69, s69, 10")
    a("s_add_u32 s68, s68, s69")
    a("s_mul_i32 s69, s45, 5")
    a("s_add_u32 s68, s68, s69")
    a("s_add_u32 s68, s68, 54")
    a("s_lshl_b32 s68, s68, 10")
    if AF_OFF: a("s_add_u32 s68, s68, 0x%x" % AF_OFF)
    a("v_lshlrev_b32 v8, 4, v1")
    def phi_pairs(srcs, T):
        n = len(srcs)
        U = T + 2 * n
        for x, s in enumerate(srcs):
            a("v_pk_mul_f32 v[%d:%d], v[%d:%d], s[64:65]" % (T + 2 * x, T + 2 * x + 1, s, s + 1))
        for x in range(2 * n):
            a("v_exp_f32 v%d, v%d clamp" % (T + x, T + x))
        for x, s in enumerate(srcs):
            a("v_max_f32 v%d, 0, v%d" % (U + 2 * x, s))
            a("v_max_f32 v%d, 0, v%d" % (U + 2 * x + 1, s + 1))
        for x in range(n):
            a("v_pk_add_f32 v[%d:%d], v[%d:%d], v[%d:%d]" % (T + 2 * x, T + 2 * x + 1, T + 2 * x, T + 2 * x + 1, U + 2 * x, U + 2 * x + 1))
        for x in range(n):
            a("v_pk_add_f32 v[%d:%d], v[%d:%d], s[66:67]" % (T + 2 * x, T + 2 * x + 1, T + 2 * x, T + 2 * x + 1))
    blk = 0
    for rt in range(4):
        for jp in range(5):
            T = 16 + (blk % 2) * 20
            O = T + 16
            srcs = [accreg(2 * jp + half, rt) + e for half in range(2) for e in (0, 2)]
            phi_pairs(srcs, T)
            for x in range(4):
                a("v_cvt_pk_bf16_f32 v%d, v%d, v%d" % (O + x, T + 2 * x, T + 2 * x + 1))
            a("s_add_u32 s69, s68, %d" % ((rt * 74 + jp) * 1024))
            a("buffer_store_dwordx4 v[%d:%d], v8, s[36:39], s69 offen %s" % (O, O + 3, ST_FLAGS))
            blk += 1
    a("s_cmp_eq_u32 s43, 13")
    a("s_cbranch_scc0 K1_Q_END")
    a("s_cmp_eq_u32 s45, 0")
    a("s_cbranch_scc0 K1_Q_END")
    a("v_cmp_gt_u32 vcc, 16, v1")
    a("s_and_saveexec_b64 s[76:77], vcc")
    a("v_lshlrev_b32 v9, 2, v1")
    a("s_mov_b32 s64, 0x%x" % NLOG2E)
    a("s_add_u32 s74, s74, 0x%x" % G_OFF)
    for rt in range(4):
        c = ACC + 160 + rt * 4
        a("v_mul_f32 v%d, s64, v%d" % (16 + rt, c))
    for rt in range(4): a("v_exp_f32 v%d, v%d" % (16 + rt, 16 + rt))
    a("s_nop 0")
    for rt in range(4): a("v_add_f32 v%d, 1.0, v%d" % (16 + rt, 16 + rt))
    for rt in range(4): a("v_rcp_f32 v%d, v%d" % (16 + rt, 16 + rt))
    a("s_nop 0")
    for rt in range(4):
        a("buffer_store_dword v%d, v9, s[36:39], s74 offen offset:%d %s" % (16 + rt, rt * 64, ST_FLAGS))
    a.label("K1_Q_END")
    a("s_mov_b64 exec, -1")
    stamp_flush(a, 15, 14, 2, 26, 8)
    if FUSED:
        zero_check(a, "K1_Q_ZC", 13, 12)
        a("s_barrier")
        a("s_lshl_b32 s68, s42, 6")
        a("s_sub_u32 s69, s43, 4")
        a("s_lshl_b32 s69, s69, 2")
        a("s_add_u32 s68, s68, s69")
        a("s_add_u32 s68, s68, 0x%x" % FL_OFF)
        set_flag(a, 68, "K1_Q_F")
        a("s_mov_b32 s83, 0")
        a("s_mov_b32 s82, 0")
        a("s_branch P2_ENTRY")
    else:
        a("s_endpgm")

    a.label("K1_KV")
    accreg = mainloop("kv")
    a("v_mov_b32 v9, 0")
    a("buffer_load_dword v10, v9, s[52:55], 0 offen sc0 sc1")
    a("s_mov_b32 s64, 0x%x" % LOG2E); a("s_mov_b32 s65, 0x%x" % LOG2E)
    a("s_mov_b32 s66, 0x%x" % EPS6); a("s_mov_b32 s67, 0x%x" % EPS6)
    def fragreg(p, rp, j): return accreg(j * 2 + p, 2 * rp)
    res = [accreg(fi, 1) for fi in range(10)] + [ACC + 160 + 4 * x for x in range(8)]
    ONES = 48
    for x in range(4): a("v_mov_b32 v%d, 0x3f803f80" % (ONES + x))
    def conv_ops(rp):
        global_lines = a.lines
        a.lines = []
        blk = 0
        for j in range(5):
            T = 16 + (blk % 2) * 16
            srcs = [accreg(j * 2, 2 * rp + half) + e for half in range(2) for e in (0, 2)]
            phi_pairs(srcs, T)
            o = fragreg(0, rp, j)
            for x in range(4):
                a("v_cvt_pk_bf16_f32 v%d, v%d, v%d" % (o + x, T + 2 * x, T + 2 * x + 1))
            s0 = accreg(j * 2 + 1, 2 * rp); s1 = accreg(j * 2 + 1, 2 * rp + 1)
            a("v_cvt_pk_bf16_f32 v%d, v%d, v%d" % (s0, s0, s0 + 1))
            a("v_cvt_pk_bf16_f32 v%d, v%d, v%d" % (s0 + 1, s0 + 2, s0 + 3))
            a("v_cvt_pk_bf16_f32 v%d, v%d, v%d" % (s0 + 2, s1, s1 + 1))
            a("v_cvt_pk_bf16_f32 v%d, v%d, v%d" % (s0 + 3, s1 + 2, s1 + 3))
            blk += 1
        out = a.lines
        a.lines = global_lines
        return [l.strip() for l in out]
    def kv_mfmas(rp):
        out = []
        for ti, (dt, et) in enumerate(TRI):
            c = res[ti]
            A_ = fragreg(1, rp, et); B_ = fragreg(0, rp, dt)
            out.append("v_mfma_f32_16x16x32_bf16 v[%d:%d], v[%d:%d], v[%d:%d], %s" % (c, c + 3, A_, A_ + 3, B_, B_ + 3, "0" if rp == 0 else "v[%d:%d]" % (c, c + 3)))
        for dt in range(5):
            c = res[13 + dt]
            B_ = fragreg(0, rp, dt)
            out.append("v_mfma_f32_16x16x32_bf16 v[%d:%d], v[%d:%d], v[%d:%d], %s" % (c, c + 3, ONES, ONES + 3, B_, B_ + 3, "0" if rp == 0 else "v[%d:%d]" % (c, c + 3)))
        return out
    for t in conv_ops(0): a(t)
    a("s_nop 1")
    c1 = conv_ops(1); m0_ = kv_mfmas(0)
    per = len(c1) // len(m0_)
    for k_, m_ in enumerate(m0_):
        a(m_)
        for t in c1[k_ * per:(k_ + 1) * per]: a(t)
    for t in c1[len(m0_) * per:]: a(t)
    a("s_barrier")
    a("s_nop 0")
    for t in kv_mfmas(1): a(t)
    a("s_lshl_b32 s68, s45, 1")
    a("s_add_u32 s68, s68, s44")
    a("s_mul_i32 s68, s68, %d" % (18 * 1024))
    a("v_lshlrev_b32 v8, 4, v1")
    a("v_add_u32 v8, s68, v8")
    zero_check(a, "K1_KV_POLL", 10, 9)
    a("s_nop 3")
    for ti in range(18):
        c = res[ti]
        a("ds_write_b128 v8, v[%d:%d] offset:%d" % (c, c + 3, ti * 1024))
    a("s_mul_i32 s68, s45, %d" % (36 * 1024))
    a("v_lshlrev_b32 v8, 2, v1")
    a("v_add_u32 v9, s68, v8")
    a("v_lshl_add_u32 v10, v1, 4, s68")
    a("s_sub_u32 s68, s43, 9")
    a("s_mul_i32 s69, s68, 26")
    a("s_mul_i32 s70, s45, 13")
    a("s_add_u32 s69, s69, s70")
    a("s_lshl_b32 s69, s69, 10")
    a("s_add_u32 s69, s69, 0x%x" % KV_OFF)
    a("s_lshl_b32 s68, s68, 1")
    a("s_add_u32 s68, s68, s45")
    a("s_mul_i32 s68, s68, 320")
    a("s_add_u32 s68, s68, 0x%x" % Z_OFF)
    a("s_waitcnt lgkmcnt(0)")
    a("s_barrier")
    stamp(a, 4, 15)
    a("s_cmp_eq_u32 s44, 0")
    a("s_cbranch_scc0 K1_KV_R1")
    for rh in range(2):
        if rh == 1: a.label("K1_KV_R1")
        items = []
        tiles = list(range(0, 7)) if rh == 0 else list(range(7, 13))
        for ti in tiles:
            dt, et = TRI[ti]
            for q_ in range(4):
                m = 0
                for p in range(64):
                    if head(16 * dt + (p >> 2)) == head(16 * et + 4 * q_ + (p & 3)): m |= 1 << p
                if m: items.append(("kv", ti, q_, m))
        if rh == 1:
            for dt in range(5): items.append(("z", 13 + dt, 0, 0xffff))
        for n, (kind, ti, q_, m) in enumerate(items):
            r = 16 + 2 * n
            if kind == "kv":
                a("ds_read2st64_b32 v[%d:%d], v9 offset0:%d offset1:%d" % (r, r + 1, ti * 4 + q_, 72 + ti * 4 + q_))
            else:
                a("ds_read2st64_b32 v[%d:%d], v10 offset0:%d offset1:%d" % (r, r + 1, ti * 4, 72 + ti * 4))
        assert 16 + 2 * len(items) <= 120
        for n, (kind, ti, q_, m) in enumerate(items):
            r = 16 + 2 * n
            rem = len(items) - 1 - n
            a("s_waitcnt lgkmcnt(%d)" % min(15, rem))
            a("v_add_f32 v%d, v%d, v%d" % (r, r, r + 1))
            a("s_mov_b32 exec_lo, 0x%x" % (m & 0xffffffff))
            a("s_mov_b32 exec_hi, 0x%x" % (m >> 32))
            if kind == "kv":
                off = ti * 1024 + q_ * 256
                a("s_add_u32 s70, s69, %d" % (off & ~4095))
                a("buffer_atomic_add_f32 v%d, v8, s[36:39], s70 offen offset:%d" % (r, off & 4095))
            else:
                a("buffer_atomic_add_f32 v%d, v8, s[36:39], s68 offen offset:%d" % (r, (ti - 13) * 64))
            a("s_mov_b64 exec, -1")
        stamp_flush(a, 15, 14, 2, 26, 8)
        if FUSED:
            if rh == 0: a("s_branch K1_KV_FIN")
        else:
            a("s_endpgm")
    if FUSED:
        a.label("K1_KV_FIN")
        a("s_waitcnt vmcnt(0)")
        a("s_barrier")
        a("s_lshl_b32 s68, s42, 2")
        a("s_add_u32 s68, s68, s43")
        a("s_sub_u32 s68, s68, 9")
        a("s_lshl_b32 s68, s68, 2")
        a("s_add_u32 s68, s68, 0x%x" % (FL_OFF + 1024))
        set_flag(a, 68, "K1_KV_F")
        a("s_mov_b32 s83, 0")
        a("s_mov_b32 s82, 0")
        a("s_branch P2_ENTRY")

    a.label("K1_PREP")
    srds(40)
    srd(a, 56, 16, 17, F * D * 2)
    srd(a, 60, 8, 9, D * D * 2)
    a("s_lshl_b32 s44, s42, 3")
    a("s_add_u32 s44, s44, s26")
    a("v_mov_b32 v4, 0"); a("v_mov_b32 v5, 0"); a("v_mov_b32 v6, 0"); a("v_mov_b32 v7, 0")
    a("v_lshlrev_b32 v8, 4, v1")
    a("s_cmp_lt_u32 s44, %d" % (ZERO_BYTES // 1024))
    a("s_cbranch_scc0 K1_PREP_NZ")
    a("s_lshl_b32 s45, s44, 10")
    a("s_add_u32 s45, s45, 0x%x" % KV_OFF)
    a("buffer_store_dwordx4 v[4:7], v8, s[36:39], s45 offen sc0 sc1")
    a("s_waitcnt vmcnt(0)")
    a.label("K1_PREP_NZ")
    a("v_mov_b32 v9, 0")
    a("v_mov_b32 v10, 1")
    a("s_mov_b64 exec, 1")
    a("buffer_atomic_add v10, v9, s[52:55], 0 offen sc1")
    a("s_mov_b64 exec, -1")
    a("v_lshrrev_b32 v2, 3, v1")
    a("v_mul_u32_u24 v2, 1280, v2")
    a("v_and_b32 v3, 7, v1")
    a("v_lshl_add_u32 v10, v3, 4, v2")
    for i in range(1, 4): a("v_add_u32 v%d, %d, v10" % (10 + i, i * 8 * 1280))
    a("v_lshrrev_b32 v2, 4, v1")
    a("v_and_b32 v3, 15, v1")
    a("v_lshrrev_b32 v3, 2, v3")
    a("v_lshl_add_u32 v2, v2, 2, v3")
    a("v_lshlrev_b32 v2, 7, v2")
    a("v_and_b32 v3, 3, v1")
    a("v_lshl_add_u32 v14, v3, 3, v2")
    a("s_mul_i32 s46, s26, 12288")
    a("v_add_u32 v14, s46, v14")
    def prep_batch(tasks, lbl):
        skip = []
        for n, (sr, total, nks, rnd, dst) in enumerate(tasks):
            a("s_add_u32 s%d, s44, %d" % (64 + n, 128 * rnd))
            a("s_cmp_lt_u32 s%d, %d" % (64 + n, total))
            a("s_cselect_b32 s%d, s%d, 0" % (64 + n, 64 + n))
            a("s_cselect_b32 s%d, 1, 0" % (80 + n))
            a("s_mul_hi_u32 s%d, s%d, %d" % (68 + n, 64 + n, (1 << 32) // 10 + 1))
            a("s_mul_i32 s72, s%d, 10" % (68 + n))
            a("s_sub_u32 s%d, s%d, s72" % (64 + n, 64 + n))
            a("s_mul_i32 s72, s%d, %d" % (68 + n, 32 * 1280))
            a("s_lshl_b32 s73, s%d, 7" % (64 + n))
            a("s_add_u32 s72, s72, s73")
            for i in range(4):
                a("s_add_u32 m0, s46, %d" % (n * 4096 + i * 1024))
                a("s_nop 0")
                a("buffer_load_dwordx4 v%d, s[%d:%d], s72 offen lds" % (10 + i, sr, sr + 3))
        for n, (sr, total, nks, rnd, dst) in enumerate(tasks):
            a("s_waitcnt vmcnt(%d)" % (4 * (len(tasks) - 1 - n) + 4 * n))
            for j in range(4):
                for h in range(2):
                    r = 16 + j * 4 + h * 2
                    a("ds_read_b64_tr_b16 v[%d:%d], v14 offset:%d" % (r, r + 1, n * 4096 + h * 2048 + j * 32))
            a("s_lshl_b32 s72, s%d, 2" % (64 + n))
            a("s_mul_i32 s72, s72, %d" % nks)
            a("s_add_u32 s72, s72, s%d" % (68 + n))
            a("s_lshl_b32 s72, s72, 10")
            a("s_add_u32 s72, s72, 0x%x" % dst)
            a("s_cmp_eq_u32 s%d, 1" % (80 + n))
            a("s_cselect_b32 s72, s72, 0x%x" % JUNK_OFF)
            a("s_waitcnt lgkmcnt(0)")
            for j in range(4):
                a("buffer_store_dwordx4 v[%d:%d], v8, s[36:39], s72 offen %s" % (16 + j * 4, 16 + j * 4 + 3, ST_FLAGS))
                if j < 3: a("s_add_u32 s72, s72, %d" % (nks * 1024))
            a("s_nop 1")
        a("s_waitcnt vmcnt(0)")
    prep_batch([(56, 540, 54, 0, BF_OFF), (56, 540, 54, 1, BF_OFF), (56, 540, 54, 2, BF_OFF)], "b0")
    prep_batch([(56, 540, 54, 3, BF_OFF), (56, 540, 54, 4, BF_OFF), (60, 200, 20, 0, WOF_OFF)], "b1")
    prep_batch([(60, 200, 20, 1, WOF_OFF)], "b2")
    if not FUSED:
        a("v_mov_b32 v9, 4")
        a("v_mov_b32 v10, 1")
        a("s_mov_b64 exec, 1")
        a("buffer_atomic_add v10, v9, s[52:55], 0 offen sc1")
        a("s_mov_b64 exec, -1")
    stamp_flush(a, 40, 41, 2, 26, 8)
    if FUSED:
        a("v_mov_b32 v9, 0")
        a("buffer_load_dword v10, v9, s[52:55], 0 offen sc0 sc1")
        zero_check(a, "K1_P_ZC", 10, 9)
        a("s_barrier")
        a("s_lshl_b32 s68, s42, 2")
        a("s_add_u32 s68, s68, 0x%x" % (FL_OFF + 1280))
        set_flag(a, 68, "K1_P_F")
        a("s_mov_b32 s83, 0")
        a("s_mov_b32 s82, 1")
        a("s_branch P2_ENTRY")
        return
    a.label("K1_END")
    a("s_endpgm")
    a.end_kernel(name, 256, 96)

K2_ATT = 20480
K2_EX  = 4 * K2_ATT
K2_TAB = K2_EX + 4 * 17 * 1024
K2_LDS = K2_TAB + 8192

def gen_k2(a, name, code_bytes):
    TS_CUR[0] = 0x40000
    if FUSED:
        a.label("P2_ENTRY")
        a("s_mov_b64 exec, -1")
        a("s_setprio 0")
        a("v_and_b32 v1, 63, v0")
    else:
        a.begin_kernel(name)
        a("s_cmp_ge_u32 s2, 256")
        a("s_cbranch_scc1 K2_END")
        a("s_load_dwordx2 s[20:21], s[0:1], 64")
        a("s_load_dwordx2 s[24:25], s[0:1], 80")
        a("v_lshrrev_b32 v2, 6, v0")
        a("v_and_b32 v1, 63, v0")
        a("v_readfirstlane_b32 s26, v2")
    stamp(a, 0, 15)
    a("s_and_b32 s40, s2, 7")
    a("s_lshr_b32 s41, s2, 3")
    a("s_and_b32 s42, s40, 3")
    a("s_lshl_b32 s42, s42, 3")
    a("s_and_b32 s43, s41, 7")
    a("s_add_u32 s42, s42, s43")
    a("s_lshr_b32 s43, s40, 2")
    a("s_lshl_b32 s43, s43, 2")
    a("s_lshr_b32 s44, s41, 3")
    a("s_add_u32 s43, s43, s44")
    a("v_lshlrev_b32 v2, 4, v1")
    a("v_lshlrev_b32 v3, 2, v1")
    a("v_and_b32 v4, 15, v1")
    a("v_lshrrev_b32 v5, 4, v1")
    a("s_lshl_b32 s45, s42, 2")
    a("s_mul_i32 s46, s43, 5")
    a("s_waitcnt lgkmcnt(0)")
    srd(a, 36, 24, 25, WS_SIZE)
    srd(a, 28, 20, 21, S * D * 2)
    a("s_lshl_b32 s47, s45, 6")
    a("s_add_u32 s47, s47, 0x%x" % G_OFF)
    a("v_lshlrev_b32 v6, 2, v4")
    if FUSED:
        a("s_lshr_b32 s48, s42, 1")
        a("s_lshl_b32 s48, s48, 6")
        a("s_add_u32 s48, s48, 0x%x" % FL_OFF)
        a("v_add_u32 v7, s48, v3")
        a("v_add_u32 v8, 0x%x, v3" % (FL_OFF + 1280 - 64))
        a("v_cmp_gt_u32 vcc, 16, v1")
        a("s_nop 1")
        a("v_cndmask_b32 v7, v8, v7, vcc")
    a("s_cmp_ge_u32 s26, 4")
    a("s_cbranch_scc1 K2_ATT")

    if not FUSED:
        code_prefetch(a, name, "K2_END", code_bytes, 7, 8, 90, 26)
    if L2PF2:
        a("v_lshlrev_b32 v7, 7, v1")
        a("s_and_b32 s50, s40, 3")
        a("s_lshl_b32 s50, s50, 5")
        a("s_add_u32 s50, s50, s41")
        a("s_mul_i32 s50, s50, %d" % (74 * 1024))
        a("s_mul_i32 s51, s26, %d" % (148 * 128))
        a("s_add_u32 s50, s50, s51")
        if AF_OFF: a("s_add_u32 s50, s50, 0x%x" % AF_OFF)
        a("s_lshr_b32 s51, s40, 2")
        a("s_mul_i32 s52, s51, %d" % (20 * 54 * 1024))
        a("s_mul_i32 s53, s41, %d" % (270 * 128))
        a("s_add_u32 s52, s52, s53")
        a("s_mul_i32 s53, s26, %d" % (68 * 128))
        a("s_add_u32 s52, s52, s53")
        a("s_add_u32 s52, s52, 0x%x" % BF_OFF)
        a("buffer_load_dword v8, v7, s[36:39], s52 offen %s" % PF_FLAGS)
        a("v_min_u32 v9, 3, v1")
        a("v_lshlrev_b32 v9, 7, v9")
        a("buffer_load_dword v8, v9, s[36:39], s52 offen offset:0 %s" % PF_FLAGS) if False else None
        a("s_add_u32 s52, s52, 8192")
        a("buffer_load_dword v8, v9, s[36:39], s52 offen %s" % PF_FLAGS)
        a("buffer_load_dword v8, v7, s[36:39], s50 offen %s" % PF_FLAGS)
        a("s_add_u32 s50, s50, 8192")
        a("buffer_load_dword v8, v7, s[36:39], s50 offen %s" % PF_FLAGS)
        a("s_add_u32 s50, s50, 8192")
        a("v_min_u32 v9, 19, v1")
        a("v_lshlrev_b32 v9, 7, v9")
        a("buffer_load_dword v8, v9, s[36:39], s50 offen %s" % PF_FLAGS)
    ACC = 16; BUF = 96; GV = 240
    if not FUSED:
        for rt in range(4):
            a("buffer_load_dword v%d, v6, s[36:39], s47 offen offset:%d" % (GV + rt, rt * 64))
    a("s_mul_i32 s48, s26, 14")
    a("s_cmp_eq_u32 s26, 3")
    a("s_cselect_b32 s49, 1, 0")
    a("s_sub_u32 s48, s48, s49")
    if FUSED:
        a("s_cmp_ge_u32 s26, 2")
        a("s_cselect_b32 s49, 1, 0")
        a("s_sub_u32 s48, s48, s49")
    a("s_cmp_ge_u32 s26, 2")
    a("s_cselect_b32 s61, 13, 14")
    a("s_lshr_b32 s49, s41, 3")
    a("s_mul_i32 s49, s49, 14")
    a("s_and_b32 s50, s41, 7")
    a("s_mul_i32 s50, s50, 7")
    a("s_add_u32 s49, s49, s50")
    a("s_lshr_b32 s60, s49, 2")
    if not K2_ROT: a("s_mov_b32 s60, 0")
    a("s_cmp_ge_u32 s60, s61")
    a("s_cselect_b32 s49, s61, 0")
    a("s_sub_u32 s60, s60, s49")
    a("s_lshl_b32 s60, s60, 10")
    a("s_lshl_b32 s61, s61, 10")
    for rt in range(4):
        a("s_add_u32 s50, s45, %d" % rt)
        a("s_mul_i32 s50, s50, 74")
        a("s_add_u32 s50, s50, s48")
        a("s_lshl_b32 s50, s50, 10")
        if AF_OFF: a("s_add_u32 s50, s50, 0x%x" % AF_OFF)
        a("v_add_u32 v%d, s50, v2" % (244 + rt))
    for nt in range(5):
        a("s_add_u32 s50, s46, %d" % nt)
        a("s_mul_i32 s50, s50, 54")
        a("s_add_u32 s50, s50, s48")
        a("s_lshl_b32 s50, s50, 10")
        a("s_add_u32 s50, s50, 0x%x" % BF_OFF)
        a("v_add_u32 v%d, s50, v2" % (248 + nt))
    def loads(slot):
        b = BUF + (slot % 4) * 36
        out = []
        for nt in range(5):
            out.append("buffer_load_dwordx4 v[%d:%d], v%d, s[36:39], s60 offen" % (b + 16 + nt * 4, b + 16 + nt * 4 + 3, 248 + nt))
        for rt in range(4):
            out.append("buffer_load_dwordx4 v[%d:%d], v%d, s[36:39], s60 offen" % (b + rt * 4, b + rt * 4 + 3, 244 + rt))
        out.append("s_add_u32 s60, s60, 1024")
        out.append("s_cmp_eq_u32 s60, s61")
        out.append("s_cselect_b32 s60, 0, s60")
        return out
    def adv(): pass
    def mf(sl):
        b = BUF + (sl % 4) * 36
        for nt in range(5):
            for rt in range(4):
                c = ACC + (rt * 5 + nt) * 4
                if K2_NOMFMA: continue
                a("v_mfma_f32_16x16x32_bf16 v[%d:%d], v[%d:%d], v[%d:%d], v[%d:%d]" % (c, c + 3, b + 16 + nt * 4, b + 19 + nt * 4, b + rt * 4, b + rt * 4 + 3, c, c + 3))
    if FUSED:
        def ldB(sl, soff, imm):
            b = BUF + (sl % 4) * 36
            for nt in range(5):
                a("buffer_load_dwordx4 v[%d:%d], v%d, s[36:39], %s offen offset:%d" % (b + 16 + nt * 4, b + 19 + nt * 4, 248 + nt, soff, imm))
        def ldA(sl, soff, imm):
            b = BUF + (sl % 4) * 36
            for rt in range(4):
                a("buffer_load_dwordx4 v[%d:%d], v%d, s[36:39], %s offen offset:%d" % (b + rt * 4, b + rt * 4 + 3, 244 + rt, soff, imm))
        a("s_cmp_eq_u32 s82, 0")
        a("s_cbranch_scc1 P2_M_PK")
        poll_flags(a, "P2_M_POLLP", 7, 8, 0xffff << 16)
        a.label("P2_M_PK")
        a("s_cmp_ge_u32 s26, 2")
        a("s_cbranch_scc1 K2_M_SKB0")
        ldB(0, "0", 0)
        a.label("K2_M_SKB0")
        for sl in (1, 2, 3): ldB(sl, "0", sl * 1024)
        for r in range(ACC, ACC + 80): a("v_mov_b32 v%d, 0" % r)
        poll_flags(a, "P2_M_POLL", 7, 8, 0x7ff)
        stamp(a, 6, 15)
        for rt in range(4):
            a("buffer_load_dword v%d, v6, s[36:39], s47 offen offset:%d" % (GV + rt, rt * 64))
        a("s_cmp_ge_u32 s26, 2")
        a("s_cbranch_scc1 K2_M_SKA0")
        ldA(0, "0", 0)
        a.label("K2_M_SKA0")
        for sl in (1, 2, 3): ldA(sl, "0", sl * 1024)
        a("s_movk_i32 s60, 4096")
        stamp(a, 2, 15)
        for sl in range(14):
            if sl <= 3:
                n = 4 * (3 - sl) + 9 * min(sl, 10)
            else:
                n = 9 * min(3, 13 - sl)
            a("s_waitcnt vmcnt(%d)" % n)
            if sl == 0:
                stamp(a, 1, 15)
                a("s_cmp_ge_u32 s26, 2")
                a("s_cbranch_scc1 K2_M_SK1")
            mf(sl)
            if sl == 0:
                a.label("K2_M_SK1")
            if sl + 4 <= 13:
                ldB(sl + 4, "s60", 0); ldA(sl + 4, "s60", 0)
                a("s_add_u32 s60, s60, 1024")
    else:
        if K2_NOMLP:
            a("s_branch K2_M_DONE")
        a("s_cmp_ge_u32 s26, 2")
        a("s_cbranch_scc1 K2_M_SK0")
        for t in loads(0): a(t)
        a.label("K2_M_SK0")
        for sl in (1, 2):
            for t in loads(sl): a(t)
        for r in range(ACC, ACC + 80): a("v_mov_b32 v%d, 0" % r)
        stamp(a, 2, 15)
        for sl in range(14):
            if sl + 3 <= 13:
                for t in loads(sl + 3): a(t)
            a("s_waitcnt vmcnt(%d)" % (9 * min(3, 13 - sl)))
            if sl == 0:
                stamp(a, 1, 15)
                a("s_cmp_ge_u32 s26, 2")
                a("s_cbranch_scc1 K2_M_SK1")
            mf(sl)
            if sl == 0:
                a.label("K2_M_SK1")
    a.label("K2_M_DONE")
    stamp(a, 3, 15)
    for rt in range(4):
        a("v_sub_f32 v%d, 1.0, v%d" % (244 + 2 * rt, GV + rt))
        a("v_sub_f32 v%d, 1.0, v%d" % (245 + 2 * rt, GV + rt))
    a("v_add_u32 v7, %d, v2" % K2_EX)
    a("v_add_u32 v10, %d, v2" % (K2_EX + 2 * 17 * 1024))
    a("s_nop 4")
    if FUSED: a("s_barrier")
    for ti in range(20):
        rt = ti // 5
        c = ACC + ti * 4
        for e in (0, 2):
            a("v_pk_mul_f32 v[%d:%d], v[%d:%d], v[%d:%d]" % (c + e, c + e + 1, c + e, c + e + 1, 244 + 2 * rt, 245 + 2 * rt))
    T = BUF
    O = T + 96
    for w in range(4):
        a("s_cmp_eq_u32 s26, %d" % w)
        a("s_cbranch_scc0 K2_X%d" % w)
        for rt in range(4):
            for nt in range(5):
                c = ACC + (rt * 5 + nt) * 4
                if rt == w:
                    if nt >= 3:
                        a("ds_write_b128 v%d, v[%d:%d] offset:%d" % (7 if rt < 2 else 10, c, c + 3, ((rt % 2) * 17 + 15 + nt - 3) * 1024))
                    continue
                idx = w if w < rt else w - 1
                a("ds_write_b128 v%d, v[%d:%d] offset:%d" % (7 if rt < 2 else 10, c, c + 3, ((rt % 2) * 17 + idx * 5 + nt) * 1024))
        for x in range(12):
            a("v_mov_b32 v%d, v%d" % (O + x, ACC + w * 20 + x))
        a("s_branch K2_XD")
        a.label("K2_X%d" % w)
    a.label("K2_XD")
    a("s_mul_i32 s50, s26, %d" % (17 * 1024))
    a("v_add_u32 v7, s50, v7")
    a("s_mul_i32 s50, s26, %d" % (5 * 1024))
    a("v_add_u32 v9, s50, v2")
    a("s_add_u32 s50, s45, s26")
    a("s_mul_i32 s50, s50, %d" % (16 * 1280))
    a("s_mul_i32 s51, s46, 32")
    a("s_add_u32 s50, s50, s51")
    a("v_mul_u32_u24 v8, 1280, v4")
    a("v_lshl_add_u32 v8, v5, 3, v8")
    a("s_waitcnt lgkmcnt(0)")
    a("s_barrier")
    stamp(a, 4, 15)
    def final(nts, own):
        srcs = []
        for idx in range(3):
            for k_, nt in enumerate(nts): srcs.append((k_, "v7", (idx * 5 + nt) * 1024))
        if own is None:
            for k_, nt in enumerate(nts): srcs.append((k_, "v7", (15 + nt - 3) * 1024))
        for u in range(4):
            for k_, nt in enumerate(nts): srcs.append((k_, "v9" if u < 2 else "v10", (u % 2) * K2_ATT + nt * 1024))
        a("v_add_u32 v10, %d, v9" % (2 * K2_ATT))
        for n, (k_, ar, off) in enumerate(srcs):
            a("ds_read_b128 v[%d:%d], %s offset:%d" % (T + n * 4, T + n * 4 + 3, ar, off))
        first = [own is not None] * len(nts)
        for n, (k_, ar, off) in enumerate(srcs):
            rem = len(srcs) - 1 - n
            if n % len(nts) == 0: a("s_waitcnt lgkmcnt(%d)" % max(0, min(15, rem - (len(nts) - 1))))
            o = O + k_ * 4; r = T + n * 4
            if not first[k_]:
                for x in range(4): a("v_mov_b32 v%d, v%d" % (o + x, r + x))
                first[k_] = True
            else:
                for e in (0, 2):
                    a("v_pk_add_f32 v[%d:%d], v[%d:%d], v[%d:%d]" % (o + e, o + e + 1, o + e, o + e + 1, r + e, r + e + 1))
        stamp(a, 6, 15) if own is None else stamp(a, 5, 15)
        for k_, nt in enumerate(nts):
            o = O + k_ * 4
            a("v_cvt_pk_bf16_f32 v%d, v%d, v%d" % (o, o, o + 1))
            a("v_cvt_pk_bf16_f32 v%d, v%d, v%d" % (o + 1, o + 2, o + 3))
            a("buffer_store_dwordx2 v[%d:%d], v8, s[28:31], s50 offen offset:%d %s" % (o, o + 1, nt * 32, OUT_FLAGS))
    final([0, 1, 2], O)
    stamp_flush(a, 15, 14, 2, 26, 8)
    a("s_endpgm")
    FINAL = final

    a.label("K2_ATT")
    if K2_NOATT:
        a("s_barrier")
        stamp_flush(a, 15, 14, 2, 26, 8)
        a("s_endpgm")
    a("s_setprio %d" % ATT_PRIO)
    a("s_sub_u32 s27, s26, 4")
    RAW = 16; KVA = 120; WO = [192, 212]; DT = 232
    MF = 16
    GV = 252
    vmq = []
    def vm_issue(tag, text):
        a(text); vmq.append(tag)
    def vm_need(tag):
        idx = [i for i, t in enumerate(vmq) if t == tag]
        if not idx: return
        last = max(idx)
        a("s_waitcnt vmcnt(%d)" % min(63, len(vmq) - 1 - last))
        del vmq[:last + 1]
    if KV_MASK:
        KVZERO = True
    def issue_Z():
        a("s_mul_i32 s48, s27, 640")
        a("s_add_u32 s48, s48, 0x%x" % Z_OFF)
        a("v_lshlrev_b32 v7, 4, v5")
        for sx in range(5):
            for ab in range(2):
                r = KVA + (sx * 2 + ab) * 4
                vm_issue("Z", "buffer_load_dwordx4 v[%d:%d], v7, s[36:39], s48 offen offset:%d" % (r, r + 3, sx * 128 + ab * 64))
    def issue_G():
        for rt in range(4):
            vm_issue("G", "buffer_load_dword v%d, v6, s[36:39], s47 offen offset:%d" % (GV + rt, rt * 64))
    def issue_PQ():
        a("s_mul_i32 s52, s27, %d" % K2_ATT)
        a("s_mul_i32 s53, s45, 74")
        a("s_mul_i32 s54, s27, 5")
        a("s_add_u32 s53, s53, s54")
        a("s_add_u32 s53, s53, 54")
        a("s_lshl_b32 s53, s53, 10")
        if AF_OFF: a("s_add_u32 s53, s53, 0x%x" % AF_OFF)
        for rt in range(4):
            for sx in range(5):
                a("s_add_u32 s54, s53, %d" % ((rt * 74 + sx) * 1024))
                a("s_add_u32 m0, s52, %d" % ((rt * 5 + sx) * 1024))
                a("s_nop 0")
                vm_issue("PQ", "buffer_load_dwordx4 v2, s[36:39], s54 offen lds")
    def zero_RAW():
        if KV_MASK:
            for r in range(RAW, RAW + 104): a("v_mov_b32 v%d, 0" % r)
    def issue_KV():
        a("s_mul_i32 s49, s27, %d" % (26 * 1024))
        a("s_add_u32 s49, s49, 0x%x" % KV_OFF)
        for ti in range(26):
            dt, et = TRI[ti % 13]
            m = 0
            for l in range(64):
                if head(16 * dt + (l & 15)) == head(16 * et + 4 * (l >> 4)): m |= 1 << l
            full = (m == (1 << 64) - 1) or not KV_MASK
            if not full:
                a("s_mov_b32 exec_lo, 0x%x" % (m & 0xffffffff))
                a("s_mov_b32 exec_hi, 0x%x" % (m >> 32))
            vm_issue("KV", "buffer_load_dwordx4 v[%d:%d], v2, s[36:39], s49 offen offset:%d" % (RAW + ti * 4, RAW + ti * 4 + 3, (ti % 4) * 1024))
            if not full: a("s_mov_b64 exec, -1")
            if ti % 4 == 3: a("s_add_u32 s49, s49, 4096")
    a("s_mul_i32 s50, s46, 20")
    a("s_mul_i32 s51, s27, 5")
    a("s_add_u32 s50, s50, s51")
    a("s_lshl_b32 s50, s50, 10")
    a("s_add_u32 s50, s50, 0x%x" % WOF_OFF)
    def wo_loads(nt):
        a("s_add_u32 s51, s50, %d" % (nt * 20480))
        for p in range(4):
            r = WO[nt % 2] + p * 4
            vm_issue("WO%d" % nt, "buffer_load_dwordx4 v[%d:%d], v2, s[36:39], s51 offen offset:%d" % (r, r + 3, p * 1024))
        a("s_add_u32 s51, s51, 4096")
        r = WO[nt % 2] + 16
        vm_issue("WO%d" % nt, "buffer_load_dwordx4 v[%d:%d], v2, s[36:39], s51 offen" % (r, r + 3))
    def owed_barriers():
        a.label("P2_A_BAR")
        a("s_cmp_eq_u32 s83, 0")
        a("s_cbranch_scc1 P2_A_BARD")
        a("s_barrier")
        a("s_sub_u32 s83, s83, 1")
        a("s_branch P2_A_BAR")
        a.label("P2_A_BARD")
    if FUSED:
        poll_flags(a, "P2_A_POLLP", 7, 8, 0xffff << 16)
        if not PRE_WO: owed_barriers()
        wo_loads(0); wo_loads(1)
        a("s_mul_i32 s56, s27, 15360")
        a("s_add_u32 s56, s56, %d" % K2_EX)
        for nt in (2, 3, 4):
            for p in range(5):
                a("s_add_u32 s51, s50, %d" % (nt * 20480 + p * 1024))
                a("s_add_u32 m0, s56, %d" % ((nt - 2) * 5120 + p * 1024))
                a("s_nop 0")
                vm_issue("WOL", "buffer_load_dwordx4 v2, s[36:39], s51 offen lds")
        a("v_add_u32 v14, s56, v2")
        zero_RAW()
        if PRE_WO: owed_barriers()
        poll_flags(a, "P2_A_POLL1", 7, 8, 0x600)
        stamp(a, 9, 15)
        issue_G(); issue_PQ()
        a("v_add_u32 v7, 0x%x, v3" % (FL_OFF + 1024))
        poll_flags(a, "P2_A_POLL2", 7, 8, (1 << 64) - 1)
        del vmq[:]
        stamp(a, 8, 15)
        issue_Z(); issue_KV()
    else:
        issue_Z(); issue_G(); issue_PQ()
        zero_RAW()
        issue_KV()
        wo_loads(0); wo_loads(1)
    stamp(a, 2, 15)
    a("s_lshl_b32 s55, s27, 11")
    a("s_add_u32 s55, s55, %d" % K2_TAB)
    a("v_add_u32 v9, s52, v2")
    a("v_lshlrev_b32 v10, 5, v4")
    a("v_add_u32 v10, s55, v10")
    a("v_lshl_add_u32 v8, v5, 4, v10")
    for gb in (1, 2, 3):
        a("v_cmp_le_u32 vcc, %d, v5" % gb)
        a("s_nop 1")
        a("v_cndmask_b32 v%d, 0, 4, vcc" % (10 + gb))
        a("v_add_u32 v%d, v10, v%d" % (10 + gb, 10 + gb))
    ZF = 160
    vm_need("Z")
    for sx in range(5):
        r0 = KVA + sx * 8
        o = ZF + sx * 4
        a("v_cvt_pk_bf16_f32 v%d, v%d, v%d" % (o, r0, r0 + 1))
        a("v_cvt_pk_bf16_f32 v%d, v%d, v%d" % (o + 1, r0 + 2, r0 + 3))
        a("v_cvt_pk_bf16_f32 v%d, v%d, v%d" % (o + 2, r0 + 4, r0 + 5))
        a("v_cvt_pk_bf16_f32 v%d, v%d, v%d" % (o + 3, r0 + 6, r0 + 7))
        for ab in range(2):
            m = 0
            for l in range(64):
                if (32 * sx + 16 * ab + 4 * (l >> 4)) // 20 == (l & 15): m |= 1 << l
            a("s_mov_b32 s56, 0x%x" % (m & 0xffffffff))
            a("s_mov_b32 s57, 0x%x" % (m >> 32))
            a("v_cndmask_b32 v%d, 0, v%d, s[56:57]" % (o + 2 * ab, o + 2 * ab))
            a("v_cndmask_b32 v%d, 0, v%d, s[56:57]" % (o + 2 * ab + 1, o + 2 * ab + 1))
    PB = [120, 140]; DEN = 232; SC = 180
    vm_need("PQ")
    def pq_reads(rt, b):
        return ["ds_read_b128 v[%d:%d], v9 offset:%d" % (b + sx * 4, b + sx * 4 + 3, (rt * 5 + sx) * 1024) for sx in range(5)]
    for t in pq_reads(0, PB[0]) + pq_reads(1, PB[1]): a(t)
    for rt in range(4):
        b = PB[rt % 2]
        a("s_waitcnt lgkmcnt(%d)" % (5 if rt < 3 else 0))
        for sx in range(5):
            c = DEN + rt * 4
            a("v_mfma_f32_16x16x32_bf16 v[%d:%d], v[%d:%d], v[%d:%d], %s" % (c, c + 3, ZF + sx * 4, ZF + sx * 4 + 3, b + sx * 4, b + sx * 4 + 3, "0" if sx == 0 else "v[%d:%d]" % (c, c + 3)))
        if rt + 2 < 4:
            for t in pq_reads(rt + 2, b): a(t)
    for t in pq_reads(0, PB[0]) + pq_reads(1, PB[1]): a(t)
    vm_need("G")
    a("s_mov_b32 s56, 0x%x" % EPS6)
    for rt in range(4):
        for r in range(4): a("v_add_f32 v%d, s56, v%d" % (DEN + rt * 4 + r, DEN + rt * 4 + r))
    for rt in range(4):
        for r in range(4): a("v_rcp_f32 v%d, v%d" % (DEN + rt * 4 + r, DEN + rt * 4 + r))
    a("s_nop 0")
    for rt in range(4):
        for r in range(4): a("v_mul_f32 v%d, v%d, v%d" % (DEN + rt * 4 + r, GV + rt, DEN + rt * 4 + r))
    a("s_mov_b32 exec_lo, -1")
    a("s_mov_b32 exec_hi, 0")
    for rt in range(4):
        a("ds_write_b128 v8, v[%d:%d] offset:%d" % (DEN + rt * 4, DEN + rt * 4 + 3, rt * 512))
    a("s_mov_b64 exec, -1")
    a("s_waitcnt lgkmcnt(0)")
    def sc_reads(rt, base):
        out = []
        for sx in range(5):
            for ab in range(2):
                hs = [(32 * sx + 16 * ab + 4 * g) // 20 for g in range(4)]
                h0 = hs[0]
                gb = next((g for g in range(4) if hs[g] > h0), None)
                areg = 10 if gb is None else 10 + gb
                out.append("ds_read_b32 v%d, v%d offset:%d" % (base + sx * 2 + ab, areg, rt * 512 + h0 * 4))
        return out
    SCB = [180, 232]
    TMP = [190, 242, 244, 246]
    for t in sc_reads(0, SCB[0]) + sc_reads(1, SCB[1]): a(t)
    for rt in range(4):
        b = PB[rt % 2]; sc0 = SCB[rt % 2]
        a("s_waitcnt lgkmcnt(%d)" % (10 if rt == 0 else (15 if rt < 3 else 5)))
        if rt >= 1:
            pass
        n = 0
        for sx in range(5):
            for x in range(4):
                r = b + sx * 4 + x; sc = sc0 + sx * 2 + (x // 2)
                t = TMP[n % 4]; n += 1
                a("v_lshlrev_b32 v%d, 16, v%d" % (t, r))
                a("v_and_b32 v%d, 0xffff0000, v%d" % (t + 1, r))
                a("v_mul_f32 v%d, v%d, v%d" % (t, sc, t))
                a("v_mul_f32 v%d, v%d, v%d" % (t + 1, sc, t + 1))
                a("v_cvt_pk_bf16_f32 v%d, v%d, v%d" % (r, t, t + 1))
        for sx in range(5):
            a("ds_write_b128 v9, v[%d:%d] offset:%d" % (b + sx * 4, b + sx * 4 + 3, (rt * 5 + sx) * 1024))
        if rt + 2 < 4:
            for t in pq_reads(rt + 2, b) + sc_reads(rt + 2, sc0): a(t)
    stamp(a, 5, 15)
    vm_need("KV")
    def ktile(DTl, ET):
        par = DTl // 5
        if ET // 5 != par: return None
        key = (DTl % 5, ET % 5)
        if key not in TRI: return None
        return RAW + (par * 13 + TRI.index(key)) * 4
    frags = []
    for DTl in range(10):
        for p in range(5):
            if ktile(DTl, 2 * p) is not None or ktile(DTl, 2 * p + 1) is not None:
                frags.append((DTl, p))
    assert len(frags) == 18
    a("s_waitcnt lgkmcnt(0)")
    for fi, (DTl, p) in enumerate(frags):
        o = KVA + fi * 4
        for half in range(2):
            t = ktile(DTl, 2 * p + half)
            if t is None:
                a("v_mov_b32 v%d, 0" % (o + 2 * half)); a("v_mov_b32 v%d, 0" % (o + 2 * half + 1))
            else:
                a("v_cvt_pk_bf16_f32 v%d, v%d, v%d" % (o + 2 * half, t, t + 1))
                a("v_cvt_pk_bf16_f32 v%d, v%d, v%d" % (o + 2 * half + 1, t + 2, t + 3))
    stamp(a, 1, 15)
    dset = 0
    pend = []
    def conv(item):
        d, nt, sx = item
        o = MF + (sx * 5 + nt) * 4
        a("v_cvt_pk_bf16_f32 v%d, v%d, v%d" % (o, d, d + 1))
        a("v_cvt_pk_bf16_f32 v%d, v%d, v%d" % (o + 1, d + 2, d + 3))
        a("v_cvt_pk_bf16_f32 v%d, v%d, v%d" % (o + 2, d + 4, d + 5))
        a("v_cvt_pk_bf16_f32 v%d, v%d, v%d" % (o + 3, d + 6, d + 7))
    a("s_nop 1")
    for nt in range(5):
        vm_need("WO%d" % nt)
        if FUSED and nt >= 2:
            a("s_waitcnt lgkmcnt(%d)" % (5 if nt < 4 else 0))
            if nt == 4: a("s_barrier")
        for sx in range(5):
            d = DT + (dset % 3) * 8
            dset += 1
            for half in range(2):
                DTl = 2 * sx + half
                first = True
                for fi, (D_, p) in enumerate(frags):
                    if D_ != DTl: continue
                    A_ = KVA + fi * 4; B_ = WO[nt % 2] + p * 4; c = d + half * 4
                    a("v_mfma_f32_16x16x32_bf16 v[%d:%d], v[%d:%d], v[%d:%d], %s" % (c, c + 3, A_, A_ + 3, B_, B_ + 3, "0" if first else "v[%d:%d]" % (c, c + 3)))
                    first = False
            pend.append((d, nt, sx))
            if len(pend) == 3:
                a("s_nop 1")
                conv(pend.pop(0))
        if nt + 2 <= 4:
            if FUSED:
                for p in range(5):
                    r = WO[nt % 2] + p * 4
                    a("ds_read_b128 v[%d:%d], v14 offset:%d" % (r, r + 3, nt * 5120 + p * 1024))
            else:
                wo_loads(nt + 2)
        if FUSED and nt == 2:
            pass
    ACC = 120; PQB = [200, 220]
    for t in pq_reads(0, PQB[0]): a(t)
    a("s_nop 7")
    while pend:
        conv(pend.pop(0))
    stamp(a, 3, 15)
    for rt in range(4):
        b = PQB[rt % 2]
        if rt < 3:
            for t in pq_reads(rt + 1, PQB[(rt + 1) % 2]): a(t)
        a("s_waitcnt lgkmcnt(%d)" % (5 if rt < 3 else 0))
        for sx in range(5):
            for nt in range(5):
                c = ACC + (rt * 5 + nt) * 4; m = MF + (sx * 5 + nt) * 4
                a("v_mfma_f32_16x16x32_bf16 v[%d:%d], v[%d:%d], v[%d:%d], %s" % (c, c + 3, m, m + 3, b + sx * 4, b + sx * 4 + 3, "0" if sx == 0 else "v[%d:%d]" % (c, c + 3)))
        if rt >= 1:
            for nt in range(5):
                c = ACC + ((rt - 1) * 5 + nt) * 4
                a("ds_write_b128 v9, v[%d:%d] offset:%d" % (c, c + 3, ((rt - 1) * 5 + nt) * 1024))
    a("s_nop 7")
    for nt in range(5):
        c = ACC + (15 + nt) * 4
        a("ds_write_b128 v9, v[%d:%d] offset:%d" % (c, c + 3, (15 + nt) * 1024))
    a("s_mul_i32 s50, s27, %d" % (17 * 1024))
    a("s_add_u32 s50, s50, %d" % K2_EX)
    a("v_add_u32 v7, s50, v2")
    a("s_mul_i32 s50, s27, %d" % (5 * 1024))
    a("v_add_u32 v9, s50, v2")
    a("s_add_u32 s50, s45, s27")
    a("s_mul_i32 s50, s50, %d" % (16 * 1280))
    a("s_mul_i32 s51, s46, 32")
    a("s_add_u32 s50, s50, s51")
    a("v_mul_u32_u24 v8, 1280, v4")
    a("v_lshl_add_u32 v8, v5, 3, v8")
    a("s_waitcnt lgkmcnt(0)")
    stamp(a, 4, 15)
    a("s_barrier")
    FINAL([3, 4], None)
    stamp_flush(a, 15, 14, 2, 26, 8)
    a.label("K2_END")
    a("s_endpgm")
    a.end_kernel(name, 256, 96)

def gen_k0(a, name):
    a.begin_kernel(name)
    a("s_cmp_ge_u32 s2, 8")
    a("s_cbranch_scc1 K0_END")
    a("s_load_dwordx16 s[4:19], s[0:1], 0")
    a("s_load_dwordx4 s[20:23], s[0:1], 64")
    a("s_load_dwordx2 s[24:25], s[0:1], 80")
    a("s_getpc_b64 s[90:91]")
    a.label("K0_PC")
    a("s_sub_u32 s90, s90, K0_PC-k1_kernel")
    a("s_subb_u32 s91, s91, 0")
    a("v_lshlrev_b32 v3, 7, v0")
    for i in range(6):
        a("v_min_u32 v5, K2_END-k1_kernel-4, v3")
        a("global_load_dword v4, v5, s[90:91]")
        a("v_add_u32 v3, 8192, v3")
    a("v_min_u32 v10, 15, v0")
    a("v_lshlrev_b32 v10, 20, v10")
    a("s_waitcnt lgkmcnt(0)")
    for (lo, size) in ((4, S * D * 2), (6, D * 3 * D * 2), (8, D * D * 2), (12, D * F * 2), (14, D * F * 2), (16, F * D * 2), (18, D * 2), (20, S * D * 2), (22, 256), (24, WS_SIZE)):
        srd(a, 28, lo, lo + 1, size)
        a("buffer_load_dword v4, v10, s[28:31], 0 offen")
    a("s_waitcnt vmcnt(0)")
    a.label("K0_END")
    a("s_endpgm")
    a.end_kernel(name, 16, 96)

HDR = """; Kernarg layout for this problem (88 bytes, ptrs only, base s[0:1]):
;   offset   0: d_in[0] A_x  shape=(1, 2048, 640) dtype=bfloat16 strides=(2621440, 1280, 2) contiguous=True
;   offset   8: d_in[1] A_wqkv  shape=(640, 1920) dtype=bfloat16 strides=(3840, 2) contiguous=True
;   offset  16: d_in[2] A_wo  shape=(640, 640) dtype=bfloat16 strides=(1280, 2) contiguous=True
;   offset  24: d_in[3] B_x  shape=(1, 2048, 640) dtype=bfloat16 strides=(2621440, 1280, 2) contiguous=True
;   offset  32: d_in[4] B_w_gate  shape=(640, 1728) dtype=bfloat16 strides=(3456, 2) contiguous=True
;   offset  40: d_in[5] B_w_up  shape=(640, 1728) dtype=bfloat16 strides=(3456, 2) contiguous=True
;   offset  48: d_in[6] B_w_down  shape=(1728, 640) dtype=bfloat16 strides=(1280, 2) contiguous=True
;   offset  56: d_in[7] gate_w  shape=(640,) dtype=bfloat16 strides=(2,) contiguous=True
;   k1: x @ [wqkv | w_gate | w_up] with fused epilogues (phi(q), h = sigmoid(g)*u, kv/z partial sums via atomics, gate)
;   k2: [h | phi(q)/den] @ [w_down ; blockdiag(kv) @ wo] with the gated mix
"""
if __name__ == "__main__":
    if len(sys.argv) > 1 and sys.argv[1] == "stamp": STAMP = True
    for o in sys.argv[3:]:
        k_, v_ = o.split("=")
        globals()[k_] = eval(v_)
    a = Asm()
    gen_k1(a, "k1_kernel", 32768)
    gen_k2(a, "k1_kernel" if FUSED else "k2_kernel", 32768)
    if WARMK: gen_k0(a, "k0_kernel")
    if FUSED:
        hdr = HDR + "; @launch kernel=k1_kernel grid=(256,1,1) block=(512,1,1) lds=%d" % max(K1_LDS, K2_LDS)
    else:
        hdr = HDR + ("; @launch kernel=k0_kernel grid=(8,1,1) block=(64,1,1) lds=0\n" if WARMK else "") + "; @launch kernel=k1_kernel grid=(256,1,1) block=(512,1,1) lds=%d\n" % K1_LDS
        hdr += "; @launch kernel=k2_kernel grid=(256,1,1) block=(512,1,1) lds=%d" % K2_LDS
    out = sys.argv[2] if len(sys.argv) > 2 else "k12.s"
    open(out, "w").write(a.text(hdr))
```

```python
import sys
from asmlib import Asm

S, D, F = 2048, 640, 1728
AF_OFF  = 0x0000000
BF_OFF  = 0x0A00000
WOF_OFF = 0x0D00000
KV_OFF  = 0x0E00000
Z_OFF   = KV_OFF + 4 * 26 * 1024
ZERO_BYTES = 109 * 1024
FL_OFF  = KV_OFF + 107 * 1024
G_OFF   = 0x0E40000
JUNK_OFF = 0x0F00000
WS_SIZE = 0x10000000
LOG2E = 0x3fb8aa3b
NLOG2E = 0xbfb8aa3b
EPS6 = 0x358637bd

def head(c): return c // 20

class LdsQ:
    def __init__(self, a):
        self.a = a; self.q = []
    def issue(self, tag, text):
        self.a(text); self.q.append(tag)
    def need(self, tags):
        idx = [i for i, t in enumerate(self.q) if t in tags]
        if not idx: return
        last = max(idx)
        n = len(self.q) - 1 - last
        assert n <= 15
        self.a("s_waitcnt lgkmcnt(%d)" % n)
        self.q = self.q[last + 1:]
    def drain(self):
        self.a("s_waitcnt lgkmcnt(0)"); self.q = []

B_SLOT, A_SLOT = 24576, 16384
A_BASE = 4 * B_SLOT
GW_BASE = A_BASE + 3 * A_SLOT
K1_LDS = GW_BASE + 2048

TRI = [(dt, et) for dt in range(5) for et in range(5) if abs(dt - et) <= 1 and
       any(head(16 * dt + x) == head(16 * et + y) for x in range(16) for y in range(16))]
assert len(TRI) == 13

def kv_tile_index(par, dt, et):
    return par * 13 + TRI.index((dt, et))

def srd(a, d, lo, hi, size):
    a("s_mov_b32 s%d, s%d" % (d, lo))
    a("s_mov_b32 s%d, s%d" % (d + 1, hi))
    a("s_mov_b32 s%d, 0x%x" % (d + 2, size))
    a("s_mov_b32 s%d, 0x00020000" % (d + 3))

def code_prefetch(a, label_start, label_end, nbytes, vtmp, vdst, stmp, swave):
    a("s_getpc_b64 s[%d:%d]" % (stmp, stmp + 1))
    here = a.newlabel("PC")
    a.label(here)
    a("s_sub_u32 s%d, s%d, %s-%s" % (stmp, stmp, here, label_start))
    a("s_subb_u32 s%d, s%d, 0" % (stmp + 1, stmp + 1))
    a("v_and_b32 v%d, 63, v0" % vtmp)
    a("v_lshlrev_b32 v%d, 7, v%d" % (vtmp, vtmp))
    a("s_lshl_b32 s%d, s%d, 13" % (stmp + 2, swave))
    a("v_add_u32 v%d, s%d, v%d" % (vtmp, stmp + 2, vtmp))
    n = (nbytes + 32767) // 32768
    for i in range(n):
        a("v_min_u32 v%d, %s-%s-4, v%d" % (vdst + 1, label_end, label_start, vtmp))
        a("global_load_dword v%d, v%d, s[%d:%d]" % (vdst, vdst + 1, stmp, stmp + 1))
        if i + 1 < n:
            a("v_add_u32 v%d, 32768, v%d" % (vtmp, vtmp))

TS_OFF = 0x0F80000
STAMP = False
def stamp(a, idx, v):
    if not STAMP: return
    a("s_memrealtime s[94:95]")
    a("s_waitcnt lgkmcnt(0)")
    a("v_writelane_b32 v%d, s94, %d" % (v, idx))
def stampc(a, idx, v):
    if not STAMP: return
    a("s_memtime s[94:95]")
    a("s_waitcnt lgkmcnt(0)")
    a("v_writelane_b32 v%d, s94, %d" % (v, idx))
TS_CUR = [0]
def stamp_flush(a, v, vt, swg, swave, nw, wsrd=36):
    if not STAMP: return
    a("s_waitcnt vmcnt(0)")
    stamp(a, 7, v)
    a("s_mul_i32 s94, s%d, %d" % (swg, nw))
    a("s_add_u32 s94, s94, s%d" % swave)
    a("s_lshl_b32 s94, s94, 7")
    a("s_add_u32 s94, s94, 0x%x" % (TS_OFF + TS_CUR[0]))
    a("s_mov_b32 exec_lo, -1")
    a("s_mov_b32 exec_hi, 0")
    a("v_and_b32 v%d, 63, v0" % vt)
    a("v_lshlrev_b32 v%d, 2, v%d" % (vt, vt))
    a("buffer_store_dword v%d, v%d, s[%d:%d], s94 offen" % (v, vt, wsrd, wsrd + 3))
    a("s_waitcnt vmcnt(0)")
    a("s_mov_b64 exec, -1")

def zero_check(a, lbl, vflag, vaddr):
    a("s_movk_i32 s85, 20000")
    a.label(lbl)
    a("s_waitcnt vmcnt(0)")
    a("v_readfirstlane_b32 s69, v%d" % vflag)
    a("s_cmp_ge_u32 s69, 128")
    a("s_cbranch_scc1 %s_OK" % lbl)
    a("s_sub_u32 s85, s85, 1")
    a("s_cmp_eq_u32 s85, 0")
    a("s_cbranch_scc1 %s_OK" % lbl)
    a("buffer_load_dword v%d, v%d, s[52:55], 0 offen sc0 sc1" % (vflag, vaddr))
    a("s_branch %s" % lbl)
    a.label(lbl + "_OK")

def set_flag(a, soff, lbl):
    a("s_cmp_eq_u32 s26, 0")
    a("s_cbranch_scc0 %s" % lbl)
    a("v_mov_b32 v9, 0")
    a("v_mov_b32 v10, 1")
    a("s_mov_b64 exec, 1")
    a("buffer_store_dword v10, v9, s[36:39], s%d offen sc0 sc1" % soff)
    a("s_mov_b64 exec, -1")
    a.label(lbl)

def poll_flags(a, lbl, voff, vdst, mask, sleep=None):
    a("s_mov_b32 s88, 0x%x" % (mask & 0xffffffff))
    a("s_mov_b32 s89, 0x%x" % (mask >> 32))
    a("s_movk_i32 s85, 20000")
    a.label(lbl)
    a("buffer_load_dword v%d, v%d, s[36:39], 0 offen sc0 sc1" % (vdst, voff))
    a("s_waitcnt vmcnt(0)")
    a("v_cmp_eq_u32 vcc, 1, v%d" % vdst)
    a("s_nop 3")
    a("s_and_b64 s[86:87], vcc, s[88:89]")
    a("s_cmp_eq_u64 s[86:87], s[88:89]")
    a("s_cbranch_scc1 %s_OK" % lbl)
    a("s_sub_u32 s85, s85, 1")
    a("s_cmp_eq_u32 s85, 0")
    a("s_cbranch_scc1 %s_OK" % lbl)
    a("s_sleep %d" % (sleep or POLL_SLEEP))
    a("s_branch %s" % lbl)
    a.label(lbl + "_OK")

PF_FLAGS = ""
L2PF = True
PF_DIST = 2
PKSCALE = True
FUSED_SIMPLE = True
POLL_SLEEP = 4
PRE_WO = True
FUSED = False
WARMK = False
OUT_FLAGS = ""
TLBWARM = False
GW_QONLY = True
B_FIRST = True
TLB_IT = 3
PF_K2CODE = True
PF_START = 0
PRETOUCH = False
K2_NOATT = False
KV_MASK = True
K2_ROT = False
K2_NOMFMA = False
K2_NOMLP = False
ATT_PRIO = 3
WO_LDS = False
ATT_PRIO3 = None
MLP_PRIO = 0
ATT_PRIO2 = None
ST_FLAGS = "sc0 sc1"
RAMP = 3
L2PF2 = False
def gen_k1(a, name, code_bytes):
    a.begin_kernel(name)
    a("s_cmp_ge_u32 s2, 256")
    a("s_cbranch_scc1 %s" % ("K2_END" if FUSED else "K1_END"))
    a("s_load_dwordx16 s[4:19], s[0:1], 0")
    a("s_load_dwordx4 s[20:23], s[0:1], 64")
    a("s_load_dwordx2 s[24:25], s[0:1], 80")
    a("v_lshrrev_b32 v2, 6, v0")
    a("v_and_b32 v1, 63, v0")
    a("v_readfirstlane_b32 s26, v2")
    a("s_and_b32 s40, s2, 7")
    a("s_lshr_b32 s41, s2, 3")
    a("s_and_b32 s42, s40, 1")
    a("s_lshl_b32 s42, s42, 3")
    a("s_and_b32 s43, s41, 7")
    a("s_add_u32 s42, s42, s43")
    a("s_lshr_b32 s43, s40, 1")
    a("s_lshl_b32 s43, s43, 2")
    a("s_lshr_b32 s44, s41, 3")
    a("s_add_u32 s43, s43, s44")
    def srds(sv):
        a("s_waitcnt lgkmcnt(0)")
        stamp(a, 0, sv)
        srd(a, 28, 4, 5, S * D * 2)
        srd(a, 36, 24, 25, WS_SIZE)
        srd(a, 48, 18, 19, D * 2)
        srd(a, 52, 22, 23, 256)
    a("s_cmp_eq_u32 s43, 15")
    a("s_cbranch_scc1 K1_PREP")
    a("s_cmp_lt_u32 s26, 4")
    a("s_cbranch_scc1 K1_COMPUTE")

    a.c("loader waves")
    a("s_sub_u32 s27, s26, 4")
    a("s_lshr_b32 s44, s27, 1")
    a("s_lshl_b32 s47, s27, 5")
    a("v_lshrrev_b32 v2, 3, v1")
    a("v_add_u32 v2, s47, v2")
    a("v_mul_u32_u24 v2, 1280, v2")
    a("v_lshrrev_b32 v3, 4, v1")
    a("v_and_b32 v5, 7, v1")
    a("v_xor_b32 v3, v3, v5")
    a("v_lshlrev_b32 v3, 4, v3")
    a("v_add_u32 v16, v2, v3")
    a("v_xor_b32 v3, 64, v3")
    a("v_add_u32 v17, v2, v3")
    a("v_add_u32 v17, 10240, v17")
    a("v_add_u32 v18, 20480, v16")
    a("v_add_u32 v19, 20480, v17")
    a("s_movk_i32 s45, 3456")
    a("s_mul_i32 s46, s43, 384")
    a("s_cmp_lt_u32 s43, 9")
    a("s_cbranch_scc1 K1_LD_GO")
    a("s_movk_i32 s45, 3840")
    a("s_sub_u32 s46, s43, 9")
    a("s_mul_i32 s46, s46, 320")
    a("s_mul_i32 s47, s44, 1280")
    a("s_add_u32 s46, s46, s47")
    a("s_add_u32 s46, s46, 1280")
    a("s_sub_u32 s47, s43, 13")
    a("s_lshl_b32 s47, s47, 1")
    a("s_add_u32 s47, s47, s44")
    a("s_mul_i32 s47, s47, 320")
    a("s_cmp_lt_u32 s43, 13")
    a("s_cselect_b32 s46, s46, s47")
    a("s_and_b32 s46, s46, 0xffffff80")
    a.label("K1_LD_GO")
    a("s_and_b32 s47, s27, 1")
    a("s_mul_i32 s47, s47, 384")
    a("s_mov_b32 s64, 2731")
    a("s_lshl_b32 s63, s45, 3")
    for c in range(768): assert (c * 2731) >> 16 == c // 24
    for i in range(3):
        a("v_add_u32 v2, s47, v1")
        if i: a("v_add_u32 v2, %d, v2" % (64 * i))
        a("v_mul_u32_u24 v3, s64, v2")
        a("v_lshrrev_b32 v3, 16, v3")
        a("v_mul_u32_u24 v5, 24, v3")
        a("v_sub_u32 v5, v2, v5")
        a("v_bfe_u32 v6, v3, 1, 1")
        a("v_lshrrev_b32 v7, 2, v3")
        a("v_and_or_b32 v6, v7, 2, v6")
        a("v_lshrrev_b32 v7, 1, v5")
        a("v_xor_b32 v7, v7, v6")
        a("v_lshlrev_b32 v7, 5, v7")
        a("v_and_b32 v5, 1, v5")
        a("v_lshl_add_u32 v7, v5, 4, v7")
        a("v_mul_lo_u32 v3, v3, s45")
        a("v_add_u32 v%d, v3, v7" % (10 + i))
        a("v_xor_b32 v7, 64, v7")
        a("v_add3_u32 v%d, v3, v7, s63" % (13 + i))
    a("s_mul_i32 s65, s42, %d" % (128 * 1280))
    a("s_lshl_b32 s66, s45, 5")
    a("s_mul_i32 s67, s27, 6144")
    a("s_lshl_b32 s68, s27, 12")
    a("s_add_u32 s68, s68, %d" % A_BASE)
    srds(20)
    srd(a, 32, 6, 7, D * 3 * D * 2)
    a("s_cmp_lt_u32 s43, 9")
    a("s_cbranch_scc0 K1_LD_GO2")
    a("s_cmp_eq_u32 s44, 0")
    a("s_cselect_b32 s32, s12, s14")
    a("s_cselect_b32 s33, s13, s15")
    a("s_mov_b32 s34, 0x%x" % (D * F * 2))
    a.label("K1_LD_GO2")
    issued = []
    def issueB(t):
        a("s_mul_i32 s69, s66, %d" % t)
        a("s_add_u32 s69, s69, s46")
        for i in range(6):
            a("s_add_u32 m0, s67, %d" % ((t % 4) * B_SLOT + i * 1024))
            a("s_nop 0")
            a("buffer_load_dwordx4 v%d, s[32:35], s69 offen lds" % (10 + i))
            issued.append(("B", t))
    def issueA(T):
        a("s_add_u32 s70, s65, %d" % (T * 128))
        for i in range(4):
            a("s_add_u32 m0, s68, %d" % ((T % 3) * A_SLOT + i * 1024))
            a("s_nop 0")
            a("buffer_load_dwordx4 v%d, s[28:31], s70 offen lds" % (16 + i))
            issued.append(("A", T))
    stamp(a, 2, 20)
    if GW_QONLY:
        a("s_cmp_lt_u32 s43, 13")
        a("s_cbranch_scc1 K1_LD_NGW")
    a("v_lshlrev_b32 v2, 4, v1")
    a("s_mov_b32 m0, %d" % GW_BASE)
    a("v_add_u32 v3, 1024, v2")
    a("buffer_load_dwordx4 v2, s[48:51], 0 offen lds")
    a("s_mov_b32 m0, %d" % (GW_BASE + 1024))
    a("s_nop 0")
    a("buffer_load_dwordx4 v3, s[48:51], 0 offen lds")
    a.label("K1_LD_NGW")
    stamp(a, 8, 20)
    if B_FIRST:
        issueB(0); issueA(0)
    else:
        issueA(0); issueB(0)
    stamp(a, 10, 20)
    issueB(1)
    stamp(a, 11, 20)
    nextB, nextA = 2, 1
    if RAMP == 2:
        issueA(1)
        nextA = 2
    elif RAMP == 3:
        issueA(1); issueB(2)
        nextB, nextA = 3, 2
    elif not RAMP:
        issueA(1); issueB(2); issueB(3); issueA(2)
        nextB, nextA = 4, 3
    code_prefetch(a, name, "K2_END" if (PF_K2CODE or FUSED) else "K1_END", 65536 if (PF_K2CODE or FUSED) else code_bytes, 3, 4, 90, 27)
    issued.append(("P", 0))
    if PF_K2CODE or FUSED: issued.append(("P", 0))
    stamp(a, 3, 20)
    for t in range(21):
        if t <= 19:
            last = max(i for i, x in enumerate(issued) if x == ("B", t) or x == ("A", t // 2))
            n = len(issued) - 1 - last
            a("s_waitcnt vmcnt(%d)" % n)
        a("s_barrier")
        if t == 0: stamp(a, 1, 20)
        while nextA <= 9 and nextA - 3 <= t // 2 - 1 and nextA <= t // 2 + 2 and (nextA * 2 <= nextB + 1 or nextB > 19):
            issueA(nextA); nextA += 1
        while nextB <= 19 and nextB - 4 <= t - 1 and not (RAMP in (2, 3) and t == 0 and nextB > RAMP):
            issueB(nextB); nextB += 1
            while nextA <= 9 and nextA - 3 <= t // 2 - 1 and nextA * 2 <= nextB:
                issueA(nextA); nextA += 1
    assert nextA == 10 and nextB == 20
    if PRETOUCH:
        a("v_mov_b32 v2, 4")
        a("buffer_load_dword v3, v2, s[52:55], 0 offen sc0 sc1")
        a("s_and_b32 s71, s2, 7")
        a("s_lshr_b32 s71, s71, 2")
        a("s_waitcnt vmcnt(0)")
        a("v_readfirstlane_b32 s72, v3")
        a("s_cmp_lt_u32 s41, 24")
        a("s_cbranch_scc0 K1_LD_END")
        a("s_cmp_eq_u32 s72, 128")
        a("s_cbranch_scc0 K1_LD_END")
        a("s_lshl_b32 s73, s41, 2")
        a("s_add_u32 s73, s73, s27")
        a("v_lshlrev_b32 v2, 7, v1")
        a("s_mul_i32 s74, s71, %d" % (20 * 54 * 1024))
        a("s_mul_i32 s75, s73, %d" % (90 * 128))
        a("s_add_u32 s74, s74, s75")
        a("s_add_u32 s74, s74, 0x%x" % BF_OFF)
        a("buffer_load_dword v4, v2, s[36:39], s74 offen")
        a("v_min_u32 v3, 25, v1")
        a("v_lshlrev_b32 v3, 7, v3")
        a("s_add_u32 s74, s74, 8192")
        a("buffer_load_dword v4, v3, s[36:39], s74 offen")
        a("s_mul_i32 s74, s71, %d" % (20 * 20 * 1024))
        a("s_mul_i32 s75, s73, %d" % (34 * 128))
        a("s_min_u32 s75, s75, %d" % ((3200 - 34) * 128))
        a("s_add_u32 s74, s74, s75")
        a("s_add_u32 s74, s74, 0x%x" % WOF_OFF)
        a("v_min_u32 v3, 33, v1")
        a("v_lshlrev_b32 v3, 7, v3")
        a("buffer_load_dword v4, v3, s[36:39], s74 offen")
        a.label("K1_LD_END")
    stamp_flush(a, 20, 21, 2, 26, 8)
    if FUSED:
        a("s_mov_b32 s83, 1")
        a("s_cmp_lt_u32 s43, 9")
        a("s_cbranch_scc1 P2_ENTRY")
        a("s_cmp_lt_u32 s43, 13")
        a("s_cbranch_scc0 P2_ENTRY")
        a("s_barrier")
        a("s_barrier")
        a("s_branch P2_ENTRY")
    else:
        a("s_endpgm")

    a.label("K1_COMPUTE")
    a("s_lshr_b32 s44, s26, 1")
    a("s_and_b32 s45, s26, 1")
    a("s_cmp_lt_u32 s43, 9")
    a("s_cbranch_scc0 K1_C_QKV")
    a("s_mul_i32 s46, s45, 6")
    a("s_mov_b32 s47, 0")
    a("s_branch K1_C_GO")
    a.label("K1_C_QKV")
    a("s_cmp_lt_u32 s43, 13")
    a("s_cbranch_scc0 K1_C_Q")
    a("s_sub_u32 s46, s43, 9")
    a("s_and_b32 s46, s46, 1")
    a("s_lshl_b32 s46, s46, 1")
    a("s_mul_i32 s47, s45, 5")
    a("s_add_u32 s46, s46, s47")
    a("s_mov_b32 s47, 0")
    a("s_branch K1_C_GO")
    a.label("K1_C_Q")
    a("s_lshl_b32 s46, s45, 1")
    a("s_mul_i32 s47, s45, 12288")
    a.label("K1_C_GO")
    VA, VB = 2, 4
    a("v_and_b32 v8, 15, v1")
    a("v_lshrrev_b32 v9, 4, v1")
    a("s_lshl_b32 s64, s44, 13")
    a("s_add_u32 s64, s64, %d" % A_BASE)
    a("v_lshrrev_b32 v10, 1, v8")
    a("v_xor_b32 v11, v9, v10")
    a("v_lshlrev_b32 v11, 4, v11")
    a("v_lshl_add_u32 v11, v8, 7, v11")
    a("v_add_u32 v2, s64, v11")
    a("v_xor_b32 v3, 64, v2")
    a("v_lshrrev_b32 v10, 2, v8")
    a("v_lshl_add_u32 v11, v9, 3, v10")
    a("v_mul_u32_u24 v11, 384, v11")
    a("v_and_b32 v12, 3, v1")
    a("v_lshl_add_u32 v11, v12, 3, v11")
    a("v_add_u32 v11, s47, v11")
    a("v_lshrrev_b32 v12, 1, v10")
    a("v_and_b32 v13, 1, v9")
    a("v_lshl_or_b32 v12, v13, 1, v12")
    for jp in range(4):
        a("s_add_u32 s64, s46, %d" % jp)
        a("s_and_b32 s65, s64, 3")
        a("s_lshr_b32 s64, s64, 2")
        a("s_lshl_b32 s64, s64, 7")
        a("v_xor_b32 v13, s65, v12")
        a("v_lshl_add_u32 v13, v13, 5, v11")
        a("v_add_u32 v%d, s64, v13" % (VB + jp))
    def pf_setup():
        a("s_and_b32 s76, s26, 1")
        a("s_movk_i32 s77, 3456")
        a("s_mul_i32 s78, s43, 384")
        srd(a, 32, 6, 7, D * 3 * D * 2)
        a("s_cmp_lt_u32 s43, 9")
        a("s_cbranch_scc0 K1_PF_QKV")
        a("s_cmp_eq_u32 s76, 0")
        a("s_cselect_b32 s32, s12, s14")
        a("s_cselect_b32 s33, s13, s15")
        a("s_mov_b32 s34, 0x%x" % (D * F * 2))
        a("s_branch K1_PF_GO")
        a.label("K1_PF_QKV")
        a("s_movk_i32 s77, 3840")
        a("s_sub_u32 s78, s43, 9")
        a("s_mul_i32 s78, s78, 320")
        a("s_mul_i32 s79, s76, 1280")
        a("s_add_u32 s78, s78, s79")
        a("s_add_u32 s78, s78, 1280")
        a("s_sub_u32 s79, s43, 13")
        a("s_lshl_b32 s79, s79, 1")
        a("s_add_u32 s79, s79, s76")
        a("s_mul_i32 s79, s79, 320")
        a("s_cmp_lt_u32 s43, 13")
        a("s_cselect_b32 s78, s78, s79")
        a("s_and_b32 s78, s78, 0xffffff80")
        a.label("K1_PF_GO")
        a("v_min_u32 v10, 23, v1")
        a("v_mul_u32_u24 v11, 0x5556, v10")
        a("v_lshrrev_b32 v11, 16, v11")
        a("v_mul_u32_u24 v12, 3, v11")
        a("v_sub_u32 v12, v10, v12")
        a("s_and_b32 s80, s41, 7")
        a("s_lshl_b32 s80, s80, 3")
        a("v_add_u32 v11, s80, v11")
        a("v_mul_lo_u32 v11, v11, s77")
        a("v_lshl_add_u32 v12, v12, 7, v11")
        a("s_lshl_b32 s79, s77, 6")
        a("s_cmp_lt_u32 s26, 2")
        a("s_cbranch_scc1 K1_PF_W")
        a("s_lshr_b32 s80, s41, 3")
        a("s_lshl_b32 s80, s80, 5")
        a("s_lshl_b32 s81, s76, 4")
        a("s_add_u32 s80, s80, s81")
        a("v_min_u32 v10, 15, v1")
        a("v_add_u32 v10, s80, v10")
        a("v_mul_u32_u24 v12, 1280, v10")
        a("s_mul_i32 s78, s42, %d" % (128 * 1280))
        a("s_movk_i32 s79, 128")
        a("s_mov_b32 s32, s4")
        a("s_mov_b32 s33, s5")
        a("s_mov_b32 s34, 0x%x" % (S * D * 2))
        a.label("K1_PF_W")
        if PF_START:
            a("s_mul_i32 s80, s79, %d" % PF_START)
            a("s_add_u32 s78, s78, s80")
        for _ in range(PF_DIST - PF_START): pf_issue()
    def pf_issue():
        a("buffer_load_dword v13, v12, s[32:35], s78 offen %s" % PF_FLAGS)
        a("s_add_u32 s78, s78, s79")
    srds(15)
    if L2PF: pf_setup()
    if TLBWARM:
        srd(a, 84, 20, 21, S * D * 2)
        a("v_min_u32 v11, 15, v1")
        a("v_lshlrev_b32 v11, 20, v11")
        a("s_cmp_eq_u32 s41, 0")
        a("s_cselect_b32 s82, 1, 0")
        a("s_cmp_eq_u32 s26, 3")
        a("s_cselect_b32 s82, s82, 0")
    for r in range(64, 256):
        a("v_mov_b32 v%d, 0" % r)
    a("s_mov_b32 s70, 0")
    a("s_mov_b32 s71, 10")
    a("s_mov_b32 s75, 49152")
    a("s_cmp_lt_u32 s43, 9")
    a("s_cbranch_scc1 K1_GU")
    a("s_cmp_lt_u32 s43, 13")
    a("s_cbranch_scc1 K1_KV")
    a("s_branch K1_Q")

    ABUF = [16, 32]
    BR = 48
    ACC = 64

    def mainloop(role):
        q = LdsQ(a)
        if role == "gu":
            frags = [(p, j) for j in range(6) for p in range(2)]
        elif role == "kv":
            frags = [(p, j) for j in range(5) for p in range(2)]
        else:
            frags = [(0, j) for j in range(10)]
        nB = len(frags)
        def accreg(fi, rt): return ACC + (fi * 4 + rt) * 4
        def readB(J, par):
            p, j = frags[J]
            slot = (par * nB + J) % 4
            out = []
            for h in range(2):
                off = (j >> 2) * 128 + h * 1536 + p * 12288 + par * B_SLOT
                r = BR + slot * 4 + h * 2
                out.append((("B", par, J), "ds_read_b64_tr_b16 v[%d:%d], v%d offset:%d" % (r, r + 1, VB + (j & 3), off)))
            return out
        def readA(par):
            out = []
            for rt in range(4):
                r = ABUF[par] + rt * 4
                out.append((("A", par, rt), "ds_read_b128 v[%d:%d], v%d offset:%d" % (r, r + 3, VA + par, rt * 2048)))
            if role == "q":
                out.append((("G", par), "ds_read_b128 v[%d:%d], v14 offset:%d" % (GW[par], GW[par] + 3, 64 * par)))
            return out
        def mfma(par, J, rt):
            slot = (par * nB + J) % 4
            b = BR + slot * 4; x = ABUF[par] + rt * 4; c = accreg(J, rt)
            if role == "kv":
                return "v_mfma_f32_16x16x32_bf16 v[%d:%d], v[%d:%d], v[%d:%d], v[%d:%d]" % (c, c + 3, x, x + 3, b, b + 3, c, c + 3)
            return "v_mfma_f32_16x16x32_bf16 v[%d:%d], v[%d:%d], v[%d:%d], v[%d:%d]" % (c, c + 3, b, b + 3, x, x + 3, c, c + 3)
        GW = [ACC + 176, ACC + 180]
        LOG = ACC + 160
        if role == "q":
            a("v_lshlrev_b32 v14, 4, v9")
            a("v_add_u32 v14, %d, v14" % GW_BASE)
        stamp(a, 2, 15)
        a("s_barrier")
        stamp(a, 1, 15)
        stampc(a, 5, 15)
        for tag, t in readA(0) + readB(0, 0) + readB(1, 0) + readB(2, 0):
            q.issue(tag, t)
        state0 = list(q.q)
        lbl = "K1_LOOP_" + role
        a.label(lbl)
        if STAMP:
            a("s_memrealtime s[94:95]")
            a("s_sub_u32 m0, 18, s71")
            a("s_waitcnt lgkmcnt(0)")
            a("v_writelane_b32 v15, s94, m0")
        if L2PF: pf_issue()
        if TLBWARM:
            a("s_cmp_eq_u32 s71, %d" % (10 - TLB_IT))
            a("s_cselect_b32 s83, s82, 0")
            a("s_cmp_eq_u32 s83, 1")
            a("s_cbranch_scc0 %s_NT" % lbl)
            a("buffer_load_dword v13, v11, s[36:39], 0 offen")
            a("buffer_load_dword v13, v11, s[84:87], 0 offen")
            a.label(lbl + "_NT")
        for par in range(2):
            for J in range(nB):
                reads = []
                pre = []
                if J + 3 <= nB - 1:
                    reads = readB(J + 3, par)
                if J == nB - 2:
                    if role == "q":
                        for rt in range(4):
                            x = ABUF[par] + rt * 4; c = LOG + rt * 4
                            a("v_mfma_f32_16x16x32_bf16 v[%d:%d], v[%d:%d], v[%d:%d], v[%d:%d]" % (c, c + 3, GW[par], GW[par] + 3, x, x + 3, c, c + 3))
                    q.drain()
                    a("s_barrier")
                    if par == 1:
                        for jp in range(4):
                            a("v_add_u32 v%d, s75, v%d" % (VB + jp, VB + jp))
                        a("s_sub_u32 s75, 0, s75")
                        a("s_add_u32 s70, s70, 16384")
                        a("s_cmp_eq_u32 s70, 49152")
                        a("s_cselect_b32 s73, s70, 0")
                        a("s_sub_u32 s70, s70, s73")
                        a("s_sub_u32 s73, 16384, s73")
                        a("v_add_u32 v2, s73, v2")
                        a("v_add_u32 v3, s73, v3")
                        if role == "q": a("v_add_u32 v14, 128, v14")
                    reads = readA(1 - par) + readB(0, 1 - par) + readB(1, 1 - par)
                if J == nB - 1:
                    reads = readB(2, 1 - par)
                q.need([("B", par, J)] + ([("A", par, 0)] if J == 0 else []))
                for rt in range(4):
                    if J == 0 and rt > 0: q.need([("A", par, rt)])
                    a(mfma(par, J, rt))
                    k = (len(reads) + (3 - rt)) // (4 - rt) if reads else 0
                    for _ in range(k):
                        tag, t = reads.pop(0); q.issue(tag, t)
                assert not reads
        a("s_sub_u32 s71, s71, 1")
        a("s_cmp_lg_u32 s71, 0")
        a("s_cbranch_scc1 %s" % lbl)
        assert q.q == state0, (q.q, state0)
        a("s_waitcnt lgkmcnt(0) vmcnt(0)")
        a("s_nop 7")
        stamp(a, 3, 15)
        stampc(a, 6, 15)
        return accreg

    a.label("K1_GU")
    accreg = mainloop("gu")
    if FUSED:
        a("v_mov_b32 v9, 0")
        a("buffer_load_dword v10, v9, s[52:55], 0 offen sc0 sc1")
    a("s_mov_b32 s64, 0x%x" % NLOG2E); a("s_mov_b32 s65, 0x%x" % NLOG2E)
    a("s_mov_b32 s66, 1.0"); a("s_mov_b32 s67, 1.0")
    a("s_lshl_b32 s68, s42, 3")
    a("s_lshl_b32 s69, s44, 2")
    a("s_add_u32 s68, s68, s69")
    a("s_mul_i32 s68, s68, 74")
    a("s_mul_i32 s69, s43, 6")
    a("s_add_u32 s68, s68, s69")
    a("s_mul_i32 s69, s45, 3")
    a("s_add_u32 s68, s68, s69")
    a("s_lshl_b32 s68, s68, 10")
    if AF_OFF: a("s_add_u32 s68, s68, 0x%x" % AF_OFF)
    a("v_lshlrev_b32 v8, 4, v1")
    blk = 0
    for rt in range(4):
        for jp in range(3):
            T = 16 + (blk % 2) * 16
            O = T + 8
            for half in range(2):
                j = 2 * jp + half
                gq = accreg(j * 2 + 0, rt); uq = accreg(j * 2 + 1, rt)
                for e in range(0, 4, 2):
                    t = T + half * 4 + e
                    a("v_pk_mul_f32 v[%d:%d], v[%d:%d], s[64:65]" % (t, t + 1, gq + e, gq + e + 1))
            for x in range(8): a("v_exp_f32 v%d, v%d" % (T + x, T + x))
            for x in range(0, 8, 2): a("v_pk_add_f32 v[%d:%d], v[%d:%d], s[66:67]" % (T + x, T + x + 1, T + x, T + x + 1))
            for x in range(8): a("v_rcp_f32 v%d, v%d" % (T + x, T + x))
            for half in range(2):
                j = 2 * jp + half
                uq = accreg(j * 2 + 1, rt)
                for e in range(0, 4, 2):
                    t = T + half * 4 + e
                    a("v_pk_mul_f32 v[%d:%d], v[%d:%d], v[%d:%d]" % (t, t + 1, t, t + 1, uq + e, uq + e + 1))
            for x in range(4):
                a("v_cvt_pk_bf16_f32 v%d, v%d, v%d" % (O + x, T + 2 * x, T + 2 * x + 1))
            a("s_add_u32 s69, s68, %d" % ((rt * 74 + jp) * 1024))
            a("buffer_store_dwordx4 v[%d:%d], v8, s[36:39], s69 offen %s" % (O, O + 3, ST_FLAGS))
            blk += 1
    stamp_flush(a, 15, 14, 2, 26, 8)
    if FUSED:
        zero_check(a, "K1_GU_ZC", 10, 9)
        a("s_barrier")
        a("s_lshl_b32 s68, s42, 6")
        a("s_lshl_b32 s69, s43, 2")
        a("s_add_u32 s68, s68, s69")
        a("s_add_u32 s68, s68, 0x%x" % FL_OFF)
        set_flag(a, 68, "K1_GU_F")
        a("s_mov_b32 s83, 0")
        a("s_mov_b32 s82, 0")
        a("s_branch P2_ENTRY")
    else:
        a("s_endpgm")

    a.label("K1_Q")
    accreg = mainloop("q")
    if FUSED:
        a("v_mov_b32 v12, 0")
        a("buffer_load_dword v13, v12, s[52:55], 0 offen sc0 sc1")
    a("s_mov_b32 s64, 0x%x" % LOG2E); a("s_mov_b32 s65, 0x%x" % LOG2E)
    a("s_mov_b32 s66, 0x%x" % EPS6); a("s_mov_b32 s67, 0x%x" % EPS6)
    a("s_lshl_b32 s68, s42, 3")
    a("s_lshl_b32 s69, s44, 2")
    a("s_add_u32 s68, s68, s69")
    a("s_lshl_b32 s74, s68, 6")
    a("s_mul_i32 s68, s68, 74")
    a("s_sub_u32 s69, s43, 13")
    a("s_mul_i32 s69, s69, 10")
    a("s_add_u32 s68, s68, s69")
    a("s_mul_i32 s69, s45, 5")
    a("s_add_u32 s68, s68, s69")
    a("s_add_u32 s68, s68, 54")
    a("s_lshl_b32 s68, s68, 10")
    if AF_OFF: a("s_add_u32 s68, s68, 0x%x" % AF_OFF)
    a("v_lshlrev_b32 v8, 4, v1")
    def phi_pairs(srcs, T):
        n = len(srcs)
        U = T + 2 * n
        for x, s in enumerate(srcs):
            a("v_pk_mul_f32 v[%d:%d], v[%d:%d], s[64:65]" % (T + 2 * x, T + 2 * x + 1, s, s + 1))
        for x in range(2 * n):
            a("v_exp_f32 v%d, v%d clamp" % (T + x, T + x))
        for x, s in enumerate(srcs):
            a("v_max_f32 v%d, 0, v%d" % (U + 2 * x, s))
            a("v_max_f32 v%d, 0, v%d" % (U + 2 * x + 1, s + 1))
        for x in range(n):
            a("v_pk_add_f32 v[%d:%d], v[%d:%d], v[%d:%d]" % (T + 2 * x, T + 2 * x + 1, T + 2 * x, T + 2 * x + 1, U + 2 * x, U + 2 * x + 1))
        for x in range(n):
            a("v_pk_add_f32 v[%d:%d], v[%d:%d], s[66:67]" % (T + 2 * x, T + 2 * x + 1, T + 2 * x, T + 2 * x + 1))
    blk = 0
    for rt in range(4):
        for jp in range(5):
            T = 16 + (blk % 2) * 20
            O = T + 16
            srcs = [accreg(2 * jp + half, rt) + e for half in range(2) for e in (0, 2)]
            phi_pairs(srcs, T)
            for x in range(4):
                a("v_cvt_pk_bf16_f32 v%d, v%d, v%d" % (O + x, T + 2 * x, T + 2 * x + 1))
            a("s_add_u32 s69, s68, %d" % ((rt * 74 + jp) * 1024))
            a("buffer_store_dwordx4 v[%d:%d], v8, s[36:39], s69 offen %s" % (O, O + 3, ST_FLAGS))
            blk += 1
    a("s_cmp_eq_u32 s43, 13")
    a("s_cbranch_scc0 K1_Q_END")
    a("s_cmp_eq_u32 s45, 0")
    a("s_cbranch_scc0 K1_Q_END")
    a("v_cmp_gt_u32 vcc, 16, v1")
    a("s_and_saveexec_b64 s[76:77], vcc")
    a("v_lshlrev_b32 v9, 2, v1")
    a("s_mov_b32 s64, 0x%x" % NLOG2E)
    a("s_add_u32 s74, s74, 0x%x" % G_OFF)
    for rt in range(4):
        c = ACC + 160 + rt * 4
        a("v_mul_f32 v%d, s64, v%d" % (16 + rt, c))
    for rt in range(4): a("v_exp_f32 v%d, v%d" % (16 + rt, 16 + rt))
    a("s_nop 0")
    for rt in range(4): a("v_add_f32 v%d, 1.0, v%d" % (16 + rt, 16 + rt))
    for rt in range(4): a("v_rcp_f32 v%d, v%d" % (16 + rt, 16 + rt))
    a("s_nop 0")
    for rt in range(4):
        a("buffer_store_dword v%d, v9, s[36:39], s74 offen offset:%d %s" % (16 + rt, rt * 64, ST_FLAGS))
    a.label("K1_Q_END")
    a("s_mov_b64 exec, -1")
    stamp_flush(a, 15, 14, 2, 26, 8)
    if FUSED:
        zero_check(a, "K1_Q_ZC", 13, 12)
        a("s_barrier")
        a("s_lshl_b32 s68, s42, 6")
        a("s_sub_u32 s69, s43, 4")
        a("s_lshl_b32 s69, s69, 2")
        a("s_add_u32 s68, s68, s69")
        a("s_add_u32 s68, s68, 0x%x" % FL_OFF)
        set_flag(a, 68, "K1_Q_F")
        a("s_mov_b32 s83, 0")
        a("s_mov_b32 s82, 0")
        a("s_branch P2_ENTRY")
    else:
        a("s_endpgm")

    a.label("K1_KV")
    accreg = mainloop("kv")
    a("v_mov_b32 v9, 0")
    a("buffer_load_dword v10, v9, s[52:55], 0 offen sc0 sc1")
    a("s_mov_b32 s64, 0x%x" % LOG2E); a("s_mov_b32 s65, 0x%x" % LOG2E)
    a("s_mov_b32 s66, 0x%x" % EPS6); a("s_mov_b32 s67, 0x%x" % EPS6)
    def fragreg(p, rp, j): return accreg(j * 2 + p, 2 * rp)
    res = [accreg(fi, 1) for fi in range(10)] + [ACC + 160 + 4 * x for x in range(8)]
    ONES = 48
    for x in range(4): a("v_mov_b32 v%d, 0x3f803f80" % (ONES + x))
    def conv_ops(rp):
        global_lines = a.lines
        a.lines = []
        blk = 0
        for j in range(5):
            T = 16 + (blk % 2) * 16
            srcs = [accreg(j * 2, 2 * rp + half) + e for half in range(2) for e in (0, 2)]
            phi_pairs(srcs, T)
            o = fragreg(0, rp, j)
            for x in range(4):
                a("v_cvt_pk_bf16_f32 v%d, v%d, v%d" % (o + x, T + 2 * x, T + 2 * x + 1))
            s0 = accreg(j * 2 + 1, 2 * rp); s1 = accreg(j * 2 + 1, 2 * rp + 1)
            a("v_cvt_pk_bf16_f32 v%d, v%d, v%d" % (s0, s0, s0 + 1))
            a("v_cvt_pk_bf16_f32 v%d, v%d, v%d" % (s0 + 1, s0 + 2, s0 + 3))
            a("v_cvt_pk_bf16_f32 v%d, v%d, v%d" % (s0 + 2, s1, s1 + 1))
            a("v_cvt_pk_bf16_f32 v%d, v%d, v%d" % (s0 + 3, s1 + 2, s1 + 3))
            blk += 1
        out = a.lines
        a.lines = global_lines
        return [l.strip() for l in out]
    def kv_mfmas(rp):
        out = []
        for ti, (dt, et) in enumerate(TRI):
            c = res[ti]
            A_ = fragreg(1, rp, et); B_ = fragreg(0, rp, dt)
            out.append("v_mfma_f32_16x16x32_bf16 v[%d:%d], v[%d:%d], v[%d:%d], %s" % (c, c + 3, A_, A_ + 3, B_, B_ + 3, "0" if rp == 0 else "v[%d:%d]" % (c, c + 3)))
        for dt in range(5):
            c = res[13 + dt]
            B_ = fragreg(0, rp, dt)
            out.append("v_mfma_f32_16x16x32_bf16 v[%d:%d], v[%d:%d], v[%d:%d], %s" % (c, c + 3, ONES, ONES + 3, B_, B_ + 3, "0" if rp == 0 else "v[%d:%d]" % (c, c + 3)))
        return out
    for t in conv_ops(0): a(t)
    a("s_nop 1")
    c1 = conv_ops(1); m0_ = kv_mfmas(0)
    per = len(c1) // len(m0_)
    for k_, m_ in enumerate(m0_):
        a(m_)
        for t in c1[k_ * per:(k_ + 1) * per]: a(t)
    for t in c1[len(m0_) * per:]: a(t)
    a("s_barrier")
    a("s_nop 0")
    for t in kv_mfmas(1): a(t)
    a("s_lshl_b32 s68, s45, 1")
    a("s_add_u32 s68, s68, s44")
    a("s_mul_i32 s68, s68, %d" % (18 * 1024))
    a("v_lshlrev_b32 v8, 4, v1")
    a("v_add_u32 v8, s68, v8")
    zero_check(a, "K1_KV_POLL", 10, 9)
    a("s_nop 3")
    for ti in range(18):
        c = res[ti]
        a("ds_write_b128 v8, v[%d:%d] offset:%d" % (c, c + 3, ti * 1024))
    a("s_mul_i32 s68, s45, %d" % (36 * 1024))
    a("v_lshlrev_b32 v8, 2, v1")
    a("v_add_u32 v9, s68, v8")
    a("v_lshl_add_u32 v10, v1, 4, s68")
    a("s_sub_u32 s68, s43, 9")
    a("s_mul_i32 s69, s68, 26")
    a("s_mul_i32 s70, s45, 13")
    a("s_add_u32 s69, s69, s70")
    a("s_lshl_b32 s69, s69, 10")
    a("s_add_u32 s69, s69, 0x%x" % KV_OFF)
    a("s_lshl_b32 s68, s68, 1")
    a("s_add_u32 s68, s68, s45")
    a("s_mul_i32 s68, s68, 320")
    a("s_add_u32 s68, s68, 0x%x" % Z_OFF)
    a("s_waitcnt lgkmcnt(0)")
    a("s_barrier")
    stamp(a, 4, 15)
    a("s_cmp_eq_u32 s44, 0")
    a("s_cbranch_scc0 K1_KV_R1")
    for rh in range(2):
        if rh == 1: a.label("K1_KV_R1")
        items = []
        tiles = list(range(0, 7)) if rh == 0 else list(range(7, 13))
        for ti in tiles:
            dt, et = TRI[ti]
            for q_ in range(4):
                m = 0
                for p in range(64):
                    if head(16 * dt + (p >> 2)) == head(16 * et + 4 * q_ + (p & 3)): m |= 1 << p
                if m: items.append(("kv", ti, q_, m))
        if rh == 1:
            for dt in range(5): items.append(("z", 13 + dt, 0, 0xffff))
        for n, (kind, ti, q_, m) in enumerate(items):
            r = 16 + 2 * n
            if kind == "kv":
                a("ds_read2st64_b32 v[%d:%d], v9 offset0:%d offset1:%d" % (r, r + 1, ti * 4 + q_, 72 + ti * 4 + q_))
            else:
                a("ds_read2st64_b32 v[%d:%d], v10 offset0:%d offset1:%d" % (r, r + 1, ti * 4, 72 + ti * 4))
        assert 16 + 2 * len(items) <= 120
        for n, (kind, ti, q_, m) in enumerate(items):
            r = 16 + 2 * n
            rem = len(items) - 1 - n
            a("s_waitcnt lgkmcnt(%d)" % min(15, rem))
            a("v_add_f32 v%d, v%d, v%d" % (r, r, r + 1))
            a("s_mov_b32 exec_lo, 0x%x" % (m & 0xffffffff))
            a("s_mov_b32 exec_hi, 0x%x" % (m >> 32))
            if kind == "kv":
                off = ti * 1024 + q_ * 256
                a("s_add_u32 s70, s69, %d" % (off & ~4095))
                a("buffer_atomic_add_f32 v%d, v8, s[36:39], s70 offen offset:%d" % (r, off & 4095))
            else:
                a("buffer_atomic_add_f32 v%d, v8, s[36:39], s68 offen offset:%d" % (r, (ti - 13) * 64))
            a("s_mov_b64 exec, -1")
        stamp_flush(a, 15, 14, 2, 26, 8)
        if FUSED:
            if rh == 0: a("s_branch K1_KV_FIN")
        else:
            a("s_endpgm")
    if FUSED:
        a.label("K1_KV_FIN")
        a("s_waitcnt vmcnt(0)")
        a("s_barrier")
        a("s_lshl_b32 s68, s42, 2")
        a("s_add_u32 s68, s68, s43")
        a("s_sub_u32 s68, s68, 9")
        a("s_lshl_b32 s68, s68, 2")
        a("s_add_u32 s68, s68, 0x%x" % (FL_OFF + 1024))
        set_flag(a, 68, "K1_KV_F")
        a("s_mov_b32 s83, 0")
        a("s_mov_b32 s82, 0")
        a("s_branch P2_ENTRY")

    a.label("K1_PREP")
    srds(40)
    srd(a, 56, 16, 17, F * D * 2)
    srd(a, 60, 8, 9, D * D * 2)
    a("s_lshl_b32 s44, s42, 3")
    a("s_add_u32 s44, s44, s26")
    a("v_mov_b32 v4, 0"); a("v_mov_b32 v5, 0"); a("v_mov_b32 v6, 0"); a("v_mov_b32 v7, 0")
    a("v_lshlrev_b32 v8, 4, v1")
    a("s_cmp_lt_u32 s44, %d" % (ZERO_BYTES // 1024))
    a("s_cbranch_scc0 K1_PREP_NZ")
    a("s_lshl_b32 s45, s44, 10")
    a("s_add_u32 s45, s45, 0x%x" % KV_OFF)
    a("buffer_store_dwordx4 v[4:7], v8, s[36:39], s45 offen sc0 sc1")
    a("s_waitcnt vmcnt(0)")
    a.label("K1_PREP_NZ")
    a("v_mov_b32 v9, 0")
    a("v_mov_b32 v10, 1")
    a("s_mov_b64 exec, 1")
    a("buffer_atomic_add v10, v9, s[52:55], 0 offen sc1")
    a("s_mov_b64 exec, -1")
    a("v_lshrrev_b32 v2, 3, v1")
    a("v_mul_u32_u24 v2, 1280, v2")
    a("v_and_b32 v3, 7, v1")
    a("v_lshl_add_u32 v10, v3, 4, v2")
    for i in range(1, 4): a("v_add_u32 v%d, %d, v10" % (10 + i, i * 8 * 1280))
    a("v_lshrrev_b32 v2, 4, v1")
    a("v_and_b32 v3, 15, v1")
    a("v_lshrrev_b32 v3, 2, v3")
    a("v_lshl_add_u32 v2, v2, 2, v3")
    a("v_lshlrev_b32 v2, 7, v2")
    a("v_and_b32 v3, 3, v1")
    a("v_lshl_add_u32 v14, v3, 3, v2")
    a("s_mul_i32 s46, s26, 12288")
    a("v_add_u32 v14, s46, v14")
    def prep_batch(tasks, lbl):
        skip = []
        for n, (sr, total, nks, rnd, dst) in enumerate(tasks):
            a("s_add_u32 s%d, s44, %d" % (64 + n, 128 * rnd))
            a("s_cmp_lt_u32 s%d, %d" % (64 + n, total))
            a("s_cselect_b32 s%d, s%d, 0" % (64 + n, 64 + n))
            a("s_cselect_b32 s%d, 1, 0" % (80 + n))
            a("s_mul_hi_u32 s%d, s%d, %d" % (68 + n, 64 + n, (1 << 32) // 10 + 1))
            a("s_mul_i32 s72, s%d, 10" % (68 + n))
            a("s_sub_u32 s%d, s%d, s72" % (64 + n, 64 + n))
            a("s_mul_i32 s72, s%d, %d" % (68 + n, 32 * 1280))
            a("s_lshl_b32 s73, s%d, 7" % (64 + n))
            a("s_add_u32 s72, s72, s73")
            for i in range(4):
                a("s_add_u32 m0, s46, %d" % (n * 4096 + i * 1024))
                a("s_nop 0")
                a("buffer_load_dwordx4 v%d, s[%d:%d], s72 offen lds" % (10 + i, sr, sr + 3))
        for n, (sr, total, nks, rnd, dst) in enumerate(tasks):
            a("s_waitcnt vmcnt(%d)" % (4 * (len(tasks) - 1 - n) + 4 * n))
            for j in range(4):
                for h in range(2):
                    r = 16 + j * 4 + h * 2
                    a("ds_read_b64_tr_b16 v[%d:%d], v14 offset:%d" % (r, r + 1, n * 4096 + h * 2048 + j * 32))
            a("s_lshl_b32 s72, s%d, 2" % (64 + n))
            a("s_mul_i32 s72, s72, %d" % nks)
            a("s_add_u32 s72, s72, s%d" % (68 + n))
            a("s_lshl_b32 s72, s72, 10")
            a("s_add_u32 s72, s72, 0x%x" % dst)
            a("s_cmp_eq_u32 s%d, 1" % (80 + n))
            a("s_cselect_b32 s72, s72, 0x%x" % JUNK_OFF)
            a("s_waitcnt lgkmcnt(0)")
            for j in range(4):
                a("buffer_store_dwordx4 v[%d:%d], v8, s[36:39], s72 offen %s" % (16 + j * 4, 16 + j * 4 + 3, ST_FLAGS))
                if j < 3: a("s_add_u32 s72, s72, %d" % (nks * 1024))
            a("s_nop 1")
        a("s_waitcnt vmcnt(0)")
    prep_batch([(56, 540, 54, 0, BF_OFF), (56, 540, 54, 1, BF_OFF), (56, 540, 54, 2, BF_OFF)], "b0")
    prep_batch([(56, 540, 54, 3, BF_OFF), (56, 540, 54, 4, BF_OFF), (60, 200, 20, 0, WOF_OFF)], "b1")
    prep_batch([(60, 200, 20, 1, WOF_OFF)], "b2")
    if not FUSED:
        a("v_mov_b32 v9, 4")
        a("v_mov_b32 v10, 1")
        a("s_mov_b64 exec, 1")
        a("buffer_atomic_add v10, v9, s[52:55], 0 offen sc1")
        a("s_mov_b64 exec, -1")
    stamp_flush(a, 40, 41, 2, 26, 8)
    if FUSED:
        a("v_mov_b32 v9, 0")
        a("buffer_load_dword v10, v9, s[52:55], 0 offen sc0 sc1")
        zero_check(a, "K1_P_ZC", 10, 9)
        a("s_barrier")
        a("s_lshl_b32 s68, s42, 2")
        a("s_add_u32 s68, s68, 0x%x" % (FL_OFF + 1280))
        set_flag(a, 68, "K1_P_F")
        a("s_mov_b32 s83, 0")
        a("s_mov_b32 s82, 1")
        a("s_branch P2_ENTRY")
        return
    a.label("K1_END")
    a("s_endpgm")
    a.end_kernel(name, 256, 96)

K2_ATT = 20480
K2_EX  = 4 * K2_ATT
K2_TAB = K2_EX + 4 * 17 * 1024
K2_FLG = K2_TAB + 8192
K2_LDS = K2_FLG + 256

def gen_k2(a, name, code_bytes):
    TS_CUR[0] = 0x40000
    if FUSED:
        a.label("P2_ENTRY")
        a("s_mov_b64 exec, -1")
        a("s_setprio 0")
        a("v_and_b32 v1, 63, v0")
    else:
        a.begin_kernel(name)
        a("s_cmp_ge_u32 s2, 256")
        a("s_cbranch_scc1 K2_END")
        a("s_load_dwordx2 s[20:21], s[0:1], 64")
        a("s_load_dwordx2 s[24:25], s[0:1], 80")
        a("v_lshrrev_b32 v2, 6, v0")
        a("v_and_b32 v1, 63, v0")
        a("v_readfirstlane_b32 s26, v2")
    stamp(a, 0, 15)
    a("s_and_b32 s40, s2, 7")
    a("s_lshr_b32 s41, s2, 3")
    a("s_and_b32 s42, s40, 3")
    a("s_lshl_b32 s42, s42, 3")
    a("s_and_b32 s43, s41, 7")
    a("s_add_u32 s42, s42, s43")
    a("s_lshr_b32 s43, s40, 2")
    a("s_lshl_b32 s43, s43, 2")
    a("s_lshr_b32 s44, s41, 3")
    a("s_add_u32 s43, s43, s44")
    a("v_lshlrev_b32 v2, 4, v1")
    a("v_lshlrev_b32 v3, 2, v1")
    a("v_and_b32 v4, 15, v1")
    a("v_lshrrev_b32 v5, 4, v1")
    a("s_lshl_b32 s45, s42, 2")
    a("s_mul_i32 s46, s43, 5")
    a("s_waitcnt lgkmcnt(0)")
    srd(a, 36, 24, 25, WS_SIZE)
    srd(a, 28, 20, 21, S * D * 2)
    a("s_lshl_b32 s47, s45, 6")
    a("s_add_u32 s47, s47, 0x%x" % G_OFF)
    a("v_lshlrev_b32 v6, 2, v4")
    if FUSED:
        a("s_lshr_b32 s48, s42, 1")
        a("s_lshl_b32 s48, s48, 6")
        a("s_add_u32 s48, s48, 0x%x" % FL_OFF)
        a("v_add_u32 v7, s48, v3")
        a("v_add_u32 v8, 0x%x, v3" % (FL_OFF + 1280 - 64))
        a("v_cmp_gt_u32 vcc, 16, v1")
        a("s_nop 1")
        a("v_cndmask_b32 v7, v8, v7, vcc")
    if WO_LDS and not FUSED:
        a("v_mov_b32 v7, %d" % K2_FLG)
        a("v_add_u32 v7, v7, v3")
        a("v_mov_b32 v8, 0")
        a("ds_write_b32 v7, v8")
        a("s_waitcnt lgkmcnt(0)")
        a("s_barrier")
    a("s_cmp_ge_u32 s26, 4")
    a("s_cbranch_scc1 K2_ATT")

    if not FUSED:
        code_prefetch(a, name, "K2_END", code_bytes, 7, 8, 90, 26)
    if L2PF2:
        a("v_lshlrev_b32 v7, 7, v1")
        a("s_and_b32 s50, s40, 3")
        a("s_lshl_b32 s50, s50, 5")
        a("s_add_u32 s50, s50, s41")
        a("s_mul_i32 s50, s50, %d" % (74 * 1024))
        a("s_mul_i32 s51, s26, %d" % (148 * 128))
        a("s_add_u32 s50, s50, s51")
        if AF_OFF: a("s_add_u32 s50, s50, 0x%x" % AF_OFF)
        a("s_lshr_b32 s51, s40, 2")
        a("s_mul_i32 s52, s51, %d" % (20 * 54 * 1024))
        a("s_mul_i32 s53, s41, %d" % (270 * 128))
        a("s_add_u32 s52, s52, s53")
        a("s_mul_i32 s53, s26, %d" % (68 * 128))
        a("s_add_u32 s52, s52, s53")
        a("s_add_u32 s52, s52, 0x%x" % BF_OFF)
        a("buffer_load_dword v8, v7, s[36:39], s52 offen %s" % PF_FLAGS)
        a("v_min_u32 v9, 3, v1")
        a("v_lshlrev_b32 v9, 7, v9")
        a("buffer_load_dword v8, v9, s[36:39], s52 offen offset:0 %s" % PF_FLAGS) if False else None
        a("s_add_u32 s52, s52, 8192")
        a("buffer_load_dword v8, v9, s[36:39], s52 offen %s" % PF_FLAGS)
        a("buffer_load_dword v8, v7, s[36:39], s50 offen %s" % PF_FLAGS)
        a("s_add_u32 s50, s50, 8192")
        a("buffer_load_dword v8, v7, s[36:39], s50 offen %s" % PF_FLAGS)
        a("s_add_u32 s50, s50, 8192")
        a("v_min_u32 v9, 19, v1")
        a("v_lshlrev_b32 v9, 7, v9")
        a("buffer_load_dword v8, v9, s[36:39], s50 offen %s" % PF_FLAGS)
    ACC = 16; BUF = 96; GV = 240
    if MLP_PRIO: a("s_setprio %d" % MLP_PRIO)
    if not FUSED:
        for rt in range(4):
            a("buffer_load_dword v%d, v6, s[36:39], s47 offen offset:%d" % (GV + rt, rt * 64))
    a("s_mul_i32 s48, s26, 14")
    a("s_cmp_eq_u32 s26, 3")
    a("s_cselect_b32 s49, 1, 0")
    a("s_sub_u32 s48, s48, s49")
    if FUSED:
        a("s_cmp_ge_u32 s26, 2")
        a("s_cselect_b32 s49, 1, 0")
        a("s_sub_u32 s48, s48, s49")
    a("s_cmp_ge_u32 s26, 2")
    a("s_cselect_b32 s61, 13, 14")
    a("s_lshr_b32 s49, s41, 3")
    a("s_mul_i32 s49, s49, 14")
    a("s_and_b32 s50, s41, 7")
    a("s_mul_i32 s50, s50, 7")
    a("s_add_u32 s49, s49, s50")
    a("s_lshr_b32 s60, s49, 2")
    if not K2_ROT: a("s_mov_b32 s60, 0")
    a("s_cmp_ge_u32 s60, s61")
    a("s_cselect_b32 s49, s61, 0")
    a("s_sub_u32 s60, s60, s49")
    a("s_lshl_b32 s60, s60, 10")
    a("s_lshl_b32 s61, s61, 10")
    for rt in range(4):
        a("s_add_u32 s50, s45, %d" % rt)
        a("s_mul_i32 s50, s50, 74")
        a("s_add_u32 s50, s50, s48")
        a("s_lshl_b32 s50, s50, 10")
        if AF_OFF: a("s_add_u32 s50, s50, 0x%x" % AF_OFF)
        a("v_add_u32 v%d, s50, v2" % (244 + rt))
    for nt in range(5):
        a("s_add_u32 s50, s46, %d" % nt)
        a("s_mul_i32 s50, s50, 54")
        a("s_add_u32 s50, s50, s48")
        a("s_lshl_b32 s50, s50, 10")
        a("s_add_u32 s50, s50, 0x%x" % BF_OFF)
        a("v_add_u32 v%d, s50, v2" % (248 + nt))
    def loads(slot):
        b = BUF + (slot % 4) * 36
        out = []
        for nt in range(5):
            out.append("buffer_load_dwordx4 v[%d:%d], v%d, s[36:39], s60 offen" % (b + 16 + nt * 4, b + 16 + nt * 4 + 3, 248 + nt))
        for rt in range(4):
            out.append("buffer_load_dwordx4 v[%d:%d], v%d, s[36:39], s60 offen" % (b + rt * 4, b + rt * 4 + 3, 244 + rt))
        out.append("s_add_u32 s60, s60, 1024")
        out.append("s_cmp_eq_u32 s60, s61")
        out.append("s_cselect_b32 s60, 0, s60")
        return out
    def adv(): pass
    def mf(sl):
        b = BUF + (sl % 4) * 36
        for nt in range(5):
            for rt in range(4):
                c = ACC + (rt * 5 + nt) * 4
                if K2_NOMFMA: continue
                a("v_mfma_f32_16x16x32_bf16 v[%d:%d], v[%d:%d], v[%d:%d], v[%d:%d]" % (c, c + 3, b + 16 + nt * 4, b + 19 + nt * 4, b + rt * 4, b + rt * 4 + 3, c, c + 3))
    if FUSED:
        def ldB(sl, soff, imm):
            b = BUF + (sl % 4) * 36
            for nt in range(5):
                a("buffer_load_dwordx4 v[%d:%d], v%d, s[36:39], %s offen offset:%d" % (b + 16 + nt * 4, b + 19 + nt * 4, 248 + nt, soff, imm))
        def ldA(sl, soff, imm):
            b = BUF + (sl % 4) * 36
            for rt in range(4):
                a("buffer_load_dwordx4 v[%d:%d], v%d, s[36:39], %s offen offset:%d" % (b + rt * 4, b + rt * 4 + 3, 244 + rt, soff, imm))
        if FUSED_SIMPLE:
            for r in range(ACC, ACC + 80): a("v_mov_b32 v%d, 0" % r)
            poll_flags(a, "P2_M_POLL", 7, 8, 0x7ff | (0xffff << 16))
        else:
            a("s_cmp_eq_u32 s82, 0")
            a("s_cbranch_scc1 P2_M_PK")
            poll_flags(a, "P2_M_POLLP", 7, 8, 0xffff << 16, 16)
            a.label("P2_M_PK")
        a("s_cmp_ge_u32 s26, 2")
        a("s_cbranch_scc1 K2_M_SKB0")
        ldB(0, "0", 0)
        a.label("K2_M_SKB0")
        for sl in (1, 2, 3): ldB(sl, "0", sl * 1024)
        if not FUSED_SIMPLE:
            for r in range(ACC, ACC + 80): a("v_mov_b32 v%d, 0" % r)
            poll_flags(a, "P2_M_POLL", 7, 8, 0x7ff)
        stamp(a, 6, 15)
        for rt in range(4):
            a("buffer_load_dword v%d, v6, s[36:39], s47 offen offset:%d" % (GV + rt, rt * 64))
        a("s_cmp_ge_u32 s26, 2")
        a("s_cbranch_scc1 K2_M_SKA0")
        ldA(0, "0", 0)
        a.label("K2_M_SKA0")
        for sl in (1, 2, 3): ldA(sl, "0", sl * 1024)
        a("s_movk_i32 s60, 4096")
        stamp(a, 2, 15)
        for sl in range(14):
            if sl <= 3:
                n = 4 * (3 - sl) + 9 * min(sl, 10)
            else:
                n = 9 * min(3, 13 - sl)
            a("s_waitcnt vmcnt(%d)" % n)
            if sl == 0:
                stamp(a, 1, 15)
                a("s_cmp_ge_u32 s26, 2")
                a("s_cbranch_scc1 K2_M_SK1")
            mf(sl)
            if sl == 0:
                a.label("K2_M_SK1")
            if sl + 4 <= 13:
                ldB(sl + 4, "s60", 0); ldA(sl + 4, "s60", 0)
                a("s_add_u32 s60, s60, 1024")
    else:
        if K2_NOMLP:
            a("s_branch K2_M_DONE")
        a("s_cmp_ge_u32 s26, 2")
        a("s_cbranch_scc1 K2_M_SK0")
        for t in loads(0): a(t)
        a.label("K2_M_SK0")
        for sl in (1, 2):
            for t in loads(sl): a(t)
        for r in range(ACC, ACC + 80): a("v_mov_b32 v%d, 0" % r)
        stamp(a, 2, 15)
        for sl in range(14):
            if sl + 3 <= 13:
                for t in loads(sl + 3): a(t)
            a("s_waitcnt vmcnt(%d)" % (9 * min(3, 13 - sl)))
            if sl == 0:
                stamp(a, 1, 15)
                a("s_cmp_ge_u32 s26, 2")
                a("s_cbranch_scc1 K2_M_SK1")
            mf(sl)
            if sl == 0:
                a.label("K2_M_SK1")
    a.label("K2_M_DONE")
    stamp(a, 3, 15)
    for rt in range(4):
        a("v_sub_f32 v%d, 1.0, v%d" % (244 + 2 * rt, GV + rt))
        a("v_sub_f32 v%d, 1.0, v%d" % (245 + 2 * rt, GV + rt))
    a("v_add_u32 v7, %d, v2" % K2_EX)
    a("v_add_u32 v10, %d, v2" % (K2_EX + 2 * 17 * 1024))
    a("s_nop 4")
    if FUSED: a("s_barrier")
    elif WO_LDS:
        a("v_min_u32 v9, 3, v1")
        a("v_lshlrev_b32 v9, 2, v9")
        a("v_add_u32 v9, %d, v9" % K2_FLG)
        a.label("K2_M_WF")
        a("ds_read_b32 v8, v9")
        a("s_waitcnt lgkmcnt(0)")
        a("v_cmp_eq_u32 vcc, 1, v8")
        a("s_nop 3")
        a("s_cmp_eq_u64 vcc, -1")
        a("s_cbranch_scc1 K2_M_WFD")
        a("s_sleep 1")
        a("s_branch K2_M_WF")
        a.label("K2_M_WFD")
    for ti in range(20):
        rt = ti // 5
        c = ACC + ti * 4
        for e in (0, 2):
            a("v_pk_mul_f32 v[%d:%d], v[%d:%d], v[%d:%d]" % (c + e, c + e + 1, c + e, c + e + 1, 244 + 2 * rt, 245 + 2 * rt))
    T = BUF
    O = T + 96
    for w in range(4):
        a("s_cmp_eq_u32 s26, %d" % w)
        a("s_cbranch_scc0 K2_X%d" % w)
        for rt in range(4):
            for nt in range(5):
                c = ACC + (rt * 5 + nt) * 4
                if rt == w:
                    if nt >= 3:
                        a("ds_write_b128 v%d, v[%d:%d] offset:%d" % (7 if rt < 2 else 10, c, c + 3, ((rt % 2) * 17 + 15 + nt - 3) * 1024))
                    continue
                idx = w if w < rt else w - 1
                a("ds_write_b128 v%d, v[%d:%d] offset:%d" % (7 if rt < 2 else 10, c, c + 3, ((rt % 2) * 17 + idx * 5 + nt) * 1024))
        for x in range(12):
            a("v_mov_b32 v%d, v%d" % (O + x, ACC + w * 20 + x))
        a("s_branch K2_XD")
        a.label("K2_X%d" % w)
    a.label("K2_XD")
    a("s_mul_i32 s50, s26, %d" % (17 * 1024))
    a("v_add_u32 v7, s50, v7")
    a("s_mul_i32 s50, s26, %d" % (5 * 1024))
    a("v_add_u32 v9, s50, v2")
    a("s_add_u32 s50, s45, s26")
    a("s_mul_i32 s50, s50, %d" % (16 * 1280))
    a("s_mul_i32 s51, s46, 32")
    a("s_add_u32 s50, s50, s51")
    a("v_mul_u32_u24 v8, 1280, v4")
    a("v_lshl_add_u32 v8, v5, 3, v8")
    a("s_waitcnt lgkmcnt(0)")
    a("s_barrier")
    stamp(a, 4, 15)
    def final(nts, own):
        srcs = []
        for idx in range(3):
            for k_, nt in enumerate(nts): srcs.append((k_, "v7", (idx * 5 + nt) * 1024))
        if own is None:
            for k_, nt in enumerate(nts): srcs.append((k_, "v7", (15 + nt - 3) * 1024))
        for u in range(4):
            for k_, nt in enumerate(nts): srcs.append((k_, "v9" if u < 2 else "v10", (u % 2) * K2_ATT + nt * 1024))
        a("v_add_u32 v10, %d, v9" % (2 * K2_ATT))
        for n, (k_, ar, off) in enumerate(srcs):
            a("ds_read_b128 v[%d:%d], %s offset:%d" % (T + n * 4, T + n * 4 + 3, ar, off))
        first = [own is not None] * len(nts)
        for n, (k_, ar, off) in enumerate(srcs):
            rem = len(srcs) - 1 - n
            if n % len(nts) == 0: a("s_waitcnt lgkmcnt(%d)" % max(0, min(15, rem - (len(nts) - 1))))
            o = O + k_ * 4; r = T + n * 4
            if not first[k_]:
                for x in range(4): a("v_mov_b32 v%d, v%d" % (o + x, r + x))
                first[k_] = True
            else:
                for e in (0, 2):
                    a("v_pk_add_f32 v[%d:%d], v[%d:%d], v[%d:%d]" % (o + e, o + e + 1, o + e, o + e + 1, r + e, r + e + 1))
        stamp(a, 6, 15) if own is None else stamp(a, 5, 15)
        for k_, nt in enumerate(nts):
            o = O + k_ * 4
            a("v_cvt_pk_bf16_f32 v%d, v%d, v%d" % (o, o, o + 1))
            a("v_cvt_pk_bf16_f32 v%d, v%d, v%d" % (o + 1, o + 2, o + 3))
            a("buffer_store_dwordx2 v[%d:%d], v8, s[28:31], s50 offen offset:%d %s" % (o, o + 1, nt * 32, OUT_FLAGS))
    final([0, 1, 2], O)
    stamp_flush(a, 15, 14, 2, 26, 8)
    a("s_endpgm")
    FINAL = final

    a.label("K2_ATT")
    if K2_NOATT:
        a("s_barrier")
        stamp_flush(a, 15, 14, 2, 26, 8)
        a("s_endpgm")
    if not FUSED: a("s_setprio %d" % ATT_PRIO)
    a("s_sub_u32 s27, s26, 4")
    RAW = 16; KVA = 120; WO = [192, 212]; DT = 232
    MF = 16
    GV = 252
    vmq = []
    def vm_issue(tag, text):
        a(text); vmq.append(tag)
    def vm_need(tag):
        idx = [i for i, t in enumerate(vmq) if t == tag]
        if not idx: return
        last = max(idx)
        a("s_waitcnt vmcnt(%d)" % min(63, len(vmq) - 1 - last))
        del vmq[:last + 1]
    if KV_MASK:
        KVZERO = True
    def issue_Z():
        a("s_mul_i32 s48, s27, 640")
        a("s_add_u32 s48, s48, 0x%x" % Z_OFF)
        a("v_lshlrev_b32 v7, 4, v5")
        for sx in range(5):
            for ab in range(2):
                r = KVA + (sx * 2 + ab) * 4
                vm_issue("Z", "buffer_load_dwordx4 v[%d:%d], v7, s[36:39], s48 offen offset:%d" % (r, r + 3, sx * 128 + ab * 64))
    def issue_G():
        for rt in range(4):
            vm_issue("G", "buffer_load_dword v%d, v6, s[36:39], s47 offen offset:%d" % (GV + rt, rt * 64))
    def issue_PQ():
        a("s_mul_i32 s52, s27, %d" % K2_ATT)
        a("s_mul_i32 s53, s45, 74")
        a("s_mul_i32 s54, s27, 5")
        a("s_add_u32 s53, s53, s54")
        a("s_add_u32 s53, s53, 54")
        a("s_lshl_b32 s53, s53, 10")
        if AF_OFF: a("s_add_u32 s53, s53, 0x%x" % AF_OFF)
        for rt in range(4):
            for sx in range(5):
                a("s_add_u32 s54, s53, %d" % ((rt * 74 + sx) * 1024))
                a("s_add_u32 m0, s52, %d" % ((rt * 5 + sx) * 1024))
                a("s_nop 0")
                vm_issue("PQ", "buffer_load_dwordx4 v2, s[36:39], s54 offen lds")
    def zero_RAW():
        if KV_MASK:
            for r in range(RAW, RAW + 104): a("v_mov_b32 v%d, 0" % r)
    def issue_KV():
        a("s_mul_i32 s49, s27, %d" % (26 * 1024))
        a("s_add_u32 s49, s49, 0x%x" % KV_OFF)
        for ti in range(26):
            dt, et = TRI[ti % 13]
            m = 0
            for l in range(64):
                if head(16 * dt + (l & 15)) == head(16 * et + 4 * (l >> 4)): m |= 1 << l
            full = (m == (1 << 64) - 1) or not KV_MASK
            if not full:
                a("s_mov_b32 exec_lo, 0x%x" % (m & 0xffffffff))
                a("s_mov_b32 exec_hi, 0x%x" % (m >> 32))
            vm_issue("KV", "buffer_load_dwordx4 v[%d:%d], v2, s[36:39], s49 offen offset:%d" % (RAW + ti * 4, RAW + ti * 4 + 3, (ti % 4) * 1024))
            if not full: a("s_mov_b64 exec, -1")
            if ti % 4 == 3: a("s_add_u32 s49, s49, 4096")
    a("s_mul_i32 s50, s46, 20")
    a("s_mul_i32 s51, s27, 5")
    a("s_add_u32 s50, s50, s51")
    a("s_lshl_b32 s50, s50, 10")
    a("s_add_u32 s50, s50, 0x%x" % WOF_OFF)
    def wo_loads(nt):
        a("s_add_u32 s51, s50, %d" % (nt * 20480))
        for p in range(4):
            r = WO[nt % 2] + p * 4
            vm_issue("WO%d" % nt, "buffer_load_dwordx4 v[%d:%d], v2, s[36:39], s51 offen offset:%d" % (r, r + 3, p * 1024))
        a("s_add_u32 s51, s51, 4096")
        r = WO[nt % 2] + 16
        vm_issue("WO%d" % nt, "buffer_load_dwordx4 v[%d:%d], v2, s[36:39], s51 offen" % (r, r + 3))
    def owed_barriers():
        a.label("P2_A_BAR")
        a("s_cmp_eq_u32 s83, 0")
        a("s_cbranch_scc1 P2_A_BARD")
        a("s_barrier")
        a("s_sub_u32 s83, s83, 1")
        a("s_branch P2_A_BAR")
        a.label("P2_A_BARD")
    if FUSED:
        if FUSED_SIMPLE:
            zero_RAW()
            owed_barriers()
            poll_flags(a, "P2_A_POLLP", 7, 8, 0x600 | (0xffff << 16))
            issue_G(); issue_PQ()
        else:
            a("v_mov_b32 v9, 0")
            a("buffer_load_dword v10, v9, s[52:55], 0 offen sc0 sc1")
            zero_check(a, "P2_A_ZC", 10, 9)
            poll_flags(a, "P2_A_POLLP", 7, 8, 0xffff << 16, 16)
            if not PRE_WO: owed_barriers()
        wo_loads(0); wo_loads(1)
        a("s_mul_i32 s56, s27, 15360")
        a("s_add_u32 s56, s56, %d" % K2_EX)
        for nt in (2, 3, 4):
            for p in range(5):
                a("s_add_u32 s51, s50, %d" % (nt * 20480 + p * 1024))
                a("s_add_u32 m0, s56, %d" % ((nt - 2) * 5120 + p * 1024))
                a("s_nop 0")
                vm_issue("WOL", "buffer_load_dwordx4 v2, s[36:39], s51 offen lds")
        a("v_add_u32 v14, s56, v2")
        stamp(a, 9, 15)
        if not FUSED_SIMPLE:
            zero_RAW()
            if PRE_WO: owed_barriers()
            a("s_setprio %d" % ATT_PRIO)
            poll_flags(a, "P2_A_POLL1", 7, 8, 0x600)
            issue_G(); issue_PQ()
        a("v_add_u32 v7, 0x%x, v3" % (FL_OFF + 1024))
        poll_flags(a, "P2_A_POLL2", 7, 8, (1 << 64) - 1)
        del vmq[:]
        stamp(a, 8, 15)
        issue_Z(); issue_KV()
    else:
        issue_Z(); issue_G(); issue_PQ()
        zero_RAW()
        issue_KV()
        wo_loads(0); wo_loads(1)
        if WO_LDS:
            a("s_mul_i32 s56, s27, 15360")
            a("s_add_u32 s56, s56, %d" % K2_EX)
            for nt in (2, 3, 4):
                for p in range(5):
                    a("s_add_u32 s51, s50, %d" % (nt * 20480 + p * 1024))
                    a("s_add_u32 m0, s56, %d" % ((nt - 2) * 5120 + p * 1024))
                    a("s_nop 0")
                    vm_issue("WOL", "buffer_load_dwordx4 v2, s[36:39], s51 offen lds")
            a("v_add_u32 v14, s56, v2")
    if ATT_PRIO3 is not None: a("s_setprio %d" % ATT_PRIO3)
    stamp(a, 2, 15)
    a("s_lshl_b32 s55, s27, 11")
    a("s_add_u32 s55, s55, %d" % K2_TAB)
    a("v_add_u32 v9, s52, v2")
    a("v_lshlrev_b32 v10, 5, v4")
    a("v_add_u32 v10, s55, v10")
    a("v_lshl_add_u32 v8, v5, 4, v10")
    for gb in (1, 2, 3):
        a("v_cmp_le_u32 vcc, %d, v5" % gb)
        a("s_nop 1")
        a("v_cndmask_b32 v%d, 0, 4, vcc" % (10 + gb))
        a("v_add_u32 v%d, v10, v%d" % (10 + gb, 10 + gb))
    ZF = 160
    vm_need("Z")
    for sx in range(5):
        r0 = KVA + sx * 8
        o = ZF + sx * 4
        a("v_cvt_pk_bf16_f32 v%d, v%d, v%d" % (o, r0, r0 + 1))
        a("v_cvt_pk_bf16_f32 v%d, v%d, v%d" % (o + 1, r0 + 2, r0 + 3))
        a("v_cvt_pk_bf16_f32 v%d, v%d, v%d" % (o + 2, r0 + 4, r0 + 5))
        a("v_cvt_pk_bf16_f32 v%d, v%d, v%d" % (o + 3, r0 + 6, r0 + 7))
        for ab in range(2):
            m = 0
            for l in range(64):
                if (32 * sx + 16 * ab + 4 * (l >> 4)) // 20 == (l & 15): m |= 1 << l
            a("s_mov_b32 s56, 0x%x" % (m & 0xffffffff))
            a("s_mov_b32 s57, 0x%x" % (m >> 32))
            a("v_cndmask_b32 v%d, 0, v%d, s[56:57]" % (o + 2 * ab, o + 2 * ab))
            a("v_cndmask_b32 v%d, 0, v%d, s[56:57]" % (o + 2 * ab + 1, o + 2 * ab + 1))
    PB = [120, 140]; DEN = 232; SC = 180
    vm_need("PQ")
    def pq_reads(rt, b):
        return ["ds_read_b128 v[%d:%d], v9 offset:%d" % (b + sx * 4, b + sx * 4 + 3, (rt * 5 + sx) * 1024) for sx in range(5)]
    for t in pq_reads(0, PB[0]) + pq_reads(1, PB[1]): a(t)
    for rt in range(4):
        b = PB[rt % 2]
        a("s_waitcnt lgkmcnt(%d)" % (5 if rt < 3 else 0))
        for sx in range(5):
            c = DEN + rt * 4
            a("v_mfma_f32_16x16x32_bf16 v[%d:%d], v[%d:%d], v[%d:%d], %s" % (c, c + 3, ZF + sx * 4, ZF + sx * 4 + 3, b + sx * 4, b + sx * 4 + 3, "0" if sx == 0 else "v[%d:%d]" % (c, c + 3)))
        if rt + 2 < 4:
            for t in pq_reads(rt + 2, b): a(t)
    for t in pq_reads(0, PB[0]) + pq_reads(1, PB[1]): a(t)
    vm_need("G")
    a("s_mov_b32 s56, 0x%x" % EPS6)
    for rt in range(4):
        for r in range(4): a("v_add_f32 v%d, s56, v%d" % (DEN + rt * 4 + r, DEN + rt * 4 + r))
    for rt in range(4):
        for r in range(4): a("v_rcp_f32 v%d, v%d" % (DEN + rt * 4 + r, DEN + rt * 4 + r))
    a("s_nop 0")
    for rt in range(4):
        for r in range(4): a("v_mul_f32 v%d, v%d, v%d" % (DEN + rt * 4 + r, GV + rt, DEN + rt * 4 + r))
    a("s_mov_b32 exec_lo, -1")
    a("s_mov_b32 exec_hi, 0")
    for rt in range(4):
        a("ds_write_b128 v8, v[%d:%d] offset:%d" % (DEN + rt * 4, DEN + rt * 4 + 3, rt * 512))
    a("s_mov_b64 exec, -1")
    a("s_waitcnt lgkmcnt(0)")
    def sc_reads(rt, base):
        out = []
        for sx in range(5):
            for ab in range(2):
                hs = [(32 * sx + 16 * ab + 4 * g) // 20 for g in range(4)]
                h0 = hs[0]
                gb = next((g for g in range(4) if hs[g] > h0), None)
                areg = 10 if gb is None else 10 + gb
                out.append("ds_read_b32 v%d, v%d offset:%d" % (base + sx * 2 + ab, areg, rt * 512 + h0 * 4))
        return out
    SCB = [180, 232]
    TMP = [190, 242, 244, 246]
    for t in sc_reads(0, SCB[0]) + sc_reads(1, SCB[1]): a(t)
    for rt in range(4):
        b = PB[rt % 2]; sc0 = SCB[rt % 2]
        a("s_waitcnt lgkmcnt(%d)" % (10 if rt == 0 else (15 if rt < 3 else 5)))
        if rt >= 1:
            pass
        n = 0
        for sx in range(5):
            for x in range(4):
                r = b + sx * 4 + x; sc = sc0 + sx * 2 + (x // 2)
                t = TMP[n % 4]; n += 1
                a("v_lshlrev_b32 v%d, 16, v%d" % (t, r))
                a("v_and_b32 v%d, 0xffff0000, v%d" % (t + 1, r))
                if PKSCALE:
                    base = sc & ~1
                    hi = sc & 1
                    a("v_pk_mul_f32 v[%d:%d], v[%d:%d], v[%d:%d] op_sel:[0,%d] op_sel_hi:[1,%d]" % (t, t + 1, t, t + 1, base, base + 1, hi, hi))
                else:
                    a("v_mul_f32 v%d, v%d, v%d" % (t, sc, t))
                    a("v_mul_f32 v%d, v%d, v%d" % (t + 1, sc, t + 1))
                a("v_cvt_pk_bf16_f32 v%d, v%d, v%d" % (r, t, t + 1))
        for sx in range(5):
            a("ds_write_b128 v9, v[%d:%d] offset:%d" % (b + sx * 4, b + sx * 4 + 3, (rt * 5 + sx) * 1024))
        if rt + 2 < 4:
            for t in pq_reads(rt + 2, b) + sc_reads(rt + 2, sc0): a(t)
    stamp(a, 5, 15)
    vm_need("KV")
    def ktile(DTl, ET):
        par = DTl // 5
        if ET // 5 != par: return None
        key = (DTl % 5, ET % 5)
        if key not in TRI: return None
        return RAW + (par * 13 + TRI.index(key)) * 4
    frags = []
    for DTl in range(10):
        for p in range(5):
            if ktile(DTl, 2 * p) is not None or ktile(DTl, 2 * p + 1) is not None:
                frags.append((DTl, p))
    assert len(frags) == 18
    a("s_waitcnt lgkmcnt(0)")
    for fi, (DTl, p) in enumerate(frags):
        o = KVA + fi * 4
        for half in range(2):
            t = ktile(DTl, 2 * p + half)
            if t is None:
                a("v_mov_b32 v%d, 0" % (o + 2 * half)); a("v_mov_b32 v%d, 0" % (o + 2 * half + 1))
            else:
                a("v_cvt_pk_bf16_f32 v%d, v%d, v%d" % (o + 2 * half, t, t + 1))
                a("v_cvt_pk_bf16_f32 v%d, v%d, v%d" % (o + 2 * half + 1, t + 2, t + 3))
    stamp(a, 1, 15)
    dset = 0
    pend = []
    def conv(item):
        d, nt, sx = item
        o = MF + (sx * 5 + nt) * 4
        a("v_cvt_pk_bf16_f32 v%d, v%d, v%d" % (o, d, d + 1))
        a("v_cvt_pk_bf16_f32 v%d, v%d, v%d" % (o + 1, d + 2, d + 3))
        a("v_cvt_pk_bf16_f32 v%d, v%d, v%d" % (o + 2, d + 4, d + 5))
        a("v_cvt_pk_bf16_f32 v%d, v%d, v%d" % (o + 3, d + 6, d + 7))
    a("s_nop 1")
    for nt in range(5):
        vm_need("WO%d" % nt)
        if (FUSED or WO_LDS) and nt >= 2:
            a("s_waitcnt lgkmcnt(%d)" % (5 if nt < 4 else 0))
            if nt == 4:
                if FUSED:
                    a("s_barrier")
                else:
                    a("s_lshl_b32 s56, s27, 2")
                    a("s_add_u32 s56, s56, %d" % K2_FLG)
                    a("v_mov_b32 v7, s56")
                    a("v_mov_b32 v8, 1")
                    a("ds_write_b32 v7, v8")
        for sx in range(5):
            d = DT + (dset % 3) * 8
            dset += 1
            for half in range(2):
                DTl = 2 * sx + half
                first = True
                for fi, (D_, p) in enumerate(frags):
                    if D_ != DTl: continue
                    A_ = KVA + fi * 4; B_ = WO[nt % 2] + p * 4; c = d + half * 4
                    a("v_mfma_f32_16x16x32_bf16 v[%d:%d], v[%d:%d], v[%d:%d], %s" % (c, c + 3, A_, A_ + 3, B_, B_ + 3, "0" if first else "v[%d:%d]" % (c, c + 3)))
                    first = False
            pend.append((d, nt, sx))
            if len(pend) == 3:
                a("s_nop 1")
                conv(pend.pop(0))
        if nt + 2 <= 4:
            if FUSED or WO_LDS:
                vm_need("WOL")
                for p in range(5):
                    r = WO[nt % 2] + p * 4
                    a("ds_read_b128 v[%d:%d], v14 offset:%d" % (r, r + 3, nt * 5120 + p * 1024))
            else:
                wo_loads(nt + 2)
        if FUSED and nt == 2:
            pass
    ACC = 120; PQB = [200, 220]
    for t in pq_reads(0, PQB[0]): a(t)
    a("s_nop 7")
    while pend:
        conv(pend.pop(0))
    stamp(a, 3, 15)
    for rt in range(4):
        b = PQB[rt % 2]
        if rt < 3:
            for t in pq_reads(rt + 1, PQB[(rt + 1) % 2]): a(t)
        a("s_waitcnt lgkmcnt(%d)" % (5 if rt < 3 else 0))
        for sx in range(5):
            for nt in range(5):
                c = ACC + (rt * 5 + nt) * 4; m = MF + (sx * 5 + nt) * 4
                a("v_mfma_f32_16x16x32_bf16 v[%d:%d], v[%d:%d], v[%d:%d], %s" % (c, c + 3, m, m + 3, b + sx * 4, b + sx * 4 + 3, "0" if sx == 0 else "v[%d:%d]" % (c, c + 3)))
        if rt >= 1:
            for nt in range(5):
                c = ACC + ((rt - 1) * 5 + nt) * 4
                a("ds_write_b128 v9, v[%d:%d] offset:%d" % (c, c + 3, ((rt - 1) * 5 + nt) * 1024))
    a("s_nop 7")
    for nt in range(5):
        c = ACC + (15 + nt) * 4
        a("ds_write_b128 v9, v[%d:%d] offset:%d" % (c, c + 3, (15 + nt) * 1024))
    a("s_mul_i32 s50, s27, %d" % (17 * 1024))
    a("s_add_u32 s50, s50, %d" % K2_EX)
    a("v_add_u32 v7, s50, v2")
    a("s_mul_i32 s50, s27, %d" % (5 * 1024))
    a("v_add_u32 v9, s50, v2")
    a("s_add_u32 s50, s45, s27")
    a("s_mul_i32 s50, s50, %d" % (16 * 1280))
    a("s_mul_i32 s51, s46, 32")
    a("s_add_u32 s50, s50, s51")
    a("v_mul_u32_u24 v8, 1280, v4")
    a("v_lshl_add_u32 v8, v5, 3, v8")
    a("s_waitcnt lgkmcnt(0)")
    stamp(a, 4, 15)
    a("s_barrier")
    FINAL([3, 4], None)
    stamp_flush(a, 15, 14, 2, 26, 8)
    a.label("K2_END")
    a("s_endpgm")
    a.end_kernel(name, 256, 96)

def gen_k0(a, name):
    a.begin_kernel(name)
    a("s_cmp_ge_u32 s2, 8")
    a("s_cbranch_scc1 K0_END")
    a("s_load_dwordx16 s[4:19], s[0:1], 0")
    a("s_load_dwordx4 s[20:23], s[0:1], 64")
    a("s_load_dwordx2 s[24:25], s[0:1], 80")
    a("s_getpc_b64 s[90:91]")
    a.label("K0_PC")
    a("s_sub_u32 s90, s90, K0_PC-k1_kernel")
    a("s_subb_u32 s91, s91, 0")
    a("v_lshlrev_b32 v3, 7, v0")
    for i in range(6):
        a("v_min_u32 v5, K2_END-k1_kernel-4, v3")
        a("global_load_dword v4, v5, s[90:91]")
        a("v_add_u32 v3, 8192, v3")
    a("v_min_u32 v10, 15, v0")
    a("v_lshlrev_b32 v10, 20, v10")
    a("s_waitcnt lgkmcnt(0)")
    for (lo, size) in ((4, S * D * 2), (6, D * 3 * D * 2), (8, D * D * 2), (12, D * F * 2), (14, D * F * 2), (16, F * D * 2), (18, D * 2), (20, S * D * 2), (22, 256), (24, WS_SIZE)):
        srd(a, 28, lo, lo + 1, size)
        a("buffer_load_dword v4, v10, s[28:31], 0 offen")
    a("s_waitcnt vmcnt(0)")
    a.label("K0_END")
    a("s_endpgm")
    a.end_kernel(name, 16, 96)

HDR = """; Kernarg layout for this problem (88 bytes, ptrs only, base s[0:1]):
;   offset   0: d_in[0] A_x  shape=(1, 2048, 640) dtype=bfloat16 strides=(2621440, 1280, 2) contiguous=True
;   offset   8: d_in[1] A_wqkv  shape=(640, 1920) dtype=bfloat16 strides=(3840, 2) contiguous=True
;   offset  16: d_in[2] A_wo  shape=(640, 640) dtype=bfloat16 strides=(1280, 2) contiguous=True
;   offset  24: d_in[3] B_x  shape=(1, 2048, 640) dtype=bfloat16 strides=(2621440, 1280, 2) contiguous=True
;   offset  32: d_in[4] B_w_gate  shape=(640, 1728) dtype=bfloat16 strides=(3456, 2) contiguous=True
;   offset  40: d_in[5] B_w_up  shape=(640, 1728) dtype=bfloat16 strides=(3456, 2) contiguous=True
;   offset  48: d_in[6] B_w_down  shape=(1728, 640) dtype=bfloat16 strides=(1280, 2) contiguous=True
;   offset  56: d_in[7] gate_w  shape=(640,) dtype=bfloat16 strides=(2,) contiguous=True
;   k1: x @ [wqkv | w_gate | w_up] with fused epilogues (phi(q), h = sigmoid(g)*u, kv/z partial sums via atomics, gate)
;   k2: [h | phi(q)/den] @ [w_down ; blockdiag(kv) @ wo] with the gated mix
"""
if __name__ == "__main__":
    if len(sys.argv) > 1 and sys.argv[1] == "stamp": STAMP = True
    for o in sys.argv[3:]:
        k_, v_ = o.split("=")
        globals()[k_] = eval(v_)
    a = Asm()
    gen_k1(a, "k1_kernel", 32768)
    gen_k2(a, "k1_kernel" if FUSED else "k2_kernel", 32768)
    if WARMK: gen_k0(a, "k0_kernel")
    if FUSED:
        hdr = HDR + "; @launch kernel=k1_kernel grid=(256,1,1) block=(512,1,1) lds=%d" % max(K1_LDS, K2_LDS)
    else:
        hdr = HDR + ("; @launch kernel=k0_kernel grid=(8,1,1) block=(64,1,1) lds=0\n" if WARMK else "") + "; @launch kernel=k1_kernel grid=(256,1,1) block=(512,1,1) lds=%d\n" % K1_LDS
        hdr += "; @launch kernel=k2_kernel grid=(256,1,1) block=(512,1,1) lds=%d" % K2_LDS
    out = sys.argv[2] if len(sys.argv) > 2 else "k12.s"
    open(out, "w").write(a.text(hdr))
```

```python
import sys
from asmlib import Asm

S, D, F = 2048, 640, 1728
AF_OFF  = 0x0000000
BF_OFF  = 0x0A00000
WOF_OFF = 0x0D00000
KV_OFF  = 0x0E00000
Z_OFF   = KV_OFF + 4 * 26 * 1024
ZERO_BYTES = 109 * 1024
FL_OFF  = KV_OFF + 107 * 1024
G_OFF   = 0x0E40000
JUNK_OFF = 0x0F00000
WS_SIZE = 0x10000000
LOG2E = 0x3fb8aa3b
NLOG2E = 0xbfb8aa3b
EPS6 = 0x358637bd

def head(c): return c // 20

class LdsQ:
    def __init__(self, a):
        self.a = a; self.q = []
    def issue(self, tag, text):
        self.a(text); self.q.append(tag)
    def need(self, tags):
        idx = [i for i, t in enumerate(self.q) if t in tags]
        if not idx: return
        last = max(idx)
        n = len(self.q) - 1 - last
        assert n <= 15
        self.a("s_waitcnt lgkmcnt(%d)" % n)
        self.q = self.q[last + 1:]
    def drain(self):
        self.a("s_waitcnt lgkmcnt(0)"); self.q = []

B_SLOT, A_SLOT = 24576, 16384
A_BASE = 4 * B_SLOT
GW_BASE = A_BASE + 3 * A_SLOT
K1_LDS = GW_BASE + 2048

TRI = [(dt, et) for dt in range(5) for et in range(5) if abs(dt - et) <= 1 and
       any(head(16 * dt + x) == head(16 * et + y) for x in range(16) for y in range(16))]
assert len(TRI) == 13

def kv_tile_index(par, dt, et):
    return par * 13 + TRI.index((dt, et))

def srd(a, d, lo, hi, size):
    a("s_mov_b32 s%d, s%d" % (d, lo))
    a("s_mov_b32 s%d, s%d" % (d + 1, hi))
    a("s_mov_b32 s%d, 0x%x" % (d + 2, size))
    a("s_mov_b32 s%d, 0x00020000" % (d + 3))

def code_prefetch(a, label_start, label_end, nbytes, vtmp, vdst, stmp, swave):
    a("s_getpc_b64 s[%d:%d]" % (stmp, stmp + 1))
    here = a.newlabel("PC")
    a.label(here)
    a("s_sub_u32 s%d, s%d, %s-%s" % (stmp, stmp, here, label_start))
    a("s_subb_u32 s%d, s%d, 0" % (stmp + 1, stmp + 1))
    a("v_and_b32 v%d, 63, v0" % vtmp)
    a("v_lshlrev_b32 v%d, 7, v%d" % (vtmp, vtmp))
    a("s_lshl_b32 s%d, s%d, 13" % (stmp + 2, swave))
    a("v_add_u32 v%d, s%d, v%d" % (vtmp, stmp + 2, vtmp))
    n = (nbytes + 32767) // 32768
    for i in range(n):
        a("v_min_u32 v%d, %s-%s-4, v%d" % (vdst + 1, label_end, label_start, vtmp))
        a("global_load_dword v%d, v%d, s[%d:%d]" % (vdst, vdst + 1, stmp, stmp + 1))
        if i + 1 < n:
            a("v_add_u32 v%d, 32768, v%d" % (vtmp, vtmp))

TS_OFF = 0x0F80000
STAMP = False
def stamp(a, idx, v):
    if not STAMP: return
    a("s_memrealtime s[94:95]")
    a("s_waitcnt lgkmcnt(0)")
    a("v_writelane_b32 v%d, s94, %d" % (v, idx))
def stampc(a, idx, v):
    if not STAMP: return
    a("s_memtime s[94:95]")
    a("s_waitcnt lgkmcnt(0)")
    a("v_writelane_b32 v%d, s94, %d" % (v, idx))
TS_CUR = [0]
def stamp_flush(a, v, vt, swg, swave, nw, wsrd=36):
    if not STAMP: return
    a("s_waitcnt vmcnt(0)")
    stamp(a, 7, v)
    a("s_mul_i32 s94, s%d, %d" % (swg, nw))
    a("s_add_u32 s94, s94, s%d" % swave)
    a("s_lshl_b32 s94, s94, 7")
    a("s_add_u32 s94, s94, 0x%x" % (TS_OFF + TS_CUR[0]))
    a("s_mov_b32 exec_lo, -1")
    a("s_mov_b32 exec_hi, 0")
    a("v_and_b32 v%d, 63, v0" % vt)
    a("v_lshlrev_b32 v%d, 2, v%d" % (vt, vt))
    a("buffer_store_dword v%d, v%d, s[%d:%d], s94 offen" % (v, vt, wsrd, wsrd + 3))
    a("s_waitcnt vmcnt(0)")
    a("s_mov_b64 exec, -1")

def zero_check(a, lbl, vflag, vaddr):
    a("s_movk_i32 s85, 20000")
    a.label(lbl)
    a("s_waitcnt vmcnt(0)")
    a("v_readfirstlane_b32 s69, v%d" % vflag)
    a("s_cmp_ge_u32 s69, 128")
    a("s_cbranch_scc1 %s_OK" % lbl)
    a("s_sub_u32 s85, s85, 1")
    a("s_cmp_eq_u32 s85, 0")
    a("s_cbranch_scc1 %s_OK" % lbl)
    a("buffer_load_dword v%d, v%d, s[52:55], 0 offen sc0 sc1" % (vflag, vaddr))
    a("s_branch %s" % lbl)
    a.label(lbl + "_OK")

def set_flag(a, soff, lbl):
    a("s_cmp_eq_u32 s26, 0")
    a("s_cbranch_scc0 %s" % lbl)
    a("v_mov_b32 v9, 0")
    a("v_mov_b32 v10, 1")
    a("s_mov_b64 exec, 1")
    a("buffer_store_dword v10, v9, s[36:39], s%d offen sc0 sc1" % soff)
    a("s_mov_b64 exec, -1")
    a.label(lbl)

def poll_flags(a, lbl, voff, vdst, mask, sleep=None):
    a("s_mov_b32 s88, 0x%x" % (mask & 0xffffffff))
    a("s_mov_b32 s89, 0x%x" % (mask >> 32))
    a("s_movk_i32 s85, 20000")
    a.label(lbl)
    a("buffer_load_dword v%d, v%d, s[36:39], 0 offen sc0 sc1" % (vdst, voff))
    a("s_waitcnt vmcnt(0)")
    a("v_cmp_eq_u32 vcc, 1, v%d" % vdst)
    a("s_nop 3")
    a("s_and_b64 s[86:87], vcc, s[88:89]")
    a("s_cmp_eq_u64 s[86:87], s[88:89]")
    a("s_cbranch_scc1 %s_OK" % lbl)
    a("s_sub_u32 s85, s85, 1")
    a("s_cmp_eq_u32 s85, 0")
    a("s_cbranch_scc1 %s_OK" % lbl)
    a("s_sleep %d" % (sleep or POLL_SLEEP))
    a("s_branch %s" % lbl)
    a.label(lbl + "_OK")

PF_FLAGS = ""
L2PF = True
PF_DIST = 2
LOOP_ALIGN = 0
LOOP_PAD = 0
PKSCALE = True
FUSED_SIMPLE = True
POLL_SLEEP = 4
PRE_WO = True
FUSED = False
WARMK = False
OUT_FLAGS = ""
TLBWARM = False
GW_QONLY = True
B_FIRST = True
TLB_IT = 3
PF_K2CODE = True
PF_START = 0
PRETOUCH = False
K2_NOATT = False
KV_MASK = True
K2_ROT = False
K2_NOMFMA = False
K2_NOMLP = False
ATT_PRIO = 3
WO_LDS = False
ATT_PRIO3 = None
MLP_PRIO = 0
ATT_PRIO2 = None
ST_FLAGS = "sc0 sc1"
RAMP = 3
L2PF2 = False
def gen_k1(a, name, code_bytes):
    a.begin_kernel(name)
    a("s_cmp_ge_u32 s2, 256")
    a("s_cbranch_scc1 %s" % ("K2_END" if FUSED else "K1_END"))
    a("s_load_dwordx16 s[4:19], s[0:1], 0")
    a("s_load_dwordx4 s[20:23], s[0:1], 64")
    a("s_load_dwordx2 s[24:25], s[0:1], 80")
    a("v_lshrrev_b32 v2, 6, v0")
    a("v_and_b32 v1, 63, v0")
    a("v_readfirstlane_b32 s26, v2")
    a("s_and_b32 s40, s2, 7")
    a("s_lshr_b32 s41, s2, 3")
    a("s_and_b32 s42, s40, 1")
    a("s_lshl_b32 s42, s42, 3")
    a("s_and_b32 s43, s41, 7")
    a("s_add_u32 s42, s42, s43")
    a("s_lshr_b32 s43, s40, 1")
    a("s_lshl_b32 s43, s43, 2")
    a("s_lshr_b32 s44, s41, 3")
    a("s_add_u32 s43, s43, s44")
    def srds(sv):
        a("s_waitcnt lgkmcnt(0)")
        stamp(a, 0, sv)
        srd(a, 28, 4, 5, S * D * 2)
        srd(a, 36, 24, 25, WS_SIZE)
        srd(a, 48, 18, 19, D * 2)
        srd(a, 52, 22, 23, 256)
    a("s_cmp_eq_u32 s43, 15")
    a("s_cbranch_scc1 K1_PREP")
    a("s_cmp_lt_u32 s26, 4")
    a("s_cbranch_scc1 K1_COMPUTE")

    a.c("loader waves")
    a("s_sub_u32 s27, s26, 4")
    a("s_lshr_b32 s44, s27, 1")
    a("s_lshl_b32 s47, s27, 5")
    a("v_lshrrev_b32 v2, 3, v1")
    a("v_add_u32 v2, s47, v2")
    a("v_mul_u32_u24 v2, 1280, v2")
    a("v_lshrrev_b32 v3, 4, v1")
    a("v_and_b32 v5, 7, v1")
    a("v_xor_b32 v3, v3, v5")
    a("v_lshlrev_b32 v3, 4, v3")
    a("v_add_u32 v16, v2, v3")
    a("v_xor_b32 v3, 64, v3")
    a("v_add_u32 v17, v2, v3")
    a("v_add_u32 v17, 10240, v17")
    a("v_add_u32 v18, 20480, v16")
    a("v_add_u32 v19, 20480, v17")
    a("s_movk_i32 s45, 3456")
    a("s_mul_i32 s46, s43, 384")
    a("s_cmp_lt_u32 s43, 9")
    a("s_cbranch_scc1 K1_LD_GO")
    a("s_movk_i32 s45, 3840")
    a("s_sub_u32 s46, s43, 9")
    a("s_mul_i32 s46, s46, 320")
    a("s_mul_i32 s47, s44, 1280")
    a("s_add_u32 s46, s46, s47")
    a("s_add_u32 s46, s46, 1280")
    a("s_sub_u32 s47, s43, 13")
    a("s_lshl_b32 s47, s47, 1")
    a("s_add_u32 s47, s47, s44")
    a("s_mul_i32 s47, s47, 320")
    a("s_cmp_lt_u32 s43, 13")
    a("s_cselect_b32 s46, s46, s47")
    a("s_and_b32 s46, s46, 0xffffff80")
    a.label("K1_LD_GO")
    a("s_and_b32 s47, s27, 1")
    a("s_mul_i32 s47, s47, 384")
    a("s_mov_b32 s64, 2731")
    a("s_lshl_b32 s63, s45, 3")
    for c in range(768): assert (c * 2731) >> 16 == c // 24
    for i in range(3):
        a("v_add_u32 v2, s47, v1")
        if i: a("v_add_u32 v2, %d, v2" % (64 * i))
        a("v_mul_u32_u24 v3, s64, v2")
        a("v_lshrrev_b32 v3, 16, v3")
        a("v_mul_u32_u24 v5, 24, v3")
        a("v_sub_u32 v5, v2, v5")
        a("v_bfe_u32 v6, v3, 1, 1")
        a("v_lshrrev_b32 v7, 2, v3")
        a("v_and_or_b32 v6, v7, 2, v6")
        a("v_lshrrev_b32 v7, 1, v5")
        a("v_xor_b32 v7, v7, v6")
        a("v_lshlrev_b32 v7, 5, v7")
        a("v_and_b32 v5, 1, v5")
        a("v_lshl_add_u32 v7, v5, 4, v7")
        a("v_mul_lo_u32 v3, v3, s45")
        a("v_add_u32 v%d, v3, v7" % (10 + i))
        a("v_xor_b32 v7, 64, v7")
        a("v_add3_u32 v%d, v3, v7, s63" % (13 + i))
    a("s_mul_i32 s65, s42, %d" % (128 * 1280))
    a("s_lshl_b32 s66, s45, 5")
    a("s_mul_i32 s67, s27, 6144")
    a("s_lshl_b32 s68, s27, 12")
    a("s_add_u32 s68, s68, %d" % A_BASE)
    srds(20)
    srd(a, 32, 6, 7, D * 3 * D * 2)
    a("s_cmp_lt_u32 s43, 9")
    a("s_cbranch_scc0 K1_LD_GO2")
    a("s_cmp_eq_u32 s44, 0")
    a("s_cselect_b32 s32, s12, s14")
    a("s_cselect_b32 s33, s13, s15")
    a("s_mov_b32 s34, 0x%x" % (D * F * 2))
    a.label("K1_LD_GO2")
    issued = []
    def issueB(t):
        a("s_mul_i32 s69, s66, %d" % t)
        a("s_add_u32 s69, s69, s46")
        for i in range(6):
            a("s_add_u32 m0, s67, %d" % ((t % 4) * B_SLOT + i * 1024))
            a("s_nop 0")
            a("buffer_load_dwordx4 v%d, s[32:35], s69 offen lds" % (10 + i))
            issued.append(("B", t))
    def issueA(T):
        a("s_add_u32 s70, s65, %d" % (T * 128))
        for i in range(4):
            a("s_add_u32 m0, s68, %d" % ((T % 3) * A_SLOT + i * 1024))
            a("s_nop 0")
            a("buffer_load_dwordx4 v%d, s[28:31], s70 offen lds" % (16 + i))
            issued.append(("A", T))
    stamp(a, 2, 20)
    if GW_QONLY:
        a("s_cmp_lt_u32 s43, 13")
        a("s_cbranch_scc1 K1_LD_NGW")
    a("v_lshlrev_b32 v2, 4, v1")
    a("s_mov_b32 m0, %d" % GW_BASE)
    a("v_add_u32 v3, 1024, v2")
    a("buffer_load_dwordx4 v2, s[48:51], 0 offen lds")
    a("s_mov_b32 m0, %d" % (GW_BASE + 1024))
    a("s_nop 0")
    a("buffer_load_dwordx4 v3, s[48:51], 0 offen lds")
    a.label("K1_LD_NGW")
    stamp(a, 8, 20)
    if B_FIRST:
        issueB(0); issueA(0)
    else:
        issueA(0); issueB(0)
    stamp(a, 10, 20)
    issueB(1)
    stamp(a, 11, 20)
    nextB, nextA = 2, 1
    if RAMP == 2:
        issueA(1)
        nextA = 2
    elif RAMP == 3:
        issueA(1); issueB(2)
        nextB, nextA = 3, 2
    elif not RAMP:
        issueA(1); issueB(2); issueB(3); issueA(2)
        nextB, nextA = 4, 3
    code_prefetch(a, name, "K2_END" if (PF_K2CODE or FUSED) else "K1_END", 65536 if (PF_K2CODE or FUSED) else code_bytes, 3, 4, 90, 27)
    issued.append(("P", 0))
    if PF_K2CODE or FUSED: issued.append(("P", 0))
    stamp(a, 3, 20)
    for t in range(21):
        if t <= 19:
            last = max(i for i, x in enumerate(issued) if x == ("B", t) or x == ("A", t // 2))
            n = len(issued) - 1 - last
            a("s_waitcnt vmcnt(%d)" % n)
        a("s_barrier")
        if t == 0: stamp(a, 1, 20)
        while nextA <= 9 and nextA - 3 <= t // 2 - 1 and nextA <= t // 2 + 2 and (nextA * 2 <= nextB + 1 or nextB > 19):
            issueA(nextA); nextA += 1
        while nextB <= 19 and nextB - 4 <= t - 1 and not (RAMP in (2, 3) and t == 0 and nextB > RAMP):
            issueB(nextB); nextB += 1
            while nextA <= 9 and nextA - 3 <= t // 2 - 1 and nextA * 2 <= nextB:
                issueA(nextA); nextA += 1
    assert nextA == 10 and nextB == 20
    if PRETOUCH:
        a("v_mov_b32 v2, 4")
        a("buffer_load_dword v3, v2, s[52:55], 0 offen sc0 sc1")
        a("s_and_b32 s71, s2, 7")
        a("s_lshr_b32 s71, s71, 2")
        a("s_waitcnt vmcnt(0)")
        a("v_readfirstlane_b32 s72, v3")
        a("s_cmp_lt_u32 s41, 24")
        a("s_cbranch_scc0 K1_LD_END")
        a("s_cmp_eq_u32 s72, 128")
        a("s_cbranch_scc0 K1_LD_END")
        a("s_lshl_b32 s73, s41, 2")
        a("s_add_u32 s73, s73, s27")
        a("v_lshlrev_b32 v2, 7, v1")
        a("s_mul_i32 s74, s71, %d" % (20 * 54 * 1024))
        a("s_mul_i32 s75, s73, %d" % (90 * 128))
        a("s_add_u32 s74, s74, s75")
        a("s_add_u32 s74, s74, 0x%x" % BF_OFF)
        a("buffer_load_dword v4, v2, s[36:39], s74 offen")
        a("v_min_u32 v3, 25, v1")
        a("v_lshlrev_b32 v3, 7, v3")
        a("s_add_u32 s74, s74, 8192")
        a("buffer_load_dword v4, v3, s[36:39], s74 offen")
        a("s_mul_i32 s74, s71, %d" % (20 * 20 * 1024))
        a("s_mul_i32 s75, s73, %d" % (34 * 128))
        a("s_min_u32 s75, s75, %d" % ((3200 - 34) * 128))
        a("s_add_u32 s74, s74, s75")
        a("s_add_u32 s74, s74, 0x%x" % WOF_OFF)
        a("v_min_u32 v3, 33, v1")
        a("v_lshlrev_b32 v3, 7, v3")
        a("buffer_load_dword v4, v3, s[36:39], s74 offen")
        a.label("K1_LD_END")
    stamp_flush(a, 20, 21, 2, 26, 8)
    if FUSED:
        a("s_mov_b32 s83, 1")
        a("s_cmp_lt_u32 s43, 9")
        a("s_cbranch_scc1 P2_ENTRY")
        a("s_cmp_lt_u32 s43, 13")
        a("s_cbranch_scc0 P2_ENTRY")
        a("s_barrier")
        a("s_barrier")
        a("s_branch P2_ENTRY")
    else:
        a("s_endpgm")

    a.label("K1_COMPUTE")
    a("s_lshr_b32 s44, s26, 1")
    a("s_and_b32 s45, s26, 1")
    a("s_cmp_lt_u32 s43, 9")
    a("s_cbranch_scc0 K1_C_QKV")
    a("s_mul_i32 s46, s45, 6")
    a("s_mov_b32 s47, 0")
    a("s_branch K1_C_GO")
    a.label("K1_C_QKV")
    a("s_cmp_lt_u32 s43, 13")
    a("s_cbranch_scc0 K1_C_Q")
    a("s_sub_u32 s46, s43, 9")
    a("s_and_b32 s46, s46, 1")
    a("s_lshl_b32 s46, s46, 1")
    a("s_mul_i32 s47, s45, 5")
    a("s_add_u32 s46, s46, s47")
    a("s_mov_b32 s47, 0")
    a("s_branch K1_C_GO")
    a.label("K1_C_Q")
    a("s_lshl_b32 s46, s45, 1")
    a("s_mul_i32 s47, s45, 12288")
    a.label("K1_C_GO")
    VA, VB = 2, 4
    a("v_and_b32 v8, 15, v1")
    a("v_lshrrev_b32 v9, 4, v1")
    a("s_lshl_b32 s64, s44, 13")
    a("s_add_u32 s64, s64, %d" % A_BASE)
    a("v_lshrrev_b32 v10, 1, v8")
    a("v_xor_b32 v11, v9, v10")
    a("v_lshlrev_b32 v11, 4, v11")
    a("v_lshl_add_u32 v11, v8, 7, v11")
    a("v_add_u32 v2, s64, v11")
    a("v_xor_b32 v3, 64, v2")
    a("v_lshrrev_b32 v10, 2, v8")
    a("v_lshl_add_u32 v11, v9, 3, v10")
    a("v_mul_u32_u24 v11, 384, v11")
    a("v_and_b32 v12, 3, v1")
    a("v_lshl_add_u32 v11, v12, 3, v11")
    a("v_add_u32 v11, s47, v11")
    a("v_lshrrev_b32 v12, 1, v10")
    a("v_and_b32 v13, 1, v9")
    a("v_lshl_or_b32 v12, v13, 1, v12")
    for jp in range(4):
        a("s_add_u32 s64, s46, %d" % jp)
        a("s_and_b32 s65, s64, 3")
        a("s_lshr_b32 s64, s64, 2")
        a("s_lshl_b32 s64, s64, 7")
        a("v_xor_b32 v13, s65, v12")
        a("v_lshl_add_u32 v13, v13, 5, v11")
        a("v_add_u32 v%d, s64, v13" % (VB + jp))
    def pf_setup():
        a("s_and_b32 s76, s26, 1")
        a("s_movk_i32 s77, 3456")
        a("s_mul_i32 s78, s43, 384")
        srd(a, 32, 6, 7, D * 3 * D * 2)
        a("s_cmp_lt_u32 s43, 9")
        a("s_cbranch_scc0 K1_PF_QKV")
        a("s_cmp_eq_u32 s76, 0")
        a("s_cselect_b32 s32, s12, s14")
        a("s_cselect_b32 s33, s13, s15")
        a("s_mov_b32 s34, 0x%x" % (D * F * 2))
        a("s_branch K1_PF_GO")
        a.label("K1_PF_QKV")
        a("s_movk_i32 s77, 3840")
        a("s_sub_u32 s78, s43, 9")
        a("s_mul_i32 s78, s78, 320")
        a("s_mul_i32 s79, s76, 1280")
        a("s_add_u32 s78, s78, s79")
        a("s_add_u32 s78, s78, 1280")
        a("s_sub_u32 s79, s43, 13")
        a("s_lshl_b32 s79, s79, 1")
        a("s_add_u32 s79, s79, s76")
        a("s_mul_i32 s79, s79, 320")
        a("s_cmp_lt_u32 s43, 13")
        a("s_cselect_b32 s78, s78, s79")
        a("s_and_b32 s78, s78, 0xffffff80")
        a.label("K1_PF_GO")
        a("v_min_u32 v10, 23, v1")
        a("v_mul_u32_u24 v11, 0x5556, v10")
        a("v_lshrrev_b32 v11, 16, v11")
        a("v_mul_u32_u24 v12, 3, v11")
        a("v_sub_u32 v12, v10, v12")
        a("s_and_b32 s80, s41, 7")
        a("s_lshl_b32 s80, s80, 3")
        a("v_add_u32 v11, s80, v11")
        a("v_mul_lo_u32 v11, v11, s77")
        a("v_lshl_add_u32 v12, v12, 7, v11")
        a("s_lshl_b32 s79, s77, 6")
        a("s_cmp_lt_u32 s26, 2")
        a("s_cbranch_scc1 K1_PF_W")
        a("s_lshr_b32 s80, s41, 3")
        a("s_lshl_b32 s80, s80, 5")
        a("s_lshl_b32 s81, s76, 4")
        a("s_add_u32 s80, s80, s81")
        a("v_min_u32 v10, 15, v1")
        a("v_add_u32 v10, s80, v10")
        a("v_mul_u32_u24 v12, 1280, v10")
        a("s_mul_i32 s78, s42, %d" % (128 * 1280))
        a("s_movk_i32 s79, 128")
        a("s_mov_b32 s32, s4")
        a("s_mov_b32 s33, s5")
        a("s_mov_b32 s34, 0x%x" % (S * D * 2))
        a.label("K1_PF_W")
        if PF_START:
            a("s_mul_i32 s80, s79, %d" % PF_START)
            a("s_add_u32 s78, s78, s80")
        for _ in range(PF_DIST - PF_START): pf_issue()
    def pf_issue():
        a("buffer_load_dword v13, v12, s[32:35], s78 offen %s" % PF_FLAGS)
        a("s_add_u32 s78, s78, s79")
    srds(15)
    if L2PF: pf_setup()
    if TLBWARM:
        srd(a, 84, 20, 21, S * D * 2)
        a("v_min_u32 v11, 15, v1")
        a("v_lshlrev_b32 v11, 20, v11")
        a("s_cmp_eq_u32 s41, 0")
        a("s_cselect_b32 s82, 1, 0")
        a("s_cmp_eq_u32 s26, 3")
        a("s_cselect_b32 s82, s82, 0")
    for r in range(64, 256):
        a("v_mov_b32 v%d, 0" % r)
    a("s_mov_b32 s70, 0")
    a("s_mov_b32 s71, 10")
    a("s_mov_b32 s75, 49152")
    a("s_cmp_lt_u32 s43, 9")
    a("s_cbranch_scc1 K1_GU")
    a("s_cmp_lt_u32 s43, 13")
    a("s_cbranch_scc1 K1_KV")
    a("s_branch K1_Q")

    ABUF = [16, 32]
    BR = 48
    ACC = 64

    def mainloop(role):
        q = LdsQ(a)
        if role == "gu":
            frags = [(p, j) for j in range(6) for p in range(2)]
        elif role == "kv":
            frags = [(p, j) for j in range(5) for p in range(2)]
        else:
            frags = [(0, j) for j in range(10)]
        nB = len(frags)
        def accreg(fi, rt): return ACC + (fi * 4 + rt) * 4
        def readB(J, par):
            p, j = frags[J]
            slot = (par * nB + J) % 4
            out = []
            for h in range(2):
                off = (j >> 2) * 128 + h * 1536 + p * 12288 + par * B_SLOT
                r = BR + slot * 4 + h * 2
                out.append((("B", par, J), "ds_read_b64_tr_b16 v[%d:%d], v%d offset:%d" % (r, r + 1, VB + (j & 3), off)))
            return out
        def readA(par):
            out = []
            for rt in range(4):
                r = ABUF[par] + rt * 4
                out.append((("A", par, rt), "ds_read_b128 v[%d:%d], v%d offset:%d" % (r, r + 3, VA + par, rt * 2048)))
            if role == "q":
                out.append((("G", par), "ds_read_b128 v[%d:%d], v14 offset:%d" % (GW[par], GW[par] + 3, 64 * par)))
            return out
        def mfma(par, J, rt):
            slot = (par * nB + J) % 4
            b = BR + slot * 4; x = ABUF[par] + rt * 4; c = accreg(J, rt)
            if role == "kv":
                return "v_mfma_f32_16x16x32_bf16 v[%d:%d], v[%d:%d], v[%d:%d], v[%d:%d]" % (c, c + 3, x, x + 3, b, b + 3, c, c + 3)
            return "v_mfma_f32_16x16x32_bf16 v[%d:%d], v[%d:%d], v[%d:%d], v[%d:%d]" % (c, c + 3, b, b + 3, x, x + 3, c, c + 3)
        GW = [ACC + 176, ACC + 180]
        LOG = ACC + 160
        if role == "q":
            a("v_lshlrev_b32 v14, 4, v9")
            a("v_add_u32 v14, %d, v14" % GW_BASE)
        stamp(a, 2, 15)
        a("s_barrier")
        stamp(a, 1, 15)
        stampc(a, 5, 15)
        for tag, t in readA(0) + readB(0, 0) + readB(1, 0) + readB(2, 0):
            q.issue(tag, t)
        state0 = list(q.q)
        lbl = "K1_LOOP_" + role
        if LOOP_ALIGN: a.lines.append(".p2align %d" % LOOP_ALIGN)
        for _ in range(LOOP_PAD): a("s_nop 0")
        a.label(lbl)
        if STAMP:
            a("s_memrealtime s[94:95]")
            a("s_sub_u32 m0, 18, s71")
            a("s_waitcnt lgkmcnt(0)")
            a("v_writelane_b32 v15, s94, m0")
        if L2PF: pf_issue()
        if TLBWARM:
            a("s_cmp_eq_u32 s71, %d" % (10 - TLB_IT))
            a("s_cselect_b32 s83, s82, 0")
            a("s_cmp_eq_u32 s83, 1")
            a("s_cbranch_scc0 %s_NT" % lbl)
            a("buffer_load_dword v13, v11, s[36:39], 0 offen")
            a("buffer_load_dword v13, v11, s[84:87], 0 offen")
            a.label(lbl + "_NT")
        for par in range(2):
            for J in range(nB):
                reads = []
                pre = []
                if J + 3 <= nB - 1:
                    reads = readB(J + 3, par)
                if J == nB - 2:
                    if role == "q":
                        for rt in range(4):
                            x = ABUF[par] + rt * 4; c = LOG + rt * 4
                            a("v_mfma_f32_16x16x32_bf16 v[%d:%d], v[%d:%d], v[%d:%d], v[%d:%d]" % (c, c + 3, GW[par], GW[par] + 3, x, x + 3, c, c + 3))
                    q.drain()
                    a("s_barrier")
                    if par == 1:
                        for jp in range(4):
                            a("v_add_u32 v%d, s75, v%d" % (VB + jp, VB + jp))
                        a("s_sub_u32 s75, 0, s75")
                        a("s_add_u32 s70, s70, 16384")
                        a("s_cmp_eq_u32 s70, 49152")
                        a("s_cselect_b32 s73, s70, 0")
                        a("s_sub_u32 s70, s70, s73")
                        a("s_sub_u32 s73, 16384, s73")
                        a("v_add_u32 v2, s73, v2")
                        a("v_add_u32 v3, s73, v3")
                        if role == "q": a("v_add_u32 v14, 128, v14")
                    reads = readA(1 - par) + readB(0, 1 - par) + readB(1, 1 - par)
                if J == nB - 1:
                    reads = readB(2, 1 - par)
                q.need([("B", par, J)] + ([("A", par, 0)] if J == 0 else []))
                for rt in range(4):
                    if J == 0 and rt > 0: q.need([("A", par, rt)])
                    a(mfma(par, J, rt))
                    k = (len(reads) + (3 - rt)) // (4 - rt) if reads else 0
                    for _ in range(k):
                        tag, t = reads.pop(0); q.issue(tag, t)
                assert not reads
        a("s_sub_u32 s71, s71, 1")
        a("s_cmp_lg_u32 s71, 0")
        a("s_cbranch_scc1 %s" % lbl)
        assert q.q == state0, (q.q, state0)
        a("s_waitcnt lgkmcnt(0) vmcnt(0)")
        a("s_nop 7")
        stamp(a, 3, 15)
        stampc(a, 6, 15)
        return accreg

    a.label("K1_GU")
    accreg = mainloop("gu")
    if FUSED:
        a("v_mov_b32 v9, 0")
        a("buffer_load_dword v10, v9, s[52:55], 0 offen sc0 sc1")
    a("s_mov_b32 s64, 0x%x" % NLOG2E); a("s_mov_b32 s65, 0x%x" % NLOG2E)
    a("s_mov_b32 s66, 1.0"); a("s_mov_b32 s67, 1.0")
    a("s_lshl_b32 s68, s42, 3")
    a("s_lshl_b32 s69, s44, 2")
    a("s_add_u32 s68, s68, s69")
    a("s_mul_i32 s68, s68, 74")
    a("s_mul_i32 s69, s43, 6")
    a("s_add_u32 s68, s68, s69")
    a("s_mul_i32 s69, s45, 3")
    a("s_add_u32 s68, s68, s69")
    a("s_lshl_b32 s68, s68, 10")
    if AF_OFF: a("s_add_u32 s68, s68, 0x%x" % AF_OFF)
    a("v_lshlrev_b32 v8, 4, v1")
    blk = 0
    for rt in range(4):
        for jp in range(3):
            T = 16 + (blk % 2) * 16
            O = T + 8
            for half in range(2):
                j = 2 * jp + half
                gq = accreg(j * 2 + 0, rt); uq = accreg(j * 2 + 1, rt)
                for e in range(0, 4, 2):
                    t = T + half * 4 + e
                    a("v_pk_mul_f32 v[%d:%d], v[%d:%d], s[64:65]" % (t, t + 1, gq + e, gq + e + 1))
            for x in range(8): a("v_exp_f32 v%d, v%d" % (T + x, T + x))
            for x in range(0, 8, 2): a("v_pk_add_f32 v[%d:%d], v[%d:%d], s[66:67]" % (T + x, T + x + 1, T + x, T + x + 1))
            for x in range(8): a("v_rcp_f32 v%d, v%d" % (T + x, T + x))
            for half in range(2):
                j = 2 * jp + half
                uq = accreg(j * 2 + 1, rt)
                for e in range(0, 4, 2):
                    t = T + half * 4 + e
                    a("v_pk_mul_f32 v[%d:%d], v[%d:%d], v[%d:%d]" % (t, t + 1, t, t + 1, uq + e, uq + e + 1))
            for x in range(4):
                a("v_cvt_pk_bf16_f32 v%d, v%d, v%d" % (O + x, T + 2 * x, T + 2 * x + 1))
            a("s_add_u32 s69, s68, %d" % ((rt * 74 + jp) * 1024))
            a("buffer_store_dwordx4 v[%d:%d], v8, s[36:39], s69 offen %s" % (O, O + 3, ST_FLAGS))
            blk += 1
    stamp_flush(a, 15, 14, 2, 26, 8)
    if FUSED:
        zero_check(a, "K1_GU_ZC", 10, 9)
        a("s_barrier")
        a("s_lshl_b32 s68, s42, 6")
        a("s_lshl_b32 s69, s43, 2")
        a("s_add_u32 s68, s68, s69")
        a("s_add_u32 s68, s68, 0x%x" % FL_OFF)
        set_flag(a, 68, "K1_GU_F")
        a("s_mov_b32 s83, 0")
        a("s_mov_b32 s82, 0")
        a("s_branch P2_ENTRY")
    else:
        a("s_endpgm")

    a.label("K1_Q")
    accreg = mainloop("q")
    if FUSED:
        a("v_mov_b32 v12, 0")
        a("buffer_load_dword v13, v12, s[52:55], 0 offen sc0 sc1")
    a("s_mov_b32 s64, 0x%x" % LOG2E); a("s_mov_b32 s65, 0x%x" % LOG2E)
    a("s_mov_b32 s66, 0x%x" % EPS6); a("s_mov_b32 s67, 0x%x" % EPS6)
    a("s_lshl_b32 s68, s42, 3")
    a("s_lshl_b32 s69, s44, 2")
    a("s_add_u32 s68, s68, s69")
    a("s_lshl_b32 s74, s68, 6")
    a("s_mul_i32 s68, s68, 74")
    a("s_sub_u32 s69, s43, 13")
    a("s_mul_i32 s69, s69, 10")
    a("s_add_u32 s68, s68, s69")
    a("s_mul_i32 s69, s45, 5")
    a("s_add_u32 s68, s68, s69")
    a("s_add_u32 s68, s68, 54")
    a("s_lshl_b32 s68, s68, 10")
    if AF_OFF: a("s_add_u32 s68, s68, 0x%x" % AF_OFF)
    a("v_lshlrev_b32 v8, 4, v1")
    def phi_pairs(srcs, T):
        n = len(srcs)
        U = T + 2 * n
        for x, s in enumerate(srcs):
            a("v_pk_mul_f32 v[%d:%d], v[%d:%d], s[64:65]" % (T + 2 * x, T + 2 * x + 1, s, s + 1))
        for x in range(2 * n):
            a("v_exp_f32 v%d, v%d clamp" % (T + x, T + x))
        for x, s in enumerate(srcs):
            a("v_max_f32 v%d, 0, v%d" % (U + 2 * x, s))
            a("v_max_f32 v%d, 0, v%d" % (U + 2 * x + 1, s + 1))
        for x in range(n):
            a("v_pk_add_f32 v[%d:%d], v[%d:%d], v[%d:%d]" % (T + 2 * x, T + 2 * x + 1, T + 2 * x, T + 2 * x + 1, U + 2 * x, U + 2 * x + 1))
        for x in range(n):
            a("v_pk_add_f32 v[%d:%d], v[%d:%d], s[66:67]" % (T + 2 * x, T + 2 * x + 1, T + 2 * x, T + 2 * x + 1))
    blk = 0
    for rt in range(4):
        for jp in range(5):
            T = 16 + (blk % 2) * 20
            O = T + 16
            srcs = [accreg(2 * jp + half, rt) + e for half in range(2) for e in (0, 2)]
            phi_pairs(srcs, T)
            for x in range(4):
                a("v_cvt_pk_bf16_f32 v%d, v%d, v%d" % (O + x, T + 2 * x, T + 2 * x + 1))
            a("s_add_u32 s69, s68, %d" % ((rt * 74 + jp) * 1024))
            a("buffer_store_dwordx4 v[%d:%d], v8, s[36:39], s69 offen %s" % (O, O + 3, ST_FLAGS))
            blk += 1
    a("s_cmp_eq_u32 s43, 13")
    a("s_cbranch_scc0 K1_Q_END")
    a("s_cmp_eq_u32 s45, 0")
    a("s_cbranch_scc0 K1_Q_END")
    a("v_cmp_gt_u32 vcc, 16, v1")
    a("s_and_saveexec_b64 s[76:77], vcc")
    a("v_lshlrev_b32 v9, 2, v1")
    a("s_mov_b32 s64, 0x%x" % NLOG2E)
    a("s_add_u32 s74, s74, 0x%x" % G_OFF)
    for rt in range(4):
        c = ACC + 160 + rt * 4
        a("v_mul_f32 v%d, s64, v%d" % (16 + rt, c))
    for rt in range(4): a("v_exp_f32 v%d, v%d" % (16 + rt, 16 + rt))
    a("s_nop 0")
    for rt in range(4): a("v_add_f32 v%d, 1.0, v%d" % (16 + rt, 16 + rt))
    for rt in range(4): a("v_rcp_f32 v%d, v%d" % (16 + rt, 16 + rt))
    a("s_nop 0")
    for rt in range(4):
        a("buffer_store_dword v%d, v9, s[36:39], s74 offen offset:%d %s" % (16 + rt, rt * 64, ST_FLAGS))
    a.label("K1_Q_END")
    a("s_mov_b64 exec, -1")
    stamp_flush(a, 15, 14, 2, 26, 8)
    if FUSED:
        zero_check(a, "K1_Q_ZC", 13, 12)
        a("s_barrier")
        a("s_lshl_b32 s68, s42, 6")
        a("s_sub_u32 s69, s43, 4")
        a("s_lshl_b32 s69, s69, 2")
        a("s_add_u32 s68, s68, s69")
        a("s_add_u32 s68, s68, 0x%x" % FL_OFF)
        set_flag(a, 68, "K1_Q_F")
        a("s_mov_b32 s83, 0")
        a("s_mov_b32 s82, 0")
        a("s_branch P2_ENTRY")
    else:
        a("s_endpgm")

    a.label("K1_KV")
    accreg = mainloop("kv")
    a("v_mov_b32 v9, 0")
    a("buffer_load_dword v10, v9, s[52:55], 0 offen sc0 sc1")
    a("s_mov_b32 s64, 0x%x" % LOG2E); a("s_mov_b32 s65, 0x%x" % LOG2E)
    a("s_mov_b32 s66, 0x%x" % EPS6); a("s_mov_b32 s67, 0x%x" % EPS6)
    def fragreg(p, rp, j): return accreg(j * 2 + p, 2 * rp)
    res = [accreg(fi, 1) for fi in range(10)] + [ACC + 160 + 4 * x for x in range(8)]
    ONES = 48
    for x in range(4): a("v_mov_b32 v%d, 0x3f803f80" % (ONES + x))
    def conv_ops(rp):
        global_lines = a.lines
        a.lines = []
        blk = 0
        for j in range(5):
            T = 16 + (blk % 2) * 16
            srcs = [accreg(j * 2, 2 * rp + half) + e for half in range(2) for e in (0, 2)]
            phi_pairs(srcs, T)
            o = fragreg(0, rp, j)
            for x in range(4):
                a("v_cvt_pk_bf16_f32 v%d, v%d, v%d" % (o + x, T + 2 * x, T + 2 * x + 1))
            s0 = accreg(j * 2 + 1, 2 * rp); s1 = accreg(j * 2 + 1, 2 * rp + 1)
            a("v_cvt_pk_bf16_f32 v%d, v%d, v%d" % (s0, s0, s0 + 1))
            a("v_cvt_pk_bf16_f32 v%d, v%d, v%d" % (s0 + 1, s0 + 2, s0 + 3))
            a("v_cvt_pk_bf16_f32 v%d, v%d, v%d" % (s0 + 2, s1, s1 + 1))
            a("v_cvt_pk_bf16_f32 v%d, v%d, v%d" % (s0 + 3, s1 + 2, s1 + 3))
            blk += 1
        out = a.lines
        a.lines = global_lines
        return [l.strip() for l in out]
    def kv_mfmas(rp):
        out = []
        for ti, (dt, et) in enumerate(TRI):
            c = res[ti]
            A_ = fragreg(1, rp, et); B_ = fragreg(0, rp, dt)
            out.append("v_mfma_f32_16x16x32_bf16 v[%d:%d], v[%d:%d], v[%d:%d], %s" % (c, c + 3, A_, A_ + 3, B_, B_ + 3, "0" if rp == 0 else "v[%d:%d]" % (c, c + 3)))
        for dt in range(5):
            c = res[13 + dt]
            B_ = fragreg(0, rp, dt)
            out.append("v_mfma_f32_16x16x32_bf16 v[%d:%d], v[%d:%d], v[%d:%d], %s" % (c, c + 3, ONES, ONES + 3, B_, B_ + 3, "0" if rp == 0 else "v[%d:%d]" % (c, c + 3)))
        return out
    for t in conv_ops(0): a(t)
    a("s_nop 1")
    c1 = conv_ops(1); m0_ = kv_mfmas(0)
    per = len(c1) // len(m0_)
    for k_, m_ in enumerate(m0_):
        a(m_)
        for t in c1[k_ * per:(k_ + 1) * per]: a(t)
    for t in c1[len(m0_) * per:]: a(t)
    a("s_barrier")
    a("s_nop 0")
    for t in kv_mfmas(1): a(t)
    a("s_lshl_b32 s68, s45, 1")
    a("s_add_u32 s68, s68, s44")
    a("s_mul_i32 s68, s68, %d" % (18 * 1024))
    a("v_lshlrev_b32 v8, 4, v1")
    a("v_add_u32 v8, s68, v8")
    zero_check(a, "K1_KV_POLL", 10, 9)
    a("s_nop 3")
    for ti in range(18):
        c = res[ti]
        a("ds_write_b128 v8, v[%d:%d] offset:%d" % (c, c + 3, ti * 1024))
    a("s_mul_i32 s68, s45, %d" % (36 * 1024))
    a("v_lshlrev_b32 v8, 2, v1")
    a("v_add_u32 v9, s68, v8")
    a("v_lshl_add_u32 v10, v1, 4, s68")
    a("s_sub_u32 s68, s43, 9")
    a("s_mul_i32 s69, s68, 26")
    a("s_mul_i32 s70, s45, 13")
    a("s_add_u32 s69, s69, s70")
    a("s_lshl_b32 s69, s69, 10")
    a("s_add_u32 s69, s69, 0x%x" % KV_OFF)
    a("s_lshl_b32 s68, s68, 1")
    a("s_add_u32 s68, s68, s45")
    a("s_mul_i32 s68, s68, 320")
    a("s_add_u32 s68, s68, 0x%x" % Z_OFF)
    a("s_waitcnt lgkmcnt(0)")
    a("s_barrier")
    stamp(a, 4, 15)
    a("s_cmp_eq_u32 s44, 0")
    a("s_cbranch_scc0 K1_KV_R1")
    for rh in range(2):
        if rh == 1: a.label("K1_KV_R1")
        items = []
        tiles = list(range(0, 7)) if rh == 0 else list(range(7, 13))
        for ti in tiles:
            dt, et = TRI[ti]
            for q_ in range(4):
                m = 0
                for p in range(64):
                    if head(16 * dt + (p >> 2)) == head(16 * et + 4 * q_ + (p & 3)): m |= 1 << p
                if m: items.append(("kv", ti, q_, m))
        if rh == 1:
            for dt in range(5): items.append(("z", 13 + dt, 0, 0xffff))
        for n, (kind, ti, q_, m) in enumerate(items):
            r = 16 + 2 * n
            if kind == "kv":
                a("ds_read2st64_b32 v[%d:%d], v9 offset0:%d offset1:%d" % (r, r + 1, ti * 4 + q_, 72 + ti * 4 + q_))
            else:
                a("ds_read2st64_b32 v[%d:%d], v10 offset0:%d offset1:%d" % (r, r + 1, ti * 4, 72 + ti * 4))
        assert 16 + 2 * len(items) <= 120
        for n, (kind, ti, q_, m) in enumerate(items):
            r = 16 + 2 * n
            rem = len(items) - 1 - n
            a("s_waitcnt lgkmcnt(%d)" % min(15, rem))
            a("v_add_f32 v%d, v%d, v%d" % (r, r, r + 1))
            a("s_mov_b32 exec_lo, 0x%x" % (m & 0xffffffff))
            a("s_mov_b32 exec_hi, 0x%x" % (m >> 32))
            if kind == "kv":
                off = ti * 1024 + q_ * 256
                a("s_add_u32 s70, s69, %d" % (off & ~4095))
                a("buffer_atomic_add_f32 v%d, v8, s[36:39], s70 offen offset:%d" % (r, off & 4095))
            else:
                a("buffer_atomic_add_f32 v%d, v8, s[36:39], s68 offen offset:%d" % (r, (ti - 13) * 64))
            a("s_mov_b64 exec, -1")
        stamp_flush(a, 15, 14, 2, 26, 8)
        if FUSED:
            if rh == 0: a("s_branch K1_KV_FIN")
        else:
            a("s_endpgm")
    if FUSED:
        a.label("K1_KV_FIN")
        a("s_waitcnt vmcnt(0)")
        a("s_barrier")
        a("s_lshl_b32 s68, s42, 2")
        a("s_add_u32 s68, s68, s43")
        a("s_sub_u32 s68, s68, 9")
        a("s_lshl_b32 s68, s68, 2")
        a("s_add_u32 s68, s68, 0x%x" % (FL_OFF + 1024))
        set_flag(a, 68, "K1_KV_F")
        a("s_mov_b32 s83, 0")
        a("s_mov_b32 s82, 0")
        a("s_branch P2_ENTRY")

    a.label("K1_PREP")
    srds(40)
    srd(a, 56, 16, 17, F * D * 2)
    srd(a, 60, 8, 9, D * D * 2)
    a("s_lshl_b32 s44, s42, 3")
    a("s_add_u32 s44, s44, s26")
    a("v_mov_b32 v4, 0"); a("v_mov_b32 v5, 0"); a("v_mov_b32 v6, 0"); a("v_mov_b32 v7, 0")
    a("v_lshlrev_b32 v8, 4, v1")
    a("s_cmp_lt_u32 s44, %d" % (ZERO_BYTES // 1024))
    a("s_cbranch_scc0 K1_PREP_NZ")
    a("s_lshl_b32 s45, s44, 10")
    a("s_add_u32 s45, s45, 0x%x" % KV_OFF)
    a("buffer_store_dwordx4 v[4:7], v8, s[36:39], s45 offen sc0 sc1")
    a("s_waitcnt vmcnt(0)")
    a.label("K1_PREP_NZ")
    a("v_mov_b32 v9, 0")
    a("v_mov_b32 v10, 1")
    a("s_mov_b64 exec, 1")
    a("buffer_atomic_add v10, v9, s[52:55], 0 offen sc1")
    a("s_mov_b64 exec, -1")
    a("v_lshrrev_b32 v2, 3, v1")
    a("v_mul_u32_u24 v2, 1280, v2")
    a("v_and_b32 v3, 7, v1")
    a("v_lshl_add_u32 v10, v3, 4, v2")
    for i in range(1, 4): a("v_add_u32 v%d, %d, v10" % (10 + i, i * 8 * 1280))
    a("v_lshrrev_b32 v2, 4, v1")
    a("v_and_b32 v3, 15, v1")
    a("v_lshrrev_b32 v3, 2, v3")
    a("v_lshl_add_u32 v2, v2, 2, v3")
    a("v_lshlrev_b32 v2, 7, v2")
    a("v_and_b32 v3, 3, v1")
    a("v_lshl_add_u32 v14, v3, 3, v2")
    a("s_mul_i32 s46, s26, 12288")
    a("v_add_u32 v14, s46, v14")
    def prep_batch(tasks, lbl):
        skip = []
        for n, (sr, total, nks, rnd, dst) in enumerate(tasks):
            a("s_add_u32 s%d, s44, %d" % (64 + n, 128 * rnd))
            a("s_cmp_lt_u32 s%d, %d" % (64 + n, total))
            a("s_cselect_b32 s%d, s%d, 0" % (64 + n, 64 + n))
            a("s_cselect_b32 s%d, 1, 0" % (80 + n))
            a("s_mul_hi_u32 s%d, s%d, %d" % (68 + n, 64 + n, (1 << 32) // 10 + 1))
            a("s_mul_i32 s72, s%d, 10" % (68 + n))
            a("s_sub_u32 s%d, s%d, s72" % (64 + n, 64 + n))
            a("s_mul_i32 s72, s%d, %d" % (68 + n, 32 * 1280))
            a("s_lshl_b32 s73, s%d, 7" % (64 + n))
            a("s_add_u32 s72, s72, s73")
            for i in range(4):
                a("s_add_u32 m0, s46, %d" % (n * 4096 + i * 1024))
                a("s_nop 0")
                a("buffer_load_dwordx4 v%d, s[%d:%d], s72 offen lds" % (10 + i, sr, sr + 3))
        for n, (sr, total, nks, rnd, dst) in enumerate(tasks):
            a("s_waitcnt vmcnt(%d)" % (4 * (len(tasks) - 1 - n) + 4 * n))
            for j in range(4):
                for h in range(2):
                    r = 16 + j * 4 + h * 2
                    a("ds_read_b64_tr_b16 v[%d:%d], v14 offset:%d" % (r, r + 1, n * 4096 + h * 2048 + j * 32))
            a("s_lshl_b32 s72, s%d, 2" % (64 + n))
            a("s_mul_i32 s72, s72, %d" % nks)
            a("s_add_u32 s72, s72, s%d" % (68 + n))
            a("s_lshl_b32 s72, s72, 10")
            a("s_add_u32 s72, s72, 0x%x" % dst)
            a("s_cmp_eq_u32 s%d, 1" % (80 + n))
            a("s_cselect_b32 s72, s72, 0x%x" % JUNK_OFF)
            a("s_waitcnt lgkmcnt(0)")
            for j in range(4):
                a("buffer_store_dwordx4 v[%d:%d], v8, s[36:39], s72 offen %s" % (16 + j * 4, 16 + j * 4 + 3, ST_FLAGS))
                if j < 3: a("s_add_u32 s72, s72, %d" % (nks * 1024))
            a("s_nop 1")
        a("s_waitcnt vmcnt(0)")
    prep_batch([(56, 540, 54, 0, BF_OFF), (56, 540, 54, 1, BF_OFF), (56, 540, 54, 2, BF_OFF)], "b0")
    prep_batch([(56, 540, 54, 3, BF_OFF), (56, 540, 54, 4, BF_OFF), (60, 200, 20, 0, WOF_OFF)], "b1")
    prep_batch([(60, 200, 20, 1, WOF_OFF)], "b2")
    if not FUSED:
        a("v_mov_b32 v9, 4")
        a("v_mov_b32 v10, 1")
        a("s_mov_b64 exec, 1")
        a("buffer_atomic_add v10, v9, s[52:55], 0 offen sc1")
        a("s_mov_b64 exec, -1")
    stamp_flush(a, 40, 41, 2, 26, 8)
    if FUSED:
        a("v_mov_b32 v9, 0")
        a("buffer_load_dword v10, v9, s[52:55], 0 offen sc0 sc1")
        zero_check(a, "K1_P_ZC", 10, 9)
        a("s_barrier")
        a("s_lshl_b32 s68, s42, 2")
        a("s_add_u32 s68, s68, 0x%x" % (FL_OFF + 1280))
        set_flag(a, 68, "K1_P_F")
        a("s_mov_b32 s83, 0")
        a("s_mov_b32 s82, 1")
        a("s_branch P2_ENTRY")
        return
    a.label("K1_END")
    a("s_endpgm")
    a.end_kernel(name, 256, 96)

K2_ATT = 20480
K2_EX  = 4 * K2_ATT
K2_TAB = K2_EX + 4 * 17 * 1024
K2_FLG = K2_TAB + 8192
K2_LDS = K2_FLG + 256

def gen_k2(a, name, code_bytes):
    TS_CUR[0] = 0x40000
    if FUSED:
        a.label("P2_ENTRY")
        a("s_mov_b64 exec, -1")
        a("s_setprio 0")
        a("v_and_b32 v1, 63, v0")
    else:
        a.begin_kernel(name)
        a("s_cmp_ge_u32 s2, 256")
        a("s_cbranch_scc1 K2_END")
        a("s_load_dwordx2 s[20:21], s[0:1], 64")
        a("s_load_dwordx2 s[24:25], s[0:1], 80")
        a("v_lshrrev_b32 v2, 6, v0")
        a("v_and_b32 v1, 63, v0")
        a("v_readfirstlane_b32 s26, v2")
    stamp(a, 0, 15)
    a("s_and_b32 s40, s2, 7")
    a("s_lshr_b32 s41, s2, 3")
    a("s_and_b32 s42, s40, 3")
    a("s_lshl_b32 s42, s42, 3")
    a("s_and_b32 s43, s41, 7")
    a("s_add_u32 s42, s42, s43")
    a("s_lshr_b32 s43, s40, 2")
    a("s_lshl_b32 s43, s43, 2")
    a("s_lshr_b32 s44, s41, 3")
    a("s_add_u32 s43, s43, s44")
    a("v_lshlrev_b32 v2, 4, v1")
    a("v_lshlrev_b32 v3, 2, v1")
    a("v_and_b32 v4, 15, v1")
    a("v_lshrrev_b32 v5, 4, v1")
    a("s_lshl_b32 s45, s42, 2")
    a("s_mul_i32 s46, s43, 5")
    a("s_waitcnt lgkmcnt(0)")
    srd(a, 36, 24, 25, WS_SIZE)
    srd(a, 28, 20, 21, S * D * 2)
    a("s_lshl_b32 s47, s45, 6")
    a("s_add_u32 s47, s47, 0x%x" % G_OFF)
    a("v_lshlrev_b32 v6, 2, v4")
    if FUSED:
        a("s_lshr_b32 s48, s42, 1")
        a("s_lshl_b32 s48, s48, 6")
        a("s_add_u32 s48, s48, 0x%x" % FL_OFF)
        a("v_add_u32 v7, s48, v3")
        a("v_add_u32 v8, 0x%x, v3" % (FL_OFF + 1280 - 64))
        a("v_cmp_gt_u32 vcc, 16, v1")
        a("s_nop 1")
        a("v_cndmask_b32 v7, v8, v7, vcc")
    if WO_LDS and not FUSED:
        a("v_mov_b32 v7, %d" % K2_FLG)
        a("v_add_u32 v7, v7, v3")
        a("v_mov_b32 v8, 0")
        a("ds_write_b32 v7, v8")
        a("s_waitcnt lgkmcnt(0)")
        a("s_barrier")
    a("s_cmp_ge_u32 s26, 4")
    a("s_cbranch_scc1 K2_ATT")

    if not FUSED:
        code_prefetch(a, name, "K2_END", code_bytes, 7, 8, 90, 26)
    if L2PF2:
        a("v_lshlrev_b32 v7, 7, v1")
        a("s_and_b32 s50, s40, 3")
        a("s_lshl_b32 s50, s50, 5")
        a("s_add_u32 s50, s50, s41")
        a("s_mul_i32 s50, s50, %d" % (74 * 1024))
        a("s_mul_i32 s51, s26, %d" % (148 * 128))
        a("s_add_u32 s50, s50, s51")
        if AF_OFF: a("s_add_u32 s50, s50, 0x%x" % AF_OFF)
        a("s_lshr_b32 s51, s40, 2")
        a("s_mul_i32 s52, s51, %d" % (20 * 54 * 1024))
        a("s_mul_i32 s53, s41, %d" % (270 * 128))
        a("s_add_u32 s52, s52, s53")
        a("s_mul_i32 s53, s26, %d" % (68 * 128))
        a("s_add_u32 s52, s52, s53")
        a("s_add_u32 s52, s52, 0x%x" % BF_OFF)
        a("buffer_load_dword v8, v7, s[36:39], s52 offen %s" % PF_FLAGS)
        a("v_min_u32 v9, 3, v1")
        a("v_lshlrev_b32 v9, 7, v9")
        a("buffer_load_dword v8, v9, s[36:39], s52 offen offset:0 %s" % PF_FLAGS) if False else None
        a("s_add_u32 s52, s52, 8192")
        a("buffer_load_dword v8, v9, s[36:39], s52 offen %s" % PF_FLAGS)
        a("buffer_load_dword v8, v7, s[36:39], s50 offen %s" % PF_FLAGS)
        a("s_add_u32 s50, s50, 8192")
        a("buffer_load_dword v8, v7, s[36:39], s50 offen %s" % PF_FLAGS)
        a("s_add_u32 s50, s50, 8192")
        a("v_min_u32 v9, 19, v1")
        a("v_lshlrev_b32 v9, 7, v9")
        a("buffer_load_dword v8, v9, s[36:39], s50 offen %s" % PF_FLAGS)
    ACC = 16; BUF = 96; GV = 240
    if MLP_PRIO: a("s_setprio %d" % MLP_PRIO)
    if not FUSED:
        for rt in range(4):
            a("buffer_load_dword v%d, v6, s[36:39], s47 offen offset:%d" % (GV + rt, rt * 64))
    a("s_mul_i32 s48, s26, 14")
    a("s_cmp_eq_u32 s26, 3")
    a("s_cselect_b32 s49, 1, 0")
    a("s_sub_u32 s48, s48, s49")
    if FUSED:
        a("s_cmp_ge_u32 s26, 2")
        a("s_cselect_b32 s49, 1, 0")
        a("s_sub_u32 s48, s48, s49")
    a("s_cmp_ge_u32 s26, 2")
    a("s_cselect_b32 s61, 13, 14")
    a("s_lshr_b32 s49, s41, 3")
    a("s_mul_i32 s49, s49, 14")
    a("s_and_b32 s50, s41, 7")
    a("s_mul_i32 s50, s50, 7")
    a("s_add_u32 s49, s49, s50")
    a("s_lshr_b32 s60, s49, 2")
    if not K2_ROT: a("s_mov_b32 s60, 0")
    a("s_cmp_ge_u32 s60, s61")
    a("s_cselect_b32 s49, s61, 0")
    a("s_sub_u32 s60, s60, s49")
    a("s_lshl_b32 s60, s60, 10")
    a("s_lshl_b32 s61, s61, 10")
    for rt in range(4):
        a("s_add_u32 s50, s45, %d" % rt)
        a("s_mul_i32 s50, s50, 74")
        a("s_add_u32 s50, s50, s48")
        a("s_lshl_b32 s50, s50, 10")
        if AF_OFF: a("s_add_u32 s50, s50, 0x%x" % AF_OFF)
        a("v_add_u32 v%d, s50, v2" % (244 + rt))
    for nt in range(5):
        a("s_add_u32 s50, s46, %d" % nt)
        a("s_mul_i32 s50, s50, 54")
        a("s_add_u32 s50, s50, s48")
        a("s_lshl_b32 s50, s50, 10")
        a("s_add_u32 s50, s50, 0x%x" % BF_OFF)
        a("v_add_u32 v%d, s50, v2" % (248 + nt))
    def loads(slot):
        b = BUF + (slot % 4) * 36
        out = []
        for nt in range(5):
            out.append("buffer_load_dwordx4 v[%d:%d], v%d, s[36:39], s60 offen" % (b + 16 + nt * 4, b + 16 + nt * 4 + 3, 248 + nt))
        for rt in range(4):
            out.append("buffer_load_dwordx4 v[%d:%d], v%d, s[36:39], s60 offen" % (b + rt * 4, b + rt * 4 + 3, 244 + rt))
        out.append("s_add_u32 s60, s60, 1024")
        out.append("s_cmp_eq_u32 s60, s61")
        out.append("s_cselect_b32 s60, 0, s60")
        return out
    def adv(): pass
    def mf(sl):
        b = BUF + (sl % 4) * 36
        for nt in range(5):
            for rt in range(4):
                c = ACC + (rt * 5 + nt) * 4
                if K2_NOMFMA: continue
                a("v_mfma_f32_16x16x32_bf16 v[%d:%d], v[%d:%d], v[%d:%d], v[%d:%d]" % (c, c + 3, b + 16 + nt * 4, b + 19 + nt * 4, b + rt * 4, b + rt * 4 + 3, c, c + 3))
    if FUSED:
        def ldB(sl, soff, imm):
            b = BUF + (sl % 4) * 36
            for nt in range(5):
                a("buffer_load_dwordx4 v[%d:%d], v%d, s[36:39], %s offen offset:%d" % (b + 16 + nt * 4, b + 19 + nt * 4, 248 + nt, soff, imm))
        def ldA(sl, soff, imm):
            b = BUF + (sl % 4) * 36
            for rt in range(4):
                a("buffer_load_dwordx4 v[%d:%d], v%d, s[36:39], %s offen offset:%d" % (b + rt * 4, b + rt * 4 + 3, 244 + rt, soff, imm))
        if FUSED_SIMPLE:
            for r in range(ACC, ACC + 80): a("v_mov_b32 v%d, 0" % r)
            poll_flags(a, "P2_M_POLL", 7, 8, 0x7ff | (0xffff << 16))
        else:
            a("s_cmp_eq_u32 s82, 0")
            a("s_cbranch_scc1 P2_M_PK")
            poll_flags(a, "P2_M_POLLP", 7, 8, 0xffff << 16, 16)
            a.label("P2_M_PK")
        a("s_cmp_ge_u32 s26, 2")
        a("s_cbranch_scc1 K2_M_SKB0")
        ldB(0, "0", 0)
        a.label("K2_M_SKB0")
        for sl in (1, 2, 3): ldB(sl, "0", sl * 1024)
        if not FUSED_SIMPLE:
            for r in range(ACC, ACC + 80): a("v_mov_b32 v%d, 0" % r)
            poll_flags(a, "P2_M_POLL", 7, 8, 0x7ff)
        stamp(a, 6, 15)
        for rt in range(4):
            a("buffer_load_dword v%d, v6, s[36:39], s47 offen offset:%d" % (GV + rt, rt * 64))
        a("s_cmp_ge_u32 s26, 2")
        a("s_cbranch_scc1 K2_M_SKA0")
        ldA(0, "0", 0)
        a.label("K2_M_SKA0")
        for sl in (1, 2, 3): ldA(sl, "0", sl * 1024)
        a("s_movk_i32 s60, 4096")
        stamp(a, 2, 15)
        for sl in range(14):
            if sl <= 3:
                n = 4 * (3 - sl) + 9 * min(sl, 10)
            else:
                n = 9 * min(3, 13 - sl)
            a("s_waitcnt vmcnt(%d)" % n)
            if sl == 0:
                stamp(a, 1, 15)
                a("s_cmp_ge_u32 s26, 2")
                a("s_cbranch_scc1 K2_M_SK1")
            mf(sl)
            if sl == 0:
                a.label("K2_M_SK1")
            if sl + 4 <= 13:
                ldB(sl + 4, "s60", 0); ldA(sl + 4, "s60", 0)
                a("s_add_u32 s60, s60, 1024")
    else:
        if K2_NOMLP:
            a("s_branch K2_M_DONE")
        a("s_cmp_ge_u32 s26, 2")
        a("s_cbranch_scc1 K2_M_SK0")
        for t in loads(0): a(t)
        a.label("K2_M_SK0")
        for sl in (1, 2):
            for t in loads(sl): a(t)
        for r in range(ACC, ACC + 80): a("v_mov_b32 v%d, 0" % r)
        stamp(a, 2, 15)
        for sl in range(14):
            if sl + 3 <= 13:
                for t in loads(sl + 3): a(t)
            a("s_waitcnt vmcnt(%d)" % (9 * min(3, 13 - sl)))
            if sl == 0:
                stamp(a, 1, 15)
                a("s_cmp_ge_u32 s26, 2")
                a("s_cbranch_scc1 K2_M_SK1")
            mf(sl)
            if sl == 0:
                a.label("K2_M_SK1")
    a.label("K2_M_DONE")
    stamp(a, 3, 15)
    for rt in range(4):
        a("v_sub_f32 v%d, 1.0, v%d" % (244 + 2 * rt, GV + rt))
        a("v_sub_f32 v%d, 1.0, v%d" % (245 + 2 * rt, GV + rt))
    a("v_add_u32 v7, %d, v2" % K2_EX)
    a("v_add_u32 v10, %d, v2" % (K2_EX + 2 * 17 * 1024))
    a("s_nop 4")
    if FUSED: a("s_barrier")
    elif WO_LDS:
        a("v_min_u32 v9, 3, v1")
        a("v_lshlrev_b32 v9, 2, v9")
        a("v_add_u32 v9, %d, v9" % K2_FLG)
        a.label("K2_M_WF")
        a("ds_read_b32 v8, v9")
        a("s_waitcnt lgkmcnt(0)")
        a("v_cmp_eq_u32 vcc, 1, v8")
        a("s_nop 3")
        a("s_cmp_eq_u64 vcc, -1")
        a("s_cbranch_scc1 K2_M_WFD")
        a("s_sleep 1")
        a("s_branch K2_M_WF")
        a.label("K2_M_WFD")
    for ti in range(20):
        rt = ti // 5
        c = ACC + ti * 4
        for e in (0, 2):
            a("v_pk_mul_f32 v[%d:%d], v[%d:%d], v[%d:%d]" % (c + e, c + e + 1, c + e, c + e + 1, 244 + 2 * rt, 245 + 2 * rt))
    T = BUF
    O = T + 96
    for w in range(4):
        a("s_cmp_eq_u32 s26, %d" % w)
        a("s_cbranch_scc0 K2_X%d" % w)
        for rt in range(4):
            for nt in range(5):
                c = ACC + (rt * 5 + nt) * 4
                if rt == w:
                    if nt >= 3:
                        a("ds_write_b128 v%d, v[%d:%d] offset:%d" % (7 if rt < 2 else 10, c, c + 3, ((rt % 2) * 17 + 15 + nt - 3) * 1024))
                    continue
                idx = w if w < rt else w - 1
                a("ds_write_b128 v%d, v[%d:%d] offset:%d" % (7 if rt < 2 else 10, c, c + 3, ((rt % 2) * 17 + idx * 5 + nt) * 1024))
        for x in range(12):
            a("v_mov_b32 v%d, v%d" % (O + x, ACC + w * 20 + x))
        a("s_branch K2_XD")
        a.label("K2_X%d" % w)
    a.label("K2_XD")
    a("s_mul_i32 s50, s26, %d" % (17 * 1024))
    a("v_add_u32 v7, s50, v7")
    a("s_mul_i32 s50, s26, %d" % (5 * 1024))
    a("v_add_u32 v9, s50, v2")
    a("s_add_u32 s50, s45, s26")
    a("s_mul_i32 s50, s50, %d" % (16 * 1280))
    a("s_mul_i32 s51, s46, 32")
    a("s_add_u32 s50, s50, s51")
    a("v_mul_u32_u24 v8, 1280, v4")
    a("v_lshl_add_u32 v8, v5, 3, v8")
    a("s_waitcnt lgkmcnt(0)")
    a("s_barrier")
    stamp(a, 4, 15)
    def final(nts, own):
        srcs = []
        for idx in range(3):
            for k_, nt in enumerate(nts): srcs.append((k_, "v7", (idx * 5 + nt) * 1024))
        if own is None:
            for k_, nt in enumerate(nts): srcs.append((k_, "v7", (15 + nt - 3) * 1024))
        for u in range(4):
            for k_, nt in enumerate(nts): srcs.append((k_, "v9" if u < 2 else "v10", (u % 2) * K2_ATT + nt * 1024))
        a("v_add_u32 v10, %d, v9" % (2 * K2_ATT))
        for n, (k_, ar, off) in enumerate(srcs):
            a("ds_read_b128 v[%d:%d], %s offset:%d" % (T + n * 4, T + n * 4 + 3, ar, off))
        first = [own is not None] * len(nts)
        for n, (k_, ar, off) in enumerate(srcs):
            rem = len(srcs) - 1 - n
            if n % len(nts) == 0: a("s_waitcnt lgkmcnt(%d)" % max(0, min(15, rem - (len(nts) - 1))))
            o = O + k_ * 4; r = T + n * 4
            if not first[k_]:
                for x in range(4): a("v_mov_b32 v%d, v%d" % (o + x, r + x))
                first[k_] = True
            else:
                for e in (0, 2):
                    a("v_pk_add_f32 v[%d:%d], v[%d:%d], v[%d:%d]" % (o + e, o + e + 1, o + e, o + e + 1, r + e, r + e + 1))
        stamp(a, 6, 15) if own is None else stamp(a, 5, 15)
        for k_, nt in enumerate(nts):
            o = O + k_ * 4
            a("v_cvt_pk_bf16_f32 v%d, v%d, v%d" % (o, o, o + 1))
            a("v_cvt_pk_bf16_f32 v%d, v%d, v%d" % (o + 1, o + 2, o + 3))
            a("buffer_store_dwordx2 v[%d:%d], v8, s[28:31], s50 offen offset:%d %s" % (o, o + 1, nt * 32, OUT_FLAGS))
    final([0, 1, 2], O)
    stamp_flush(a, 15, 14, 2, 26, 8)
    a("s_endpgm")
    FINAL = final

    a.label("K2_ATT")
    if K2_NOATT:
        a("s_barrier")
        stamp_flush(a, 15, 14, 2, 26, 8)
        a("s_endpgm")
    if not FUSED: a("s_setprio %d" % ATT_PRIO)
    a("s_sub_u32 s27, s26, 4")
    RAW = 16; KVA = 120; WO = [192, 212]; DT = 232
    MF = 16
    GV = 252
    vmq = []
    def vm_issue(tag, text):
        a(text); vmq.append(tag)
    def vm_need(tag):
        idx = [i for i, t in enumerate(vmq) if t == tag]
        if not idx: return
        last = max(idx)
        a("s_waitcnt vmcnt(%d)" % min(63, len(vmq) - 1 - last))
        del vmq[:last + 1]
    if KV_MASK:
        KVZERO = True
    def issue_Z():
        a("s_mul_i32 s48, s27, 640")
        a("s_add_u32 s48, s48, 0x%x" % Z_OFF)
        a("v_lshlrev_b32 v7, 4, v5")
        for sx in range(5):
            for ab in range(2):
                r = KVA + (sx * 2 + ab) * 4
                vm_issue("Z", "buffer_load_dwordx4 v[%d:%d], v7, s[36:39], s48 offen offset:%d" % (r, r + 3, sx * 128 + ab * 64))
    def issue_G():
        for rt in range(4):
            vm_issue("G", "buffer_load_dword v%d, v6, s[36:39], s47 offen offset:%d" % (GV + rt, rt * 64))
    def issue_PQ():
        a("s_mul_i32 s52, s27, %d" % K2_ATT)
        a("s_mul_i32 s53, s45, 74")
        a("s_mul_i32 s54, s27, 5")
        a("s_add_u32 s53, s53, s54")
        a("s_add_u32 s53, s53, 54")
        a("s_lshl_b32 s53, s53, 10")
        if AF_OFF: a("s_add_u32 s53, s53, 0x%x" % AF_OFF)
        for rt in range(4):
            for sx in range(5):
                a("s_add_u32 s54, s53, %d" % ((rt * 74 + sx) * 1024))
                a("s_add_u32 m0, s52, %d" % ((rt * 5 + sx) * 1024))
                a("s_nop 0")
                vm_issue("PQ", "buffer_load_dwordx4 v2, s[36:39], s54 offen lds")
    def zero_RAW():
        if KV_MASK:
            for r in range(RAW, RAW + 104): a("v_mov_b32 v%d, 0" % r)
    def issue_KV():
        a("s_mul_i32 s49, s27, %d" % (26 * 1024))
        a("s_add_u32 s49, s49, 0x%x" % KV_OFF)
        for ti in range(26):
            dt, et = TRI[ti % 13]
            m = 0
            for l in range(64):
                if head(16 * dt + (l & 15)) == head(16 * et + 4 * (l >> 4)): m |= 1 << l
            full = (m == (1 << 64) - 1) or not KV_MASK
            if not full:
                a("s_mov_b32 exec_lo, 0x%x" % (m & 0xffffffff))
                a("s_mov_b32 exec_hi, 0x%x" % (m >> 32))
            vm_issue("KV", "buffer_load_dwordx4 v[%d:%d], v2, s[36:39], s49 offen offset:%d" % (RAW + ti * 4, RAW + ti * 4 + 3, (ti % 4) * 1024))
            if not full: a("s_mov_b64 exec, -1")
            if ti % 4 == 3: a("s_add_u32 s49, s49, 4096")
    a("s_mul_i32 s50, s46, 20")
    a("s_mul_i32 s51, s27, 5")
    a("s_add_u32 s50, s50, s51")
    a("s_lshl_b32 s50, s50, 10")
    a("s_add_u32 s50, s50, 0x%x" % WOF_OFF)
    def wo_loads(nt):
        a("s_add_u32 s51, s50, %d" % (nt * 20480))
        for p in range(4):
            r = WO[nt % 2] + p * 4
            vm_issue("WO%d" % nt, "buffer_load_dwordx4 v[%d:%d], v2, s[36:39], s51 offen offset:%d" % (r, r + 3, p * 1024))
        a("s_add_u32 s51, s51, 4096")
        r = WO[nt % 2] + 16
        vm_issue("WO%d" % nt, "buffer_load_dwordx4 v[%d:%d], v2, s[36:39], s51 offen" % (r, r + 3))
    def owed_barriers():
        a.label("P2_A_BAR")
        a("s_cmp_eq_u32 s83, 0")
        a("s_cbranch_scc1 P2_A_BARD")
        a("s_barrier")
        a("s_sub_u32 s83, s83, 1")
        a("s_branch P2_A_BAR")
        a.label("P2_A_BARD")
    if FUSED:
        if FUSED_SIMPLE:
            zero_RAW()
            owed_barriers()
            poll_flags(a, "P2_A_POLLP", 7, 8, 0x600 | (0xffff << 16))
            issue_G(); issue_PQ()
        else:
            a("v_mov_b32 v9, 0")
            a("buffer_load_dword v10, v9, s[52:55], 0 offen sc0 sc1")
            zero_check(a, "P2_A_ZC", 10, 9)
            poll_flags(a, "P2_A_POLLP", 7, 8, 0xffff << 16, 16)
            if not PRE_WO: owed_barriers()
        wo_loads(0); wo_loads(1)
        a("s_mul_i32 s56, s27, 15360")
        a("s_add_u32 s56, s56, %d" % K2_EX)
        for nt in (2, 3, 4):
            for p in range(5):
                a("s_add_u32 s51, s50, %d" % (nt * 20480 + p * 1024))
                a("s_add_u32 m0, s56, %d" % ((nt - 2) * 5120 + p * 1024))
                a("s_nop 0")
                vm_issue("WOL", "buffer_load_dwordx4 v2, s[36:39], s51 offen lds")
        a("v_add_u32 v14, s56, v2")
        stamp(a, 9, 15)
        if not FUSED_SIMPLE:
            zero_RAW()
            if PRE_WO: owed_barriers()
            a("s_setprio %d" % ATT_PRIO)
            poll_flags(a, "P2_A_POLL1", 7, 8, 0x600)
            issue_G(); issue_PQ()
        a("v_add_u32 v7, 0x%x, v3" % (FL_OFF + 1024))
        poll_flags(a, "P2_A_POLL2", 7, 8, (1 << 64) - 1)
        del vmq[:]
        stamp(a, 8, 15)
        issue_Z(); issue_KV()
    else:
        issue_Z(); issue_G(); issue_PQ()
        zero_RAW()
        issue_KV()
        wo_loads(0); wo_loads(1)
        if WO_LDS:
            a("s_mul_i32 s56, s27, 15360")
            a("s_add_u32 s56, s56, %d" % K2_EX)
            for nt in (2, 3, 4):
                for p in range(5):
                    a("s_add_u32 s51, s50, %d" % (nt * 20480 + p * 1024))
                    a("s_add_u32 m0, s56, %d" % ((nt - 2) * 5120 + p * 1024))
                    a("s_nop 0")
                    vm_issue("WOL", "buffer_load_dwordx4 v2, s[36:39], s51 offen lds")
            a("v_add_u32 v14, s56, v2")
    if ATT_PRIO3 is not None: a("s_setprio %d" % ATT_PRIO3)
    stamp(a, 2, 15)
    a("s_lshl_b32 s55, s27, 11")
    a("s_add_u32 s55, s55, %d" % K2_TAB)
    a("v_add_u32 v9, s52, v2")
    a("v_lshlrev_b32 v10, 5, v4")
    a("v_add_u32 v10, s55, v10")
    a("v_lshl_add_u32 v8, v5, 4, v10")
    for gb in (1, 2, 3):
        a("v_cmp_le_u32 vcc, %d, v5" % gb)
        a("s_nop 1")
        a("v_cndmask_b32 v%d, 0, 4, vcc" % (10 + gb))
        a("v_add_u32 v%d, v10, v%d" % (10 + gb, 10 + gb))
    ZF = 160
    vm_need("Z")
    for sx in range(5):
        r0 = KVA + sx * 8
        o = ZF + sx * 4
        a("v_cvt_pk_bf16_f32 v%d, v%d, v%d" % (o, r0, r0 + 1))
        a("v_cvt_pk_bf16_f32 v%d, v%d, v%d" % (o + 1, r0 + 2, r0 + 3))
        a("v_cvt_pk_bf16_f32 v%d, v%d, v%d" % (o + 2, r0 + 4, r0 + 5))
        a("v_cvt_pk_bf16_f32 v%d, v%d, v%d" % (o + 3, r0 + 6, r0 + 7))
        for ab in range(2):
            m = 0
            for l in range(64):
                if (32 * sx + 16 * ab + 4 * (l >> 4)) // 20 == (l & 15): m |= 1 << l
            a("s_mov_b32 s56, 0x%x" % (m & 0xffffffff))
            a("s_mov_b32 s57, 0x%x" % (m >> 32))
            a("v_cndmask_b32 v%d, 0, v%d, s[56:57]" % (o + 2 * ab, o + 2 * ab))
            a("v_cndmask_b32 v%d, 0, v%d, s[56:57]" % (o + 2 * ab + 1, o + 2 * ab + 1))
    PB = [120, 140]; DEN = 232; SC = 180
    vm_need("PQ")
    def pq_reads(rt, b):
        return ["ds_read_b128 v[%d:%d], v9 offset:%d" % (b + sx * 4, b + sx * 4 + 3, (rt * 5 + sx) * 1024) for sx in range(5)]
    for t in pq_reads(0, PB[0]) + pq_reads(1, PB[1]): a(t)
    for rt in range(4):
        b = PB[rt % 2]
        a("s_waitcnt lgkmcnt(%d)" % (5 if rt < 3 else 0))
        for sx in range(5):
            c = DEN + rt * 4
            a("v_mfma_f32_16x16x32_bf16 v[%d:%d], v[%d:%d], v[%d:%d], %s" % (c, c + 3, ZF + sx * 4, ZF + sx * 4 + 3, b + sx * 4, b + sx * 4 + 3, "0" if sx == 0 else "v[%d:%d]" % (c, c + 3)))
        if rt + 2 < 4:
            for t in pq_reads(rt + 2, b): a(t)
    for t in pq_reads(0, PB[0]) + pq_reads(1, PB[1]): a(t)
    vm_need("G")
    a("s_mov_b32 s56, 0x%x" % EPS6)
    for rt in range(4):
        for r in range(4): a("v_add_f32 v%d, s56, v%d" % (DEN + rt * 4 + r, DEN + rt * 4 + r))
    for rt in range(4):
        for r in range(4): a("v_rcp_f32 v%d, v%d" % (DEN + rt * 4 + r, DEN + rt * 4 + r))
    a("s_nop 0")
    for rt in range(4):
        for r in range(4): a("v_mul_f32 v%d, v%d, v%d" % (DEN + rt * 4 + r, GV + rt, DEN + rt * 4 + r))
    a("s_mov_b32 exec_lo, -1")
    a("s_mov_b32 exec_hi, 0")
    for rt in range(4):
        a("ds_write_b128 v8, v[%d:%d] offset:%d" % (DEN + rt * 4, DEN + rt * 4 + 3, rt * 512))
    a("s_mov_b64 exec, -1")
    a("s_waitcnt lgkmcnt(0)")
    def sc_reads(rt, base):
        out = []
        for sx in range(5):
            for ab in range(2):
                hs = [(32 * sx + 16 * ab + 4 * g) // 20 for g in range(4)]
                h0 = hs[0]
                gb = next((g for g in range(4) if hs[g] > h0), None)
                areg = 10 if gb is None else 10 + gb
                out.append("ds_read_b32 v%d, v%d offset:%d" % (base + sx * 2 + ab, areg, rt * 512 + h0 * 4))
        return out
    SCB = [180, 232]
    TMP = [190, 242, 244, 246]
    for t in sc_reads(0, SCB[0]) + sc_reads(1, SCB[1]): a(t)
    for rt in range(4):
        b = PB[rt % 2]; sc0 = SCB[rt % 2]
        a("s_waitcnt lgkmcnt(%d)" % (10 if rt == 0 else (15 if rt < 3 else 5)))
        if rt >= 1:
            pass
        n = 0
        for sx in range(5):
            for x in range(4):
                r = b + sx * 4 + x; sc = sc0 + sx * 2 + (x // 2)
                t = TMP[n % 4]; n += 1
                a("v_lshlrev_b32 v%d, 16, v%d" % (t, r))
                a("v_and_b32 v%d, 0xffff0000, v%d" % (t + 1, r))
                if PKSCALE:
                    base = sc & ~1
                    hi = sc & 1
                    a("v_pk_mul_f32 v[%d:%d], v[%d:%d], v[%d:%d] op_sel:[0,%d] op_sel_hi:[1,%d]" % (t, t + 1, t, t + 1, base, base + 1, hi, hi))
                else:
                    a("v_mul_f32 v%d, v%d, v%d" % (t, sc, t))
                    a("v_mul_f32 v%d, v%d, v%d" % (t + 1, sc, t + 1))
                a("v_cvt_pk_bf16_f32 v%d, v%d, v%d" % (r, t, t + 1))
        for sx in range(5):
            a("ds_write_b128 v9, v[%d:%d] offset:%d" % (b + sx * 4, b + sx * 4 + 3, (rt * 5 + sx) * 1024))
        if rt + 2 < 4:
            for t in pq_reads(rt + 2, b) + sc_reads(rt + 2, sc0): a(t)
    stamp(a, 5, 15)
    vm_need("KV")
    def ktile(DTl, ET):
        par = DTl // 5
        if ET // 5 != par: return None
        key = (DTl % 5, ET % 5)
        if key not in TRI: return None
        return RAW + (par * 13 + TRI.index(key)) * 4
    frags = []
    for DTl in range(10):
        for p in range(5):
            if ktile(DTl, 2 * p) is not None or ktile(DTl, 2 * p + 1) is not None:
                frags.append((DTl, p))
    assert len(frags) == 18
    a("s_waitcnt lgkmcnt(0)")
    for fi, (DTl, p) in enumerate(frags):
        o = KVA + fi * 4
        for half in range(2):
            t = ktile(DTl, 2 * p + half)
            if t is None:
                a("v_mov_b32 v%d, 0" % (o + 2 * half)); a("v_mov_b32 v%d, 0" % (o + 2 * half + 1))
            else:
                a("v_cvt_pk_bf16_f32 v%d, v%d, v%d" % (o + 2 * half, t, t + 1))
                a("v_cvt_pk_bf16_f32 v%d, v%d, v%d" % (o + 2 * half + 1, t + 2, t + 3))
    stamp(a, 1, 15)
    dset = 0
    pend = []
    def conv(item):
        d, nt, sx = item
        o = MF + (sx * 5 + nt) * 4
        a("v_cvt_pk_bf16_f32 v%d, v%d, v%d" % (o, d, d + 1))
        a("v_cvt_pk_bf16_f32 v%d, v%d, v%d" % (o + 1, d + 2, d + 3))
        a("v_cvt_pk_bf16_f32 v%d, v%d, v%d" % (o + 2, d + 4, d + 5))
        a("v_cvt_pk_bf16_f32 v%d, v%d, v%d" % (o + 3, d + 6, d + 7))
    a("s_nop 1")
    for nt in range(5):
        vm_need("WO%d" % nt)
        if (FUSED or WO_LDS) and nt >= 2:
            a("s_waitcnt lgkmcnt(%d)" % (5 if nt < 4 else 0))
            if nt == 4:
                if FUSED:
                    a("s_barrier")
                else:
                    a("s_lshl_b32 s56, s27, 2")
                    a("s_add_u32 s56, s56, %d" % K2_FLG)
                    a("v_mov_b32 v7, s56")
                    a("v_mov_b32 v8, 1")
                    a("ds_write_b32 v7, v8")
        for sx in range(5):
            d = DT + (dset % 3) * 8
            dset += 1
            for half in range(2):
                DTl = 2 * sx + half
                first = True
                for fi, (D_, p) in enumerate(frags):
                    if D_ != DTl: continue
                    A_ = KVA + fi * 4; B_ = WO[nt % 2] + p * 4; c = d + half * 4
                    a("v_mfma_f32_16x16x32_bf16 v[%d:%d], v[%d:%d], v[%d:%d], %s" % (c, c + 3, A_, A_ + 3, B_, B_ + 3, "0" if first else "v[%d:%d]" % (c, c + 3)))
                    first = False
            pend.append((d, nt, sx))
            if len(pend) == 3:
                a("s_nop 1")
                conv(pend.pop(0))
        if nt + 2 <= 4:
            if FUSED or WO_LDS:
                vm_need("WOL")
                for p in range(5):
                    r = WO[nt % 2] + p * 4
                    a("ds_read_b128 v[%d:%d], v14 offset:%d" % (r, r + 3, nt * 5120 + p * 1024))
            else:
                wo_loads(nt + 2)
        if FUSED and nt == 2:
            pass
    ACC = 120; PQB = [200, 220]
    for t in pq_reads(0, PQB[0]): a(t)
    a("s_nop 7")
    while pend:
        conv(pend.pop(0))
    stamp(a, 3, 15)
    for rt in range(4):
        b = PQB[rt % 2]
        if rt < 3:
            for t in pq_reads(rt + 1, PQB[(rt + 1) % 2]): a(t)
        a("s_waitcnt lgkmcnt(%d)" % (5 if rt < 3 else 0))
        for sx in range(5):
            for nt in range(5):
                c = ACC + (rt * 5 + nt) * 4; m = MF + (sx * 5 + nt) * 4
                a("v_mfma_f32_16x16x32_bf16 v[%d:%d], v[%d:%d], v[%d:%d], %s" % (c, c + 3, m, m + 3, b + sx * 4, b + sx * 4 + 3, "0" if sx == 0 else "v[%d:%d]" % (c, c + 3)))
        if rt >= 1:
            for nt in range(5):
                c = ACC + ((rt - 1) * 5 + nt) * 4
                a("ds_write_b128 v9, v[%d:%d] offset:%d" % (c, c + 3, ((rt - 1) * 5 + nt) * 1024))
    a("s_nop 7")
    for nt in range(5):
        c = ACC + (15 + nt) * 4
        a("ds_write_b128 v9, v[%d:%d] offset:%d" % (c, c + 3, (15 + nt) * 1024))
    a("s_mul_i32 s50, s27, %d" % (17 * 1024))
    a("s_add_u32 s50, s50, %d" % K2_EX)
    a("v_add_u32 v7, s50, v2")
    a("s_mul_i32 s50, s27, %d" % (5 * 1024))
    a("v_add_u32 v9, s50, v2")
    a("s_add_u32 s50, s45, s27")
    a("s_mul_i32 s50, s50, %d" % (16 * 1280))
    a("s_mul_i32 s51, s46, 32")
    a("s_add_u32 s50, s50, s51")
    a("v_mul_u32_u24 v8, 1280, v4")
    a("v_lshl_add_u32 v8, v5, 3, v8")
    a("s_waitcnt lgkmcnt(0)")
    stamp(a, 4, 15)
    a("s_barrier")
    FINAL([3, 4], None)
    stamp_flush(a, 15, 14, 2, 26, 8)
    a.label("K2_END")
    a("s_endpgm")
    a.end_kernel(name, 256, 96)

def gen_k0(a, name):
    a.begin_kernel(name)
    a("s_cmp_ge_u32 s2, 8")
    a("s_cbranch_scc1 K0_END")
    a("s_load_dwordx16 s[4:19], s[0:1], 0")
    a("s_load_dwordx4 s[20:23], s[0:1], 64")
    a("s_load_dwordx2 s[24:25], s[0:1], 80")
    a("s_getpc_b64 s[90:91]")
    a.label("K0_PC")
    a("s_sub_u32 s90, s90, K0_PC-k1_kernel")
    a("s_subb_u32 s91, s91, 0")
    a("v_lshlrev_b32 v3, 7, v0")
    for i in range(6):
        a("v_min_u32 v5, K2_END-k1_kernel-4, v3")
        a("global_load_dword v4, v5, s[90:91]")
        a("v_add_u32 v3, 8192, v3")
    a("v_min_u32 v10, 15, v0")
    a("v_lshlrev_b32 v10, 20, v10")
    a("s_waitcnt lgkmcnt(0)")
    for (lo, size) in ((4, S * D * 2), (6, D * 3 * D * 2), (8, D * D * 2), (12, D * F * 2), (14, D * F * 2), (16, F * D * 2), (18, D * 2), (20, S * D * 2), (22, 256), (24, WS_SIZE)):
        srd(a, 28, lo, lo + 1, size)
        a("buffer_load_dword v4, v10, s[28:31], 0 offen")
    a("s_waitcnt vmcnt(0)")
    a.label("K0_END")
    a("s_endpgm")
    a.end_kernel(name, 16, 96)

HDR = """; Kernarg layout for this problem (88 bytes, ptrs only, base s[0:1]):
;   offset   0: d_in[0] A_x  shape=(1, 2048, 640) dtype=bfloat16 strides=(2621440, 1280, 2) contiguous=True
;   offset   8: d_in[1] A_wqkv  shape=(640, 1920) dtype=bfloat16 strides=(3840, 2) contiguous=True
;   offset  16: d_in[2] A_wo  shape=(640, 640) dtype=bfloat16 strides=(1280, 2) contiguous=True
;   offset  24: d_in[3] B_x  shape=(1, 2048, 640) dtype=bfloat16 strides=(2621440, 1280, 2) contiguous=True
;   offset  32: d_in[4] B_w_gate  shape=(640, 1728) dtype=bfloat16 strides=(3456, 2) contiguous=True
;   offset  40: d_in[5] B_w_up  shape=(640, 1728) dtype=bfloat16 strides=(3456, 2) contiguous=True
;   offset  48: d_in[6] B_w_down  shape=(1728, 640) dtype=bfloat16 strides=(1280, 2) contiguous=True
;   offset  56: d_in[7] gate_w  shape=(640,) dtype=bfloat16 strides=(2,) contiguous=True
;   k1: x @ [wqkv | w_gate | w_up] with fused epilogues (phi(q), h = sigmoid(g)*u, kv/z partial sums via atomics, gate)
;   k2: [h | phi(q)/den] @ [w_down ; blockdiag(kv) @ wo] with the gated mix
"""
if __name__ == "__main__":
    if len(sys.argv) > 1 and sys.argv[1] == "stamp": STAMP = True
    for o in sys.argv[3:]:
        k_, v_ = o.split("=")
        globals()[k_] = eval(v_)
    a = Asm()
    gen_k1(a, "k1_kernel", 32768)
    gen_k2(a, "k1_kernel" if FUSED else "k2_kernel", 32768)
    if WARMK: gen_k0(a, "k0_kernel")
    if FUSED:
        hdr = HDR + "; @launch kernel=k1_kernel grid=(256,1,1) block=(512,1,1) lds=%d" % max(K1_LDS, K2_LDS)
    else:
        hdr = HDR + ("; @launch kernel=k0_kernel grid=(8,1,1) block=(64,1,1) lds=0\n" if WARMK else "") + "; @launch kernel=k1_kernel grid=(256,1,1) block=(512,1,1) lds=%d\n" % K1_LDS
        hdr += "; @launch kernel=k2_kernel grid=(256,1,1) block=(512,1,1) lds=%d" % K2_LDS
    out = sys.argv[2] if len(sys.argv) > 2 else "k12.s"
    open(out, "w").write(a.text(hdr))
```
